```python
import torch

def _softmax(x, axis=-1):
    return torch.softmax(x, dim=axis)
def _gelu(x):
    return torch.nn.functional.gelu(x, approximate="tanh")
def _silu(x):
    return torch.nn.functional.silu(x)
def _sigmoid(x):
    return torch.sigmoid(x)
def _layernorm(x, axis=-1, eps=1e-5):
    m = x.mean(dim=axis, keepdim=True)
    v = x.var(dim=axis, keepdim=True, unbiased=False)
    return (x - m) / torch.sqrt(v + eps)
def _scatter_add(tgt, idx, src, axis=0):
    return tgt.clone().index_add_(axis, idx, src)
def _segment_sum(src, seg, n):
    out = torch.zeros((n,) + src.shape[1:], dtype=src.dtype)
    return out.index_add_(0, seg, src)
def _pad(x, pw):
    flat = tuple(v for pair in reversed(pw) for v in pair)
    return torch.nn.functional.pad(x, flat)

kernel_name = 'concat_heads__gqa_block_cached__mha_block_cached__near_ridge'

def setup_inputs():

    _w = (lambda a: (lambda t: t.to(torch.bfloat16) if t.is_floating_point() else t)(torch.as_tensor(a)))
    def _A_setup():
        B, Sq, D = 16, 48, 576
        Hq, Hkv, Sk, Dh = 32, 16, 48, 128
        assert Hq % Hkv == 0, (Hq, Hkv)
        return {
            "x": _w((lambda *s: torch.randn(*s, dtype=torch.bfloat16) * 0.8)(B, Sq, D)),
            "k_cache": _w((lambda *s: torch.randn(*s, dtype=torch.bfloat16) * 0.8)(B, Hkv, Sk, Dh)),
            "v_cache": _w((lambda *s: torch.randn(*s, dtype=torch.bfloat16) * 0.05)(B, Hkv, Sk, Dh)),
            "wq": _w((lambda *s: torch.randn(*s, dtype=torch.bfloat16) * 0.8)(D, Hq * Dh) * (D ** -0.5)),
            "wo": _w((lambda *s: torch.randn(*s, dtype=torch.bfloat16) * 0.05)(Hq * Dh, D) * ((Hq * Dh) ** -0.5)),
        }
    _A_in = _A_setup()

    def _B_setup():
        B, Sq, D = 16, 48, 576
        H, Sk, Dh = 32, 48, 128
        return {
            "x": _w((lambda *s: torch.randn(*s, dtype=torch.bfloat16) * 0.8)(B, Sq, D)),
            "k_cache": _w((lambda *s: torch.randn(*s, dtype=torch.bfloat16) * 0.8)(B, H, Sk, Dh)),
            "v_cache": _w((lambda *s: torch.randn(*s, dtype=torch.bfloat16) * 0.05)(B, H, Sk, Dh)),
            "wq": _w((lambda *s: torch.randn(*s, dtype=torch.bfloat16) * 0.8)(D, H * Dh) * (D ** -0.5)),
            "wo": _w((lambda *s: torch.randn(*s, dtype=torch.bfloat16) * 0.05)(H * Dh, D) * ((H * Dh) ** -0.5)),
        }
    _B_in = _B_setup()

    return {
        "A_x": _A_in["x"],
        "A_k_cache": _A_in["k_cache"],
        "A_v_cache": _A_in["v_cache"],
        "A_wq": _A_in["wq"],
        "A_wo": _A_in["wo"],
        "B_x": _B_in["x"],
        "B_k_cache": _B_in["k_cache"],
        "B_v_cache": _B_in["v_cache"],
        "B_wq": _B_in["wq"],
        "B_wo": _B_in["wo"],
    }

def reference(A_x, A_k_cache, A_v_cache, A_wq, A_wo, B_x, B_k_cache, B_v_cache, B_wq, B_wo):
    def _A_ref(x, k_cache, v_cache, wq, wo):
        B, Sq, D = x.shape
        Hq, Dh = 32, 128
        Hkv = k_cache.shape[1]
        rep = Hq // Hkv
        q = (lambda x, *d: x.permute(*d))((x @ wq).reshape(B, Sq, Hq, Dh), 0, 2, 1, 3)
        k = (lambda x, n, axis: torch.repeat_interleave(x, n, dim=axis))(k_cache, rep, axis=1)
        v = (lambda x, n, axis: torch.repeat_interleave(x, n, dim=axis))(v_cache, rep, axis=1)
        scores = torch.einsum("bhqd,bhkd->bhqk", q, k) * (Dh ** -0.5)
        p = _softmax(scores, axis=-1)
        o = torch.einsum("bhqk,bhkd->bhqd", p, v)
        return (lambda x, *d: x.permute(*d))(o, 0, 2, 1, 3).reshape(B, Sq, Hq * Dh) @ wo

    def _B_ref(x, k_cache, v_cache, wq, wo):
        B, Sq, D = x.shape
        H, Dh = 32, 128
        q = (lambda x, *d: x.permute(*d))((x @ wq).reshape(B, Sq, H, Dh), 0, 2, 1, 3)
        scores = torch.einsum("bhqd,bhkd->bhqk", q, k_cache) * (Dh ** -0.5)
        p = _softmax(scores, axis=-1)
        o = torch.einsum("bhqk,bhkd->bhqd", p, v_cache)
        return (lambda x, *d: x.permute(*d))(o, 0, 2, 1, 3).reshape(B, Sq, H * Dh) @ wo

    a = _A_ref(A_x, A_k_cache, A_v_cache, A_wq, A_wo)
    b = _B_ref(B_x, B_k_cache, B_v_cache, B_wq, B_wo)
    return torch.concatenate([a, b], axis=-1)
```

```python
import re

TRANS = ("v_exp_f32", "v_log_f32", "v_rcp_f32", "v_rsq_f32", "v_sqrt_f32", "v_sin_f32", "v_cos_f32", "v_rcp_iflag_f32")

def parse_regs(tok):
    tok = tok.strip()
    neg = tok.lstrip('-')
    m = re.fullmatch(r'(?:abs\()?([vas])(\d+)\)?', neg)
    if m:
        return {(m.group(1), int(m.group(2)))}
    m = re.fullmatch(r'([vas])\[(\d+):(\d+)\]', neg)
    if m:
        return {(m.group(1), i) for i in range(int(m.group(2)), int(m.group(3)) + 1)}
    if neg in ('vcc', 'vcc_lo', 'vcc_hi'):
        return {('x', 'vcc')}
    if neg in ('exec', 'exec_lo', 'exec_hi'):
        return {('x', 'exec')}
    if neg == 'm0':
        return {('x', 'm0')}
    return set()

class Inst:
    __slots__ = ('text', 'op', 'cls', 'wr', 'rd', 'srcC', 'passes', 'states', 'storedata', 'ops')
    def __init__(self, text):
        self.text = text
        code = text.split(';')[0].strip()
        parts = code.split(None, 1)
        self.op = parts[0]
        rest = parts[1] if len(parts) > 1 else ''
        rest = re.sub(r'\s+(op_sel|op_sel_hi|neg_lo|neg_hi):\[[^\]]*\]', '', rest)
        ops = [o.strip() for o in rest.split(',')] if rest else []
        mods = []
        if ops:
            sp = ops[-1].split()
            ops[-1] = sp[0] if sp else ''
            mods = sp[1:]
        self.ops = ops
        op = self.op
        self.wr = set(); self.rd = set(); self.srcC = set(); self.passes = 0; self.states = 1
        self.storedata = set()
        R = [parse_regs(o) for o in ops]
        if op == 's_nop':
            self.cls = 'nop'; self.states = int(ops[0], 0) + 1
        elif op.startswith('v_mfma'):
            self.cls = 'mfma'
            self.wr = R[0]; self.rd = R[1] | R[2] | R[3]; self.srcC = R[3]
            if '32x32x16' in op or '32x32x8' in op: self.passes = 8
            elif '16x16x32' in op or '16x16x16' in op: self.passes = 4
            else: raise ValueError(op)
        elif op.startswith('v_cmp'):
            self.cls = 'valu'; self.wr = R[0]; self.rd = set().union(*R[1:])
            if op.startswith('v_cmpx'): self.wr |= {('x', 'exec')}
        elif op.startswith('v_readfirstlane') or op.startswith('v_readlane'):
            self.cls = 'valu'; self.wr = R[0]; self.rd = set().union(*R[1:])
        elif op.startswith('v_permlane') and 'swap' in op:
            self.cls = 'valu'; self.wr = R[0] | R[1]; self.rd = R[0] | R[1]
        elif op.startswith('v_'):
            self.cls = 'valu'; self.wr = set(R[0]); self.rd = set().union(*R[1:]) if len(R) > 1 else set()
            if op.startswith('v_fmac') or op.startswith('v_pk_fmac') or op.startswith('v_dot2c'): self.rd |= R[0]
            if '_co_' in op: self.wr |= R[1]; self.rd = set().union(*R[2:])
            if op.startswith('v_cndmask') and len(ops) == 3: self.rd |= {('x', 'vcc')}
        elif op.startswith('ds_read'):
            self.cls = 'ds'; self.wr = R[0]; self.rd = R[1]
        elif op.startswith('ds_write'):
            self.cls = 'ds'; self.rd = set().union(*R)
        elif op.startswith('ds_'):
            self.cls = 'ds'; self.wr = R[0]; self.rd = set().union(*R[1:])
        elif op.startswith('buffer_load') or op.startswith('global_load'):
            self.cls = 'vmem'
            if 'lds' in mods or '_lds_' in op:
                self.rd = set().union(*R) | {('x', 'm0')}
            else:
                self.wr = R[0]; self.rd = set().union(*R[1:])
        elif op.startswith('buffer_store') or op.startswith('buffer_atomic'):
            self.cls = 'vmem'; self.rd = set().union(*R)
            if 'x3' in op or 'x4' in op: self.storedata = R[0]
            if op.startswith('buffer_atomic') and 'sc0' in mods: self.wr = R[0]
        elif op.startswith('global_store') or op.startswith('global_atomic'):
            self.cls = 'vmem'; self.rd = set().union(*R)
            if 'x3' in op or 'x4' in op: self.storedata = R[1]
        elif op.startswith('buffer_'):
            self.cls = 'vmem0'
        elif op.startswith('s_atomic'):
            self.cls = 'smem'; self.rd = set().union(*R)
        elif op.startswith('s_load') or op.startswith('s_buffer_load') or op.startswith('s_memtime') or op.startswith('s_memrealtime'):
            self.cls = 'smem'; self.wr = R[0]; self.rd = set().union(*R[1:]) if len(R) > 1 else set()
        elif op.startswith('s_cmp') or op.startswith('s_bitcmp'):
            self.cls = 'salu'; self.rd = set().union(*R)
        elif op in ('s_waitcnt', 's_barrier', 's_endpgm', 's_setprio', 's_sleep') or op.startswith('s_cbranch') or op == 's_branch':
            self.cls = 'ctl'
        elif op.startswith('s_'):
            self.cls = 'salu'; self.wr = set(R[0]) if R else set(); self.rd = set().union(*R[1:]) if len(R) > 1 else set()
            if 'saveexec' in op: self.wr |= {('x', 'exec')}
        else:
            raise ValueError("unknown op " + text)

def need(prod, cons):
    n = 0
    V = lambda s: {r for r in s if r[0] in 'va'}
    S = lambda s: {r for r in s if r[0] == 's' or r == ('x', 'vcc')}
    if prod.cls == 'valu':
        pw = V(prod.wr)
        if cons.cls == 'mfma' and pw & cons.rd: n = max(n, 2)
        if cons.op.startswith('v_permlane') and pw & cons.rd: n = max(n, 2)
        if (cons.op.startswith('v_readfirstlane') or cons.op.startswith('v_readlane')) and pw & cons.rd: n = max(n, 1)
        if 'dpp' in cons.text and cons.cls == 'valu' and pw & cons.rd: n = max(n, 2)
        if prod.op.startswith(TRANS) and cons.cls in ('valu', 'mfma') and pw & cons.rd: n = max(n, 1)
        sw = S(prod.wr)
        if sw:
            if cons.cls == 'vmem' and sw & cons.rd: n = max(n, 5)
            if cons.cls == 'valu' and sw & cons.rd: n = max(n, 2)
            if (cons.op.startswith('v_readlane') or cons.op.startswith('v_writelane')) and sw & cons.rd: n = max(n, 4)
            if cons.cls in ('salu', 'smem') and sw & cons.rd: n = max(n, 1)
        if ('x', 'exec') in prod.wr:
            if cons.cls == 'mfma': n = max(n, 4)
            if cons.op.startswith('v_permlane') or cons.op.startswith('v_read') or cons.op.startswith('v_writelane'): n = max(n, 4)
            if 'dpp' in cons.text: n = max(n, 5)
    if prod.cls == 'salu' and ('x', 'm0') in prod.wr and ('x', 'm0') in cons.rd and cons.cls in ('vmem', 'ds'):
        n = max(n, 1)
    if prod.storedata and (prod.storedata & cons.wr):
        n = max(n, 2)
    if prod.cls == 'mfma':
        P = prod.passes
        D = prod.wr
        if cons.cls == 'mfma':
            if D & cons.srcC:
                if cons.srcC == D and cons.passes == P: n = max(n, 0 if P >= 4 else 2)
                else: n = max(n, {2: 4, 4: 6, 8: 10, 16: 18}[P])
            ab = set().union(parse_regs(cons.ops[1]), parse_regs(cons.ops[2]))
            if D & ab: n = max(n, {2: 5, 4: 8, 8: 12, 16: 20}[P])
            if D & cons.wr and not (cons.srcC == D): n = max(n, {2: 5, 4: 8, 8: 12, 16: 20}[P])
        elif cons.cls in ('valu', 'vmem', 'ds'):
            if D & (cons.rd | cons.wr): n = max(n, {2: 5, 4: 8, 8: 12, 16: 20}[P])
        if cons.cls == 'valu' and prod.srcC & cons.wr:
            n = max(n, {2: 1, 4: 3, 8: 7, 16: 15}[P])
    return n

class Asm:
    def __init__(self):
        self.lines = []
        self.hist = []
        self.vm = []
        self.nops_inserted = 0
        self.ninst = 0
    def raw(self, text):
        self.lines.append(text)
    def comment(self, text):
        self.lines.append('    ; ' + text)
    def label(self, name):
        self.lines.append(name + ':')
    def __call__(self, text, tag=None):
        ins = Inst(text)
        dist = 0
        pad = 0
        for prev in reversed(self.hist[-24:]):
            r = need(prev, ins)
            if r > dist: pad = max(pad, r - dist)
            dist += prev.states
            if dist > 24: break
        while pad > 0:
            k = min(pad, 16)
            nop = Inst(f's_nop {k-1}')
            self.hist.append(nop); self.lines.append(f'    s_nop {k-1}'); self.nops_inserted += 1; self.ninst += 1
            pad -= k
        self.hist.append(ins)
        self.lines.append('    ' + text)
        self.ninst += 1
        if ins.cls == 'vmem':
            self.vm.append(tag)
        return ins
    def flush_hazards(self):
        self('s_nop 15'); self('s_nop 3')
    def vm_wait_n(self, tag_pred):
        idx = -1
        for i, t in enumerate(self.vm):
            if tag_pred(t): idx = i
        return len(self.vm) - 1 - idx if idx >= 0 else None
    def wait_vm(self, tag_pred, extra=''):
        n = self.vm_wait_n(tag_pred)
        if n is None:
            if extra: self(f's_waitcnt {extra}')
            return
        assert n <= 63, n
        self(f's_waitcnt vmcnt({n}) {extra}'.rstrip())
        self.vm = self.vm[len(self.vm) - n:] if n > 0 else []
    def text(self):
        return '\n'.join(self.lines) + '\n'

def interleave(a, main, fill, ratio=1, start=0):
    fill = list(fill)
    fi = 0
    acc = 0.0
    def em(x):
        if callable(x): x()
        elif isinstance(x, tuple): a(x[0], x[1])
        else: a(x)
    for i, m in enumerate(main):
        em(m)
        if i >= start:
            acc += ratio
            while acc >= 1.0 and fi < len(fill):
                em(fill[fi]); fi += 1; acc -= 1.0
    while fi < len(fill):
        em(fill[fi]); fi += 1
```

```python
HEADER = open('concat_heads__gqa_block_cached__mha_block_cached__near_ridge.s.ref').read().split('; Override launch geometry')[0]
NAME = 'concat_heads__gqa_block_cached__mha_block_cached__near_ridge'

def kd(name, vgpr, sgpr, accum):
    return f""".p2align 6
.amdhsa_kernel {name}
  .amdhsa_next_free_vgpr {vgpr}
  .amdhsa_next_free_sgpr {sgpr}
  .amdhsa_accum_offset {accum}
  .amdhsa_group_segment_fixed_size 0
  .amdhsa_kernarg_size 104
  .amdhsa_user_sgpr_count 2
  .amdhsa_user_sgpr_kernarg_segment_ptr 1
  .amdhsa_system_sgpr_workgroup_id_x 1
.end_amdhsa_kernel
"""

def build_file(kernels):
    out = [HEADER.rstrip('\n')]
    if len(kernels) == 1 and kernels[0]['name'] == NAME + '_kernel':
        k = kernels[0]
        out.append(f"; @launch grid=({k['grid']},1,1) block=({k['block']},1,1) lds={k['lds']}")
    else:
        for k in kernels:
            out.append(f"; @launch kernel={k['name']} grid=({k['grid']},1,1) block=({k['block']},1,1) lds={k['lds']}")
    out.append('.amdgcn_target "amdgcn-amd-amdhsa--gfx950"')
    out.append('.text')
    seen = set()
    for k in kernels:
        if k['name'] in seen: continue
        seen.add(k['name'])
        out.append(f".globl {k['name']}")
        out.append('.p2align 8')
        out.append(f".type {k['name']},@function")
        out.append(f"{k['name']}:")
        out.append(k['body'].rstrip('\n'))
    out.append('.section .rodata,"a"')
    seen = set()
    for k in kernels:
        if k['name'] in seen: continue
        seen.add(k['name'])
        out.append(kd(k['name'], k['vgpr'], k['sgpr'], k['accum']).rstrip('\n'))
    return '\n'.join(out) + '\n'
```

```python
import sys, struct, math
sys.path.insert(0, 'gen')
from asmgen import Asm, interleave
from common import *

def f32bits(x):
    return struct.unpack('<I', struct.pack('<f', x))[0]

def vr(b, n=1, p='v'):
    return f'{p}{b}' if n == 1 else f'{p}[{b}:{b+n-1}]'

X_BYTES = 16*48*576*2
WQ_BYTES = 576*4096*2
KV_A = 16*16*48*128*2
KV_B = 16*32*48*128*2
O_BR = 48*128*1024
OUT_BYTES = 16*48*1152*2

def srd(a, d, lo, hi, nrec):
    a(f's_mov_b32 s{d}, s{lo}')
    a(f's_and_b32 s{d+1}, s{hi}, 0xffff')
    if isinstance(nrec, str): a(f's_mov_b32 s{d+2}, {nrec}')
    else: a(f's_mov_b32 s{d+2}, {nrec:#x}')
    a(f's_mov_b32 s{d+3}, 0x20000')

def gen_k1(store_mod='', mapping=0):
    a = Asm()
    a('s_cmp_ge_u32 s2, 256')
    a('s_cbranch_scc1 K1_END')
    a('s_load_dwordx8 s[24:31], s[0:1], 0')
    a('s_load_dwordx8 s[32:39], s[0:1], 40')
    a('s_load_dwordx2 s[40:41], s[0:1], 96')
    a('s_and_b32 s51, s2, 7')
    a('s_lshr_b32 s52, s2, 3')
    if mapping == 0:
        a('s_lshr_b32 s42, s51, 2')
        a('s_and_b32 s53, s51, 3')
        a('s_lshl_b32 s53, s53, 3')
        a('s_lshr_b32 s43, s52, 2')
        a('s_add_u32 s43, s43, s53')
        a('s_and_b32 s44, s52, 3')
    else:
        a('s_lshr_b32 s42, s52, 4')
        a('s_lshl_b32 s53, s51, 2')
        a('s_lshr_b32 s43, s52, 2')
        a('s_and_b32 s43, s43, 3')
        a('s_add_u32 s43, s43, s53')
        a('s_and_b32 s44, s52, 3')
    L, I, G, T0, T1, T2 = 1, 2, 3, 4, 5, 6
    a(f'v_and_b32 v{L}, 63, v0')
    a(f'v_lshrrev_b32 v{T0}, 6, v0')
    a(f'v_and_b32 v{I}, 15, v0')
    a(f'v_readfirstlane_b32 s45, v{T0}')
    a(f'v_lshrrev_b32 v{G}, 4, v{L}')
    a('s_mul_i32 s46, s45, 10240')
    a('s_lshl_b32 s54, s44, 2')
    a('s_add_u32 s54, s54, s45')
    XO = 8; WO = 14; KVO = 18; WQ = 20; XR = 36; KW = 40; VW = 41; KR = 42; VRD = 43; OO = 44
    QA = 48
    F0 = 144
    SP = 232
    a('s_mul_i32 s55, s54, 55296')
    a(f'v_lshrrev_b32 v{T0}, 3, v{L}')
    a(f'v_mul_u32_u24 v{T0}, 1152, v{T0}')
    a(f'v_add_u32 v{T0}, s55, v{T0}')
    a(f'v_and_b32 v{T1}, 7, v{L}')
    a(f'v_xor_b32 v{T1}, v{T1}, v{G}')
    a(f'v_lshlrev_b32 v{T1}, 4, v{T1}')
    a(f'v_xor_b32 v{T2}, 64, v{T1}')
    a(f'v_add_u32 v{T1}, v{T0}, v{T1}')
    a(f'v_add_u32 v{T2}, v{T0}, v{T2}')
    for i in range(6):
        c = i*9216 - (i & 3)*1024
        src = T1 if i % 2 == 0 else T2
        a(f'v_add_u32 v{XO+i}, {c}, v{src}')
    a('s_lshl_b32 s55, s45, 17')
    a('s_lshl_b32 s56, s43, 8')
    a('s_add_u32 s55, s55, s56')
    a(f'v_lshlrev_b32 v{T0}, 13, v{G}')
    a(f'v_add_u32 v{T0}, s55, v{T0}')
    a(f'v_lshlrev_b32 v{T1}, 1, v{G}')
    a(f'v_xor_b32 v{T1}, v{T1}, v{I}')
    a(f'v_lshlrev_b32 v{T1}, 4, v{T1}')
    a(f'v_xor_b32 v{T2}, 128, v{T1}')
    a(f'v_add_u32 v{T1}, v{T0}, v{T1}')
    a(f'v_add_u32 v{T2}, v{T0}, v{T2}')
    for q in range(4):
        c = 4*q*8192 - q*1024
        src = T1 if (q >> 1) == 0 else T2
        a(f'v_add_u32 v{WO+q}, {c}, v{src}')
    a('s_cmp_eq_u32 s42, 0')
    a('s_cselect_b32 s55, 4, 5')
    a('s_lshl_b32 s55, s54, s55')
    a('s_lshr_b32 s56, s43, 1')
    a('s_cmp_eq_u32 s42, 0')
    a('s_cselect_b32 s56, s56, s43')
    a('s_add_u32 s55, s55, s56')
    a('s_mul_i32 s55, s55, 12288')
    a(f'v_lshlrev_b32 v{T0}, 4, v{L}')
    a(f'v_add_u32 v{KVO}, s55, v{T0}')
    a(f's_mul_i32 s55, s42, {O_BR}')
    a(f's_mul_i32 s56, s54, {3*131072}')
    a('s_add_u32 s55, s55, s56')
    a('s_lshl_b32 s56, s43, 12')
    a('s_add_u32 s55, s55, s56')
    a(f'v_add_u32 v{OO}, s55, v{T0}')
    a('s_movk_i32 s49, 4096')
    a('s_movk_i32 s50, 8192')
    a('s_mov_b32 s57, 131072')
    a('s_mov_b32 s58, 262144')
    a('s_waitcnt lgkmcnt(0)')
    a('s_cmp_eq_u32 s42, 0')
    a('s_cselect_b64 s[24:25], s[24:25], s[32:33]')
    a('s_cselect_b64 s[26:27], s[26:27], s[34:35]')
    a('s_cselect_b64 s[28:29], s[28:29], s[36:37]')
    a('s_cselect_b64 s[30:31], s[30:31], s[38:39]')
    a(f's_mov_b32 s59, {KV_B}')
    a(f's_cselect_b32 s59, {KV_A}, s59')
    srd(a, 4, 24, 25, X_BYTES)
    srd(a, 8, 30, 31, WQ_BYTES)
    srd(a, 12, 26, 27, 's59')
    srd(a, 16, 28, 29, 's59')
    srd(a, 20, 40, 41, 2*O_BR)

    def dma_stage(st):
        slot = (st % 4)*40960
        it = []
        it.append(f's_mov_b32 s47, {st*128}')
        it.append(f's_mov_b32 s48, {st*64*8192}')
        it.append(f's_add_u32 m0, s46, {slot}')
        for q in range(4):
            it.append((f'buffer_load_dwordx4 v{WO+q}, s[8:11], s48 offen offset:{q*1024} lds', ('S', st)))
        it.append(f's_add_u32 m0, s46, {slot+4096}')
        for i in range(4):
            it.append((f'buffer_load_dwordx4 v{XO+i}, s[4:7], s47 offen offset:{i*1024} lds', ('S', st)))
        it.append(f's_add_u32 m0, s46, {slot+8192}')
        for i in range(4, 6):
            it.append((f'buffer_load_dwordx4 v{XO+i}, s[4:7], s47 offen offset:{(i&3)*1024} lds', ('S', st)))
        return it
    def kv_load(p):
        s = 12 if p < 12 else 16
        pp = p % 12
        so = ['0', 's49', 's50'][pp >> 2]
        return (f'buffer_load_dwordx4 a[{4*p}:{4*p+3}], v{KVO}, s[{s}:{s+3}], {so} offen offset:{(pp&3)*1024}', ('KV', p))
    def em(items):
        for x in items:
            if isinstance(x, tuple): a(x[0], x[1])
            else: a(x)
    em(dma_stage(0)); em(dma_stage(1))
    em([kv_load(p) for p in range(0, 4)])
    em(dma_stage(2))
    em([kv_load(p) for p in range(4, 8)])
    em(dma_stage(3))
    em([kv_load(p) for p in range(8, 12)])
    kv_next = 12
    a(f'v_lshrrev_b32 v{T0}, 1, v{G}')
    a(f'v_mul_u32_u24 v{T0}, 10240, v{T0}')
    a(f'v_and_b32 v{T1}, 1, v{G}')
    a(f'v_lshlrev_b32 v{T2}, 11, v{T1}')
    a(f'v_add_u32 v{T0}, v{T0}, v{T2}')
    a(f'v_lshrrev_b32 v{T2}, 2, v{I}')
    a(f'v_lshl_add_u32 v{T0}, v{T2}, 8, v{T0}')
    a(f'v_lshl_add_u32 v{T1}, v{T1}, 2, v{T2}')
    a(f'v_and_b32 v{T2}, 3, v{I}')
    a(f'v_lshl_add_u32 v{T0}, v{T2}, 3, v{T0}')
    for t in range(8):
        a(f'v_xor_b32 v{T2}, {t}, v{T1}')
        a(f'v_lshl_add_u32 v{WQ+t}, v{T2}, 5, v{T0}')
        a(f'v_add_u32 v{WQ+8+t}, 81920, v{WQ+t}')
    a(f'v_lshrrev_b32 v{T0}, 1, v{I}')
    a(f'v_xor_b32 v{T0}, v{T0}, v{G}')
    a(f'v_lshlrev_b32 v{T0}, 4, v{T0}')
    a(f'v_lshlrev_b32 v{T1}, 7, v{I}')
    a(f'v_add_u32 v{T1}, s46, v{T1}')
    a(f'v_add_u32 v{T1}, 4096, v{T1}')
    a(f'v_add_u32 v{XR}, v{T1}, v{T0}')
    a(f'v_xor_b32 v{T0}, 64, v{T0}')
    a(f'v_add_u32 v{XR+1}, v{T1}, v{T0}')
    a(f'v_add_u32 v{XR+2}, 81920, v{XR}')
    a(f'v_add_u32 v{XR+3}, 81920, v{XR+1}')
    a(f'v_lshlrev_b32 v{T0}, 4, v{I}')
    a(f'v_add_u32 v{T0}, s46, v{T0}')
    a(f'v_mul_u32_u24 v{T1}, 272, v{G}')
    a(f'v_add_u32 v{T1}, v{T1}, v{T0}')
    a(f'v_add_u32 v{KW}, 40960, v{T1}')
    a(f'v_mul_u32_u24 v{T1}, 288, v{G}')
    a(f'v_add_u32 v{T1}, v{T1}, v{T0}')
    a(f'v_add_u32 v{VW}, 81920, v{T1}')
    a(f'v_mul_u32_u24 v{T0}, 272, v{I}')
    a(f'v_lshl_add_u32 v{T0}, v{G}, 3, v{T0}')
    a(f'v_add_u32 v{T0}, s46, v{T0}')
    a(f'v_add_u32 v{KR}, 40960, v{T0}')
    a(f'v_lshrrev_b32 v{T0}, 2, v{L}')
    a(f'v_mul_u32_u24 v{T0}, 288, v{T0}')
    a(f'v_and_b32 v{T1}, 3, v{I}')
    a(f'v_lshl_add_u32 v{T0}, v{T1}, 3, v{T0}')
    a(f'v_add_u32 v{T0}, s46, v{T0}')
    a(f'v_add_u32 v{VRD}, 81920, v{T0}')

    def FA(s, t): return F0 + s*44 + 12 + t*4
    def FB(s, mt): return F0 + s*44 + mt*4
    def frag_reads(n):
        st, ks = n // 2, n % 2
        slot = st % 4
        hi = slot >> 1
        so = (slot & 1)*40960
        s = n % 2
        it = []
        for mt in range(3):
            it.append(f'ds_read_b128 {vr(FB(s,mt),4)}, v{XR+2*hi+ks} offset:{so+mt*2048}')
        for t in range(8):
            for half in range(2):
                it.append(f'ds_read_b64_tr_b16 {vr(FA(s,t)+2*half,2)}, v{WQ+8*hi+t} offset:{so+ks*20480+half*1024}')
        return it
    def mfmas(n):
        s = n % 2
        it = []
        for t in range(8):
            for mt in range(3):
                d = vr(QA+(t*3+mt)*4, 4)
                c = '0' if n == 0 else d
                it.append(f'v_mfma_f32_16x16x32_bf16 {d}, {vr(FA(s,t),4)}, {vr(FB(s,mt),4)}, {c}')
        return it
    def kv_writes(grp):
        it = []
        if grp == 0: ps = list(range(0, 8))
        elif grp == 1: ps = list(range(8, 16))
        else: ps = list(range(16, 24))
        for p in ps:
            if p < 12:
                tile, pp = p >> 2, p & 3
                off = [0, 4352, 40960][tile] + pp*4*272
                it.append(f'ds_write_b128 v{KW}, a[{4*p}:{4*p+3}] offset:{off}')
            else:
                pv = p - 12
                tile, pp = pv >> 2, pv & 3
                off = [4352, 40960, 40960+4608][tile] + pp*4*288
                it.append(f'ds_write_b128 v{VW}, a[{4*p}:{4*p+3}] offset:{off}')
        return it
    KF = 96; VF32 = 144; VF16 = 176
    def k_reads():
        it = []
        for kt in range(3):
            for s in range(4):
                base = [0, 4352, 40960][kt] + 64*s
                r = KF + (kt*4+s)*4
                it.append(f'ds_read_b64 a[{r}:{r+1}], v{KR} offset:{base}')
                it.append(f'ds_read_b64 a[{r+2}:{r+3}], v{KR} offset:{base+32}')
        return it
    def v_reads():
        it = []
        for t in range(8):
            it.append(f'ds_read_b64_tr_b16 a[{VF32+4*t}:{VF32+4*t+1}], v{VRD} offset:{4352+32*t}')
            it.append(f'ds_read_b64_tr_b16 a[{VF32+4*t+2}:{VF32+4*t+3}], v{VRD} offset:{40960+32*t}')
            it.append(f'ds_read_b64_tr_b16 a[{VF16+2*t}:{VF16+2*t+1}], v{VRD} offset:{40960+4608+32*t}')
        return it

    a.wait_vm(lambda t: t == ('S', 0))
    a('s_barrier')
    em(frag_reads(0))
    for n in range(18):
        st, ks = n // 2, n % 2
        fill = []
        if ks == 0:
            a('s_waitcnt lgkmcnt(0)')
            fill = frag_reads(n+1)
            interleave(a, mfmas(n), fill, ratio=1.5)
        else:
            if st < 8:
                need_kv = {5: 7, 6: 15, 7: 23}.get(st)
                if need_kv is not None:
                    a.wait_vm(lambda t: t == ('S', st+1) or (t[0] == 'KV' and t[1] <= need_kv), 'lgkmcnt(0)')
                else:
                    a.wait_vm(lambda t: t == ('S', st+1), 'lgkmcnt(0)')
                a('s_barrier')
                fill = frag_reads(n+1)
                if st + 4 <= 8:
                    fill += dma_stage(st+4)
                    for _ in range(3):
                        if kv_next < 24:
                            fill.append(kv_load(kv_next)); kv_next += 1
                if st >= 5:
                    fill += kv_writes(st-5)
                interleave(a, mfmas(n), fill, ratio=1.5)
            else:
                a('s_waitcnt lgkmcnt(0)')
                interleave(a, mfmas(n), k_reads(), ratio=1.0)
    assert kv_next == 24
    QB = F0
    SA = F0 + 48
    PB = SP
    TM = SP + 18
    def qb(s, qt): return QB + (qt*4+s)*4
    def cvt_q(qt):
        it = []
        for s in range(4):
            for hh in range(2):
                d = QA + ((2*s+hh)*3+qt)*4
                it.append(f'v_cvt_pk_bf16_f32 v{qb(s,qt)+2*hh}, v{d}, v{d+1}')
                it.append(f'v_cvt_pk_bf16_f32 v{qb(s,qt)+2*hh+1}, v{d+2}, v{d+3}')
        return it
    def sa(kt, qt): return SA + (qt*3+kt)*4
    def s_mfma(qt):
        it = []
        for s in range(4):
            for kt in range(3):
                d = vr(sa(kt,qt), 4)
                c = '0' if s == 0 else d
                r = KF + (kt*4+s)*4
                it.append(f'v_mfma_f32_16x16x32_bf16 {d}, a[{r}:{r+3}], {vr(qb(s,qt),4)}, {c}')
        return it
    cscale = math.log2(math.e) / math.sqrt(128.0)
    a(f's_mov_b32 s60, {f32bits(cscale):#x}')
    def softmax(qt):
        b = sa(0, qt)
        m = TM + 2*qt; t = m + 1
        it = []
        it.append(f'v_max3_f32 v{m}, v{b}, v{b+1}, v{b+2}')
        for j in range(3, 11, 2):
            it.append(f'v_max3_f32 v{m}, v{m}, v{b+j}, v{b+j+1}')
        it.append(f'v_max_f32 v{m}, v{m}, v{b+11}')
        for sw in ('v_permlane32_swap_b32', 'v_permlane16_swap_b32'):
            it.append(f'v_mov_b32 v{t}, v{m}')
            it.append(f'{sw} v{m}, v{t}')
            it.append(f'v_max_f32 v{m}, v{m}, v{t}')
        it.append(f'v_mul_f32 v{m}, s60, v{m}')
        for j in range(12):
            it.append(f'v_fma_f32 v{b+j}, v{b+j}, s60, -v{m}')
        for j in range(12):
            it.append(f'v_exp_f32 v{b+j}, v{b+j}')
        it.append(f'v_add_f32 v{m}, v{b}, v{b+1}')
        it.append(f'v_add_f32 v{t}, v{b+2}, v{b+3}')
        for j in range(4, 12, 2):
            it.append(f'v_add_f32 v{m}, v{m}, v{b+j}')
            it.append(f'v_add_f32 v{t}, v{t}, v{b+j+1}')
        it.append(f'v_add_f32 v{m}, v{m}, v{t}')
        for sw in ('v_permlane32_swap_b32', 'v_permlane16_swap_b32'):
            it.append(f'v_mov_b32 v{t}, v{m}')
            it.append(f'{sw} v{m}, v{t}')
            it.append(f'v_add_f32 v{m}, v{m}, v{t}')
        it.append(f'v_rcp_f32 v{m}, v{m}')
        for j in range(12):
            it.append(f'v_mul_f32 v{b+j}, v{b+j}, v{m}')
        for j in range(6):
            it.append(f'v_cvt_pk_bf16_f32 v{PB+qt*6+j}, v{b+2*j}, v{b+2*j+1}')
        return it
    def oa(t, qt): return QA + (qt*8+t)*4
    def pv_mfma(qt):
        it = []
        p = PB + qt*6
        for t in range(8):
            d = vr(oa(t,qt), 4)
            it.append(f'v_mfma_f32_16x16x32_bf16 {d}, a[{VF32+4*t}:{VF32+4*t+3}], {vr(p,4)}, 0')
        for t in range(8):
            d = vr(oa(t,qt), 4)
            it.append(f'v_mfma_f32_16x16x16_bf16 {d}, a[{VF16+2*t}:{VF16+2*t+1}], {vr(p+4,2)}, {d}')
        return it
    def o_store(qt):
        it = []
        so = ['0', 's57', 's58'][qt]
        for s in range(4):
            r = QB + (qt*4+s)*4
            for hh in range(2):
                d = oa(2*s+hh, qt)
                it.append(f'v_cvt_pk_bf16_f32 v{r+2*hh}, v{d}, v{d+1}')
                it.append(f'v_cvt_pk_bf16_f32 v{r+2*hh+1}, v{d+2}, v{d+3}')
            it.append((f'buffer_store_dwordx4 {vr(r,4)}, v{OO}, s[20:23], {so} offen offset:{s*1024}{store_mod}', ('O', qt)))
        return it
    em(v_reads())
    em(cvt_q(0))
    a('s_waitcnt lgkmcnt(0)')
    interleave(a, s_mfma(0), cvt_q(1), ratio=1.5)
    interleave(a, s_mfma(1), cvt_q(2), ratio=1.5)
    interleave(a, s_mfma(2), softmax(0), ratio=2)
    interleave(a, pv_mfma(0), softmax(1), ratio=2)
    interleave(a, pv_mfma(1), softmax(2), ratio=2)
    interleave(a, pv_mfma(2), o_store(0), ratio=1.5)
    em(o_store(1))
    em(o_store(2))
    a.label('K1_END')
    a('s_endpgm')
    return a

def gen_k2(PD=4, load_mod=''):
    a = Asm()
    NB = PD + 2
    a('s_cmp_ge_u32 s2, 216')
    a('s_cbranch_scc1 K2_END')
    a('s_load_dwordx2 s[24:25], s[0:1], 32')
    a('s_load_dwordx2 s[26:27], s[0:1], 72')
    a('s_load_dwordx2 s[28:29], s[0:1], 80')
    a('s_load_dwordx2 s[30:31], s[0:1], 96')
    a('s_and_b32 s51, s2, 7')
    a('s_lshr_b32 s52, s2, 3')
    a('s_lshr_b32 s42, s51, 2')
    a('s_and_b32 s53, s51, 1')
    a('s_mul_i32 s53, s53, 27')
    a('s_add_u32 s53, s53, s52')
    a('s_mul_i32 s43, s53, 43')
    a('s_lshr_b32 s43, s43, 8')
    assert all((x*43) >> 8 == x // 6 for x in range(54))
    a('s_mul_i32 s54, s43, 6')
    a('s_sub_u32 s44, s53, s54')
    a('s_lshr_b32 s54, s51, 1')
    a('s_and_b32 s54, s54, 1')
    a('s_mul_i32 s54, s54, 6')
    a('s_add_u32 s44, s44, s54')
    L, I, G, T0, T1, T2 = 1, 2, 3, 4, 5, 6
    a(f'v_and_b32 v{L}, 63, v0')
    a(f'v_lshrrev_b32 v{T0}, 6, v0')
    a(f'v_and_b32 v{I}, 15, v0')
    a(f'v_readfirstlane_b32 s45, v{T0}')
    a(f'v_lshrrev_b32 v{G}, 4, v{L}')
    a(f's_mul_i32 s46, s45, {NB*4096}')
    WO = 8; OV = 12; AR = 16
    ACC = 24
    AF = 88
    OF = 120
    assert OF + NB*16 <= 256
    a(f's_mul_i32 s55, s45, {1024*1152}')
    a('s_lshl_b32 s56, s43, 7')
    a('s_add_u32 s55, s55, s56')
    a(f'v_lshrrev_b32 v{T0}, 3, v{L}')
    a(f'v_mul_u32_u24 v{T0}, 1152, v{T0}')
    a(f'v_add_u32 v{T0}, s55, v{T0}')
    a(f'v_and_b32 v{T1}, 7, v{L}')
    a(f'v_lshlrev_b32 v{T2}, 1, v{G}')
    a(f'v_xor_b32 v{T1}, v{T1}, v{T2}')
    a(f'v_lshl_add_u32 v{T0}, v{T1}, 4, v{T0}')
    for p in range(4):
        a(f'v_add_u32 v{WO+p}, {p*8192}, v{T0}')
    a(f's_mul_i32 s55, s42, {O_BR}')
    a('s_lshl_b32 s56, s44, 19')
    a('s_add_u32 s55, s55, s56')
    a('s_lshl_b32 s56, s45, 15')
    a('s_add_u32 s55, s55, s56')
    a(f'v_lshlrev_b32 v{T0}, 4, v{L}')
    a(f'v_add_u32 v{T0}, s55, v{T0}')
    for mt in range(4):
        a(f'v_add_u32 v{OV+mt}, {mt*131072}, v{T0}')
    a('s_waitcnt lgkmcnt(0)')
    a('s_cmp_eq_u32 s42, 0')
    a('s_cselect_b64 s[24:25], s[24:25], s[26:27]')
    srd(a, 4, 24, 25, WQ_BYTES)
    srd(a, 8, 30, 31, 2*O_BR)
    srd(a, 12, 28, 29, OUT_BYTES)
    def loads(n):
        sl = n % NB
        it = []
        it.append(f's_mov_b32 s47, {n*32*1152}')
        it.append(f's_mov_b32 s48, {(n>>2)*4096}')
        it.append(f's_add_u32 m0, s46, {sl*4096}')
        for p in range(4):
            it.append((f'buffer_load_dwordx4 v{WO+p}, s[4:7], s47 offen offset:{p*1024} lds', n))
        for mt in range(4):
            r = OF + sl*16 + mt*4
            it.append((f'buffer_load_dwordx4 {vr(r,4)}, v{OV+mt}, s[8:11], s48 offen offset:{(n&3)*1024}{load_mod}', n))
        return it
    def em(items):
        for x in items:
            if isinstance(x, tuple): a(x[0], x[1])
            else: a(x)
    for n in range(PD+1):
        em(loads(n))
    a(f'v_lshrrev_b32 v{T0}, 2, v{L}')
    a(f'v_lshlrev_b32 v{T1}, 7, v{T0}')
    a(f'v_add_u32 v{T1}, s46, v{T1}')
    a(f'v_and_b32 v{T2}, 3, v{I}')
    a(f'v_lshl_add_u32 v{T1}, v{T2}, 3, v{T1}')
    a(f'v_lshrrev_b32 v{T0}, 1, v{T0}')
    a(f'v_and_b32 v{T0}, 3, v{T0}')
    for t in range(4):
        a(f'v_xor_b32 v{T2}, {t}, v{T0}')
        a(f'v_lshl_add_u32 v{AR+t}, v{T2}, 5, v{T1}')
    def reads(n):
        sl = n % NB
        s = n % 2
        it = []
        for t in range(4):
            for half in range(2):
                r = AF + s*16 + t*4 + 2*half
                it.append(f'ds_read_b64_tr_b16 {vr(r,2)}, v{AR+t} offset:{sl*4096+half*2048}')
        return it
    def mfmas(n):
        sl = n % NB; s = n % 2
        it = []
        for t in range(4):
            for mt in range(4):
                d = vr(ACC+(mt*4+t)*4, 4)
                c = '0' if n == 0 else d
                it.append(f'v_mfma_f32_16x16x32_bf16 {d}, {vr(AF+s*16+t*4,4)}, {vr(OF+sl*16+mt*4,4)}, {c}')
        return it
    a.wait_vm(lambda t: t == 0)
    em(reads(0))
    for n in range(32):
        fill = []
        if n + 1 < 32:
            a.wait_vm(lambda t: t == n+1, 'lgkmcnt(0)')
            fill += reads(n+1)
        else:
            a('s_waitcnt lgkmcnt(0)')
        if n + 1 + PD < 32:
            fill += loads(n+1+PD)
        interleave(a, mfmas(n), fill, ratio=1.5)
    a('s_barrier')
    a('s_lshl_b32 s55, s45, 14')
    a(f'v_lshlrev_b32 v{T0}, 4, v{L}')
    a(f'v_add_u32 v{T0}, s55, v{T0}')
    for tl in range(16):
        a(f'ds_write_b128 v{T0}, {vr(ACC+tl*4,4)} offset:{tl*1024}')
    a('s_lshl_b32 s55, s45, 12')
    a(f'v_and_b32 v{T1}, 7, v{L}')
    a(f'v_lshlrev_b32 v{T1}, 9, v{T1}')
    a(f'v_lshrrev_b32 v{T2}, 3, v{L}')
    a(f'v_lshl_add_u32 v{T1}, v{T2}, 4, v{T1}')
    a(f'v_add_u32 v{T1}, s55, v{T1}')
    a('s_lshl_b32 s55, s44, 6')
    a('s_lshl_b32 s56, s45, 4')
    a('s_add_u32 s55, s55, s56')
    a('s_mul_i32 s55, s55, 2304')
    a('s_mul_i32 s56, s42, 1152')
    a('s_add_u32 s55, s55, s56')
    a('s_lshl_b32 s56, s43, 7')
    a('s_add_u32 s55, s55, s56')
    a(f'v_mul_u32_u24 v{T2}, 2304, v{T2}')
    a(f'v_add_u32 v{T2}, s55, v{T2}')
    a(f'v_and_b32 v{T0}, 7, v{L}')
    a(f'v_lshl_add_u32 v{T2}, v{T0}, 4, v{T2}')
    a(f's_movk_i32 s57, {8*2304}')
    a('s_waitcnt lgkmcnt(0)')
    a('s_barrier')
    R = OF
    for q in range(2):
        for pw in range(4):
            for gg in range(2):
                r = R + ((q*4+pw)*2+gg)*4
                a(f'ds_read_b128 {vr(r,4)}, v{T1} offset:{pw*16384+gg*256+q*128}')
    for q in range(2):
        a(f's_waitcnt lgkmcnt({8 if q == 0 else 0})')
        b = R + q*32
        for j in range(8):
            a(f'v_add_f32 v{b+j}, v{b+j}, v{b+8+j}')
            a(f'v_add_f32 v{b+16+j}, v{b+16+j}, v{b+24+j}')
        for j in range(8):
            a(f'v_add_f32 v{b+j}, v{b+j}, v{b+16+j}')
        for j in range(4):
            a(f'v_cvt_pk_bf16_f32 v{ACC+q*4+j}, v{b+2*j}, v{b+2*j+1}')
        a(f'buffer_store_dwordx4 {vr(ACC+q*4,4)}, v{T2}, s[12:15], {"0" if q == 0 else "s57"} offen')
    a.label('K2_END')
    a('s_endpgm')
    return a, max(NB*4096*4, 65536), OF + NB*16

if __name__ == '__main__':
    out = sys.argv[1]
    k1 = gen_k1()
    k2, lds2, nv2 = gen_k2()
    print('k1 inst', k1.ninst, 'nops', k1.nops_inserted, '| k2 inst', k2.ninst, 'nops', k2.nops_inserted)
    txt = build_file([
        dict(name='attn_kernel', grid=256, block=256, lds=163840, body=k1.text(), vgpr=256+192, sgpr=64, accum=256),
        dict(name='oproj_kernel', grid=216, block=256, lds=lds2, body=k2.text(), vgpr=256, sgpr=64, accum=256),
    ])
    open(out, 'w').write(txt)
```

```python
import sys, struct, math
sys.path.insert(0, 'gen')
from asmgen import Asm, interleave
from common import *

def f32bits(x): return struct.unpack('<I', struct.pack('<f', x))[0]
def vr(b, n=1, p='v'): return f'{p}{b}' if n == 1 else f'{p}[{b}:{b+n-1}]'

X_BYTES = 16*48*576*2
W_BYTES = 576*4096*2
KV_A = 16*16*48*128*2
KV_B = 16*32*48*128*2
OUT_BYTES = 16*48*1152*2
P_BYTES = 16*108*16*1024

SLOT0 = 28672; SLOTSZ = 45056
KREG = 0; KW_SZ = 13056; VREG = 52224; VW_SZ = 13824
WS = [131072, 98304, 65536]

class Stamps:
    def __init__(self, a, on, mode='s_memrealtime'):
        self.a = a; self.on = on; self.n = 0; self.mode = mode
    def __call__(self):
        if not self.on: return
        assert self.n < 19
        r = 64 + 2*self.n
        self.a(f'{self.mode} s[{r}:{r+1}]'); self.n += 1
    def dump(self, wslo, wshi, kidx, nwlog):
        if not self.on: return
        a = self.a
        a('s_waitcnt vmcnt(0) lgkmcnt(0)')
        self()
        a('s_waitcnt lgkmcnt(0)')
        a(f's_mov_b32 s4, s{wslo}'); a(f's_and_b32 s5, s{wshi}, 0xffff'); a('s_mov_b32 s6, 0x10000000'); a('s_mov_b32 s7, 0x20000')
        a(f's_lshl_b32 s8, s2, {nwlog}'); a('s_add_u32 s8, s8, s45'); a('s_lshl_b32 s8, s8, 7')
        a(f's_add_u32 s8, s8, {(32<<20) + kidx*(256<<10)}')
        a('v_mov_b32 v1, 0')
        for i in range(self.n):
            a(f'v_mov_b32 v2, s{64+2*i}')
            a(f'buffer_store_dword v2, v1, s[4:7], s8 offen offset:{4*i}')
        a('s_getreg_b32 s9, hwreg(HW_REG_XCC_ID)')
        a('v_mov_b32 v2, s9')
        a(f'buffer_store_dword v2, v1, s[4:7], s8 offen offset:124')

def srd(a, d, lo, hi, nrec):
    a(f's_mov_b32 s{d}, s{lo}')
    a(f's_and_b32 s{d+1}, s{hi}, 0xffff')
    a(f's_mov_b32 s{d+2}, {nrec if isinstance(nrec, str) else hex(nrec)}')
    a(f's_mov_b32 s{d+3}, 0x20000')

def em(a, items):
    for x in items:
        if callable(x): x()
        elif isinstance(x, tuple): a(x[0], x[1])
        else: a(x)

L, I, G, T0, T1, T2 = 1, 2, 3, 4, 5, 6

def gen_main(o):
    ts = o.get('ts'); tsmode = o.get('tsmode', 's_memrealtime')
    M = lambda k: (' ' + o[k].replace('+', ' ')) if k in o else ''
    rot = int(o.get('rot', 1))
    p = Asm()
    p('s_cmp_ge_u32 s2, 256')
    p('s_cbranch_scc1 M_END')
    if ts: p(f'{tsmode} s[64:65]')
    p('s_load_dwordx8 s[24:31], s[0:1], 0')
    p('s_load_dwordx8 s[32:39], s[0:1], 40')
    p('s_load_dwordx2 s[40:41], s[0:1], 96')
    p('s_load_dwordx2 s[20:21], s[0:1], 32')
    p('s_load_dwordx2 s[22:23], s[0:1], 72')
    p('s_and_b32 s51, s2, 7')
    p('s_lshr_b32 s52, s2, 3')
    p('s_lshr_b32 s42, s51, 2')
    p('s_and_b32 s53, s51, 3')
    p('s_lshl_b32 s53, s53, 2')
    p('s_and_b32 s54, s52, 3')
    p('s_add_u32 s43, s53, s54')
    p('s_lshr_b32 s44, s52, 2')
    p(f'v_and_b32 v{L}, 63, v0')
    p(f'v_lshrrev_b32 v{T0}, 6, v0')
    p(f'v_and_b32 v{I}, 15, v0')
    p(f'v_readfirstlane_b32 s45, v{T0}')
    p(f'v_lshrrev_b32 v{G}, 4, v{L}')
    p('s_and_b32 s46, s45, 3')
    p('s_cmp_ge_u32 s45, 4')
    p('s_cbranch_scc1 HELPER')

    a = Asm()
    st_ = Stamps(a, ts, tsmode); st_.n = 1
    a(f's_setprio {o.get("cprio", 2)}')
    WQ = 8; XR = 24; KR = 28; VRD = 29; OXW = 30; OXR = 31; AR = 32; PO = 36
    QA = 40; F0 = 136; SP = 224
    a('s_lshr_b32 s48, s46, 1')
    a('s_and_b32 s49, s46, 1')
    a('s_lshl_b32 s50, s49, 14')
    a(f's_add_u32 s50, s50, {SLOT0}')
    a(f'v_lshlrev_b32 v{T0}, 11, v{G}')
    a(f'v_add_u32 v{T0}, s50, v{T0}')
    a(f'v_lshrrev_b32 v{T2}, 2, v{I}')
    a(f'v_lshl_add_u32 v{T0}, v{T2}, 8, v{T0}')
    a(f'v_and_b32 v{T1}, 1, v{G}')
    a(f'v_lshl_add_u32 v{T1}, v{T1}, 2, v{T2}')
    a(f'v_and_b32 v{T2}, 3, v{I}')
    a(f'v_lshl_add_u32 v{T0}, v{T2}, 3, v{T0}')
    for t in range(8):
        a(f'v_xor_b32 v{T2}, {t}, v{T1}')
        a(f'v_lshl_add_u32 v{WQ+t}, v{T2}, 5, v{T0}')
        a(f'v_add_u32 v{WQ+8+t}, {2*SLOTSZ}, v{WQ+t}')
    a('s_mul_i32 s50, s48, 6144')
    a(f's_add_u32 s50, s50, {SLOT0+32768}')
    a(f'v_lshrrev_b32 v{T0}, 1, v{I}')
    a(f'v_xor_b32 v{T0}, v{T0}, v{G}')
    a(f'v_lshlrev_b32 v{T0}, 4, v{T0}')
    a(f'v_lshlrev_b32 v{T1}, 7, v{I}')
    a(f'v_add_u32 v{T1}, s50, v{T1}')
    a(f'v_add_u32 v{XR}, v{T1}, v{T0}')
    a(f'v_xor_b32 v{T0}, 64, v{T0}')
    a(f'v_add_u32 v{XR+1}, v{T1}, v{T0}')
    a(f'v_add_u32 v{XR+2}, {2*SLOTSZ}, v{XR}')
    a(f'v_add_u32 v{XR+3}, {2*SLOTSZ}, v{XR+1}')
    a(f's_mul_i32 s50, s46, {KW_SZ}')
    a(f'v_mul_u32_u24 v{T0}, 272, v{I}')
    a(f'v_lshl_add_u32 v{T0}, v{G}, 3, v{T0}')
    a(f'v_add_u32 v{KR}, s50, v{T0}')
    a(f's_mul_i32 s50, s46, {VW_SZ}')
    a(f's_add_u32 s50, s50, {VREG}')
    a(f'v_lshrrev_b32 v{T0}, 2, v{L}')
    a(f'v_mul_u32_u24 v{T0}, 288, v{T0}')
    a(f'v_and_b32 v{T1}, 3, v{I}')
    a(f'v_lshl_add_u32 v{T0}, v{T1}, 3, v{T0}')
    a(f'v_add_u32 v{VRD}, s50, v{T0}')
    a('s_mul_i32 s50, s46, 12288')
    a(f'v_lshlrev_b32 v{T0}, 4, v{L}')
    a(f'v_add_u32 v{OXW}, s50, v{T0}')
    a('s_xor_b32 s50, s46, 1')
    a('s_mul_i32 s50, s50, 12288')
    a(f'v_add_u32 v{OXR}, s50, v{T0}')
    a('s_lshl_b32 s50, s42, 3')
    a('s_add_u32 s50, s50, s44')
    a('s_mul_i32 s50, s50, 108')
    a('s_mul_i32 s51, s46, 3')
    a('s_add_u32 s50, s50, s51')
    a('s_lshl_b32 s50, s50, 4')
    a('s_add_u32 s50, s50, s43')
    a('s_lshl_b32 s50, s50, 10')
    a(f'v_add_u32 v{PO}, s50, v{T0}')
    a(f'v_lshrrev_b32 v{T0}, 2, v{L}')
    a(f'v_lshlrev_b32 v{T1}, 7, v{T0}')
    a(f'v_and_b32 v{T2}, 3, v{I}')
    a(f'v_lshl_add_u32 v{T1}, v{T2}, 3, v{T1}')
    a(f'v_lshrrev_b32 v{T0}, 1, v{T0}')
    a(f'v_and_b32 v{T0}, 3, v{T0}')
    a('s_lshl_b32 s50, s49, 1')
    a(f'v_xor_b32 v{T0}, s50, v{T0}')
    a(f'v_xor_b32 v{T2}, 1, v{T0}')
    a(f'v_lshl_add_u32 v{T0}, v{T0}, 5, v{T1}')
    a(f'v_lshl_add_u32 v{T2}, v{T2}, 5, v{T1}')
    a('s_lshl_b32 s50, s49, 14')
    a(f's_add_u32 s51, s50, {WS[0]}')
    a('s_xor_b32 s50, s50, 16384')
    a(f's_add_u32 s50, s50, {WS[0]}')
    a(f'v_add_u32 v{AR}, s51, v{T0}')
    a(f'v_add_u32 v{AR+1}, s51, v{T2}')
    a(f'v_add_u32 v{AR+2}, s50, v{T0}')
    a(f'v_add_u32 v{AR+3}, s50, v{T2}')
    a('s_waitcnt lgkmcnt(0)')
    srd(a, 4, 40, 41, P_BYTES)
    cscale = math.log2(math.e) / math.sqrt(128.0)
    a(f's_mov_b32 s60, {f32bits(cscale):#x}')
    if rot: a(f's_mul_i32 s55, s44, {12*16384}')
    else: a('s_mov_b32 s55, 0')

    def FA(s, t): return F0 + s*44 + 12 + t*4
    def FB(s, mt): return F0 + s*44 + mt*4
    def frag_reads(n):
        st, ks = n // 2, n % 2
        slot = st % 3
        hi = 1 if slot == 2 else 0
        so = SLOTSZ if slot == 1 else 0
        s = n % 2
        it = []
        for mt in range(3):
            it.append(f'ds_read_b128 {vr(FB(s,mt),4)}, v{XR+2*hi+ks} offset:{so+mt*2048}')
        for t in range(8):
            for half in range(2):
                it.append(f'ds_read_b64_tr_b16 {vr(FA(s,t)+2*half,2)}, v{WQ+8*hi+t} offset:{so+ks*8192+half*1024}')
        return it
    def mfmas(n):
        s = n % 2; it = []
        for t in range(8):
            for mt in range(3):
                d = vr(QA+(t*3+mt)*4, 4)
                c = '0' if n == 0 else d
                it.append(f'v_mfma_f32_16x16x32_bf16 {d}, {vr(FA(s,t),4)}, {vr(FB(s,mt),4)}, {c}')
        return it
    set0 = [F0 + 4*i for i in range(11)]
    set1 = [F0 + 44 + 4*i for i in range(11)]
    KFt = set0 + [SP]
    QBt = set1 + [SP+4]
    PB = SP + 8
    TM = SP + 26
    VF32 = QA; VF16 = QA + 32
    SA = QA + 48
    QX = [QA + 84 + 4*i for i in range(3)]
    def kf(kt, s): return KFt[kt*4+s]
    def k_reads():
        it = []
        for s in range(4):
            for kt in range(3):
                base = kt*4352 + 64*s
                r = kf(kt, s)
                it.append(f'ds_read_b64 {vr(r,2)}, v{KR} offset:{base}')
                it.append(f'ds_read_b64 {vr(r+2,2)}, v{KR} offset:{base+32}')
        return it
    def v_reads():
        it = []
        for t in range(8):
            it.append(f'ds_read_b64_tr_b16 {vr(VF32+4*t,2)}, v{VRD} offset:{32*t}')
            it.append(f'ds_read_b64_tr_b16 {vr(VF32+4*t+2,2)}, v{VRD} offset:{4608+32*t}')
            it.append(f'ds_read_b64_tr_b16 {vr(VF16+2*t,2)}, v{VRD} offset:{9216+32*t}')
        return it
    st_()
    a('s_barrier')
    st_()
    em(a, frag_reads(0))
    for n in range(18):
        st, ks = n // 2, n % 2
        a('s_waitcnt lgkmcnt(0)')
        if ks == 1:
            a('s_barrier')
            if st in (1, 3, 5, 7): st_()
        if n < 17: interleave(a, mfmas(n), frag_reads(n+1), ratio=1.0)
        else: interleave(a, mfmas(n), k_reads(), ratio=1.0)
    st_()
    def qb(s, qt): return QBt[qt*4+s]
    def cvt_q(qt):
        it = []
        for s in range(4):
            for hh in range(2):
                d = QA + ((2*s+hh)*3+qt)*4
                it.append(f'v_cvt_pk_bf16_f32 v{qb(s,qt)+2*hh}, v{d}, v{d+1}')
                it.append(f'v_cvt_pk_bf16_f32 v{qb(s,qt)+2*hh+1}, v{d+2}, v{d+3}')
        return it
    def sa(kt, qt): return SA + (qt*3+kt)*4
    def s_mfma(qt):
        it = []
        for s in range(4):
            for kt in range(3):
                d = vr(sa(kt,qt), 4)
                c = '0' if s == 0 else d
                it.append(f'v_mfma_f32_16x16x32_bf16 {d}, {vr(kf(kt,s),4)}, {vr(qb(s,qt),4)}, {c}')
        return it
    def softmax(qt):
        b = sa(0, qt); m = TM + 2*qt; t = m + 1
        it = []
        it.append(f'v_max3_f32 v{m}, v{b}, v{b+1}, v{b+2}')
        it.append(f'v_max3_f32 v{t}, v{b+3}, v{b+4}, v{b+5}')
        it.append(f'v_max3_f32 v{m}, v{m}, v{b+6}, v{b+7}')
        it.append(f'v_max3_f32 v{t}, v{t}, v{b+8}, v{b+9}')
        it.append(f'v_max3_f32 v{m}, v{m}, v{b+10}, v{b+11}')
        it.append(f'v_max_f32 v{m}, v{m}, v{t}')
        for sw in ('v_permlane32_swap_b32', 'v_permlane16_swap_b32'):
            it.append(f'v_mov_b32 v{t}, v{m}')
            it.append(f'{sw} v{m}, v{t}')
            it.append(f'v_max_f32 v{m}, v{m}, v{t}')
        it.append(f'v_mul_f32 v{m}, s60, v{m}')
        for j in range(12): it.append(f'v_fma_f32 v{b+j}, v{b+j}, s60, -v{m}')
        for j in range(12): it.append(f'v_exp_f32 v{b+j}, v{b+j}')
        it.append(f'v_add_f32 v{m}, v{b}, v{b+1}')
        it.append(f'v_add_f32 v{t}, v{b+2}, v{b+3}')
        for j in range(4, 12, 2):
            it.append(f'v_add_f32 v{m}, v{m}, v{b+j}')
            it.append(f'v_add_f32 v{t}, v{t}, v{b+j+1}')
        it.append(f'v_add_f32 v{m}, v{m}, v{t}')
        for sw in ('v_permlane32_swap_b32', 'v_permlane16_swap_b32'):
            it.append(f'v_mov_b32 v{t}, v{m}')
            it.append(f'{sw} v{m}, v{t}')
            it.append(f'v_add_f32 v{m}, v{m}, v{t}')
        it.append(f'v_rcp_f32 v{m}, v{m}')
        for j in range(12): it.append(f'v_mul_f32 v{b+j}, v{b+j}, v{m}')
        for j in range(6): it.append(f'v_cvt_pk_bf16_f32 v{PB+qt*6+j}, v{b+2*j}, v{b+2*j+1}')
        return it
    X0 = KFt[:8]
    X1 = KFt[8:12] + [sa(0,0), sa(1,0), sa(2,0)] + QX[:1]
    def oa(t, qt): return (X0, X1, X0)[qt][t]
    def pv_mfma(qt):
        it = []; pp = PB + qt*6
        for t in range(8):
            d = vr(oa(t,qt), 4)
            it.append(f'v_mfma_f32_16x16x32_bf16 {d}, {vr(VF32+4*t,4)}, {vr(pp,4)}, 0')
        for t in range(8):
            d = vr(oa(t,qt), 4)
            it.append(f'v_mfma_f32_16x16x16_bf16 {d}, {vr(VF16+2*t,2)}, {vr(pp+4,2)}, {d}')
        return it
    def o_pack(qt):
        it = []
        for s in range(4):
            r = qb(s, qt)
            for hh in range(2):
                d = oa(2*s+hh, qt)
                it.append(f'v_cvt_pk_bf16_f32 v{r+2*hh}, v{d}, v{d+1}')
                it.append(f'v_cvt_pk_bf16_f32 v{r+2*hh+1}, v{d+2}, v{d+3}')
            it.append(f'ds_write_b128 v{OXW}, {vr(r,4)} offset:{(qt*4+s)*1024}')
        return it
    em(a, cvt_q(0)); em(a, cvt_q(1)); em(a, cvt_q(2))
    a('s_waitcnt lgkmcnt(0)')
    interleave(a, s_mfma(0), v_reads()[:12], ratio=1.0)
    interleave(a, s_mfma(1), v_reads()[12:], ratio=1.0)
    sm0 = softmax(0)
    interleave(a, s_mfma(2), sm0[:24], ratio=2)
    a('s_waitcnt lgkmcnt(0)')
    a('s_barrier')
    em(a, sm0[24:])
    interleave(a, pv_mfma(0), softmax(1), ratio=2)
    interleave(a, pv_mfma(1), o_pack(0) + softmax(2), ratio=2)
    interleave(a, pv_mfma(2), o_pack(1), ratio=1.5)
    em(a, o_pack(2))
    a('s_waitcnt lgkmcnt(0)')
    st_()
    a('s_barrier')
    st_()
    ROTH = QA
    def bf(k, mt):
        return qb(k, mt) if k < 4 else ROTH + (mt*4 + (k-4))*4
    ACC = [QA + 48, QA + 72]
    AFR = F0
    PK = [SP + 8, SP + 20]
    NK = 72
    def a_reads(n):
        r, k = n // 8, n % 8
        base = AR if k < 4 else AR + 2
        it = []
        for tt in range(2):
            for half in range(2):
                d = AFR + (n % 4)*8 + tt*4 + 2*half
                it.append(f'ds_read_b64_tr_b16 {vr(d,2)}, v{base+tt} offset:{(k&3)*4096+half*2048}')
        return it
    def addr_step(r):
        dlt = WS[(r+1) % 3] - WS[r % 3]
        return [f'v_add_u32 v{AR+j}, {dlt & 0xffffffff:#x}, v{AR+j}' for j in range(4)]
    def o_mfmas(n):
        r, k = n // 8, n % 8
        it = []
        for tt in range(2):
            for mt in range(3):
                d = vr(ACC[r % 2] + (mt*2+tt)*4, 4)
                c = '0' if k == 0 else d
                it.append(f'v_mfma_f32_16x16x32_bf16 {d}, {vr(AFR+(n%4)*8+tt*4,4)}, {vr(bf(k,mt),4)}, {c}')
        return it
    def p_store(r):
        it = []
        for mt in range(3):
            d = ACC[r % 2] + mt*8
            q = PK[r % 2] + mt*4
            for j in range(4):
                it.append(f'v_cvt_pk_bf16_f32 v{q+j}, v{d+2*j}, v{d+2*j+1}')
            it.append(f's_add_u32 s56, s55, {mt*16384}')
            if not o.get('nostore'): it.append((f'buffer_store_dwordx4 {vr(q,4)}, v{PO}, s[4:7], s56 offen{M("st")}', ('P', r)))
        it.append(f's_add_u32 s55, s55, {12*16384}')
        it.append(f's_cmp_ge_u32 s55, {9*12*16384}')
        it.append(f's_cselect_b32 s56, {9*12*16384}, 0')
        it.append('s_sub_u32 s55, s55, s56')
        return it
    em(a, a_reads(0)); em(a, a_reads(1))
    for mt in range(3):
        for s in range(4):
            a(f'ds_read_b128 {vr(ROTH+(mt*4+s)*4,4)}, v{OXR} offset:{(mt*4+s)*1024}')
    em(a, a_reads(2))
    pend = []
    for n in range(NK):
        r, k = n // 8, n % 8
        if k == 0: a.comment(f'--- round {r}')
        if n == 0: a('s_waitcnt lgkmcnt(15)')
        elif n == 1: a('s_waitcnt lgkmcnt(15)')
        elif n == 2: a('s_waitcnt lgkmcnt(8)')
        elif n + 2 < NK: a('s_waitcnt lgkmcnt(8)')
        elif n + 1 < NK: a('s_waitcnt lgkmcnt(4)')
        else: a('s_waitcnt lgkmcnt(0)')
        fill = []
        m3 = n + 3
        if m3 < NK:
            if m3 % 8 == 0:
                a('s_waitcnt lgkmcnt(0)')
                a('s_barrier')
                if r in (1, 4): st_()
                em(a, addr_step(r))
            fill += a_reads(m3)
        if k == 1 and r > 0: pend = p_store(r-1)
        take = pend[:5]; pend = pend[5:]
        fill += take
        interleave(a, o_mfmas(n), fill, ratio=1.5)
    assert not pend
    em(a, p_store(8))
    st_()
    st_.dump(40, 41, 0, 3)
    a('s_endpgm')

    h = Asm()
    sh = Stamps(h, ts, tsmode); sh.n = 1
    h.label('HELPER')
    h(f's_setprio {o.get("hprio", 0)}')
    WO = 8; XO = 12; KVO = 15; KW = 16; VW = 17; OW = 18; KV = 32
    if rot:
        h('s_lshl_b32 s47, s54, 1')
        h('s_add_u32 s47, s47, s44')
        h('s_cmp_ge_u32 s47, 9')
        h('s_cselect_b32 s48, 9, 0')
        h('s_sub_u32 s47, s47, s48')
    else:
        h('s_mov_b32 s47, 0')
    h('s_and_b32 s48, s46, 1')
    h('s_lshl_b32 s48, s48, 18')
    h('s_lshl_b32 s49, s43, 1')
    h('s_lshr_b32 s50, s46, 1')
    h('s_add_u32 s49, s49, s50')
    h('s_lshl_b32 s49, s49, 8')
    h('s_add_u32 s48, s48, s49')
    h(f'v_lshlrev_b32 v{T0}, 13, v{G}')
    h(f'v_add_u32 v{T0}, s48, v{T0}')
    h(f'v_lshlrev_b32 v{T1}, 1, v{G}')
    h(f'v_xor_b32 v{T1}, v{T1}, v{I}')
    h(f'v_lshlrev_b32 v{T1}, 4, v{T1}')
    h(f'v_xor_b32 v{T2}, 128, v{T1}')
    h(f'v_add_u32 v{T1}, v{T0}, v{T1}')
    h(f'v_add_u32 v{T2}, v{T0}, v{T2}')
    for q in range(4):
        h(f'v_add_u32 v{WO+q}, {4*q*8192 - q*1024}, v{T1 if (q >> 1) == 0 else T2}')
    h('s_mul_i32 s48, s44, 96')
    h('s_mul_i32 s49, s46, 24')
    h('s_add_u32 s48, s48, s49')
    h('s_mul_i32 s48, s48, 1152')
    h(f'v_lshrrev_b32 v{T0}, 3, v{L}')
    h(f'v_mul_u32_u24 v{T0}, 1152, v{T0}')
    h(f'v_add_u32 v7, s48, v{T0}')
    h(f'v_and_b32 v{T1}, 7, v{L}')
    h(f'v_xor_b32 v{T1}, v{T1}, v{G}')
    h('s_and_b32 s49, s46, 1')
    h('s_lshl_b32 s49, s49, 2')
    h(f'v_xor_b32 v{T1}, s49, v{T1}')
    h(f'v_lshlrev_b32 v{T1}, 4, v{T1}')
    h(f'v_xor_b32 v{T2}, 64, v{T1}')
    h(f'v_add_u32 v{T1}, v7, v{T1}')
    h(f'v_add_u32 v{T2}, v7, v{T2}')
    for pp in range(3):
        h(f'v_add_u32 v{XO+pp}, {pp*9216 - pp*1024}, v{T1 if pp % 2 == 0 else T2}')
    h('s_lshl_b32 s57, s46, 13')
    h('s_mul_i32 s58, s46, 3072')
    h('s_waitcnt lgkmcnt(0)')
    h('s_cmp_eq_u32 s42, 0')
    h('s_cselect_b64 s[24:25], s[24:25], s[32:33]')
    h('s_cselect_b64 s[26:27], s[26:27], s[34:35]')
    h('s_cselect_b64 s[28:29], s[28:29], s[36:37]')
    h('s_cselect_b64 s[30:31], s[30:31], s[38:39]')
    h('s_cselect_b64 s[32:33], s[20:21], s[22:23]')
    h(f's_mov_b32 s59, {KV_B}')
    h(f's_cselect_b32 s59, {KV_A}, s59')
    srd(h, 4, 24, 25, X_BYTES)
    srd(h, 8, 30, 31, W_BYTES)
    sh()
    def dma_stage(tau):
        slot = SLOT0 + (tau % 3)*SLOTSZ
        it = []
        it.append('s_lshl_b32 s48, s47, 7')
        it.append('s_lshl_b32 s49, s47, 19')
        it.append(f's_add_u32 s50, s49, {16*8192}')
        it.append(f's_add_u32 m0, s58, {slot+32768}')
        for pp in range(3):
            it.append((f'buffer_load_dwordx4 v{XO+pp}, s[4:7], s48 offen offset:{pp*1024}{M("x")} lds', ('S', tau)))
        it.append(f's_add_u32 m0, s57, {slot}')
        for q in range(4):
            it.append((f'buffer_load_dwordx4 v{WO+q}, s[8:11], s49 offen offset:{q*1024}{M("wq")} lds', ('S', tau)))
        it.append(f's_add_u32 m0, s57, {slot+4096}')
        for q in range(4):
            it.append((f'buffer_load_dwordx4 v{WO+q}, s[8:11], s50 offen offset:{q*1024}{M("wq")} lds', ('S', tau)))
        it.append('s_add_u32 s47, s47, 1')
        it.append('s_cmp_eq_u32 s47, 9')
        it.append('s_cselect_b32 s47, 0, s47')
        return it
    em(h, dma_stage(0))
    srd(h, 12, 26, 27, 's59')
    srd(h, 16, 28, 29, 's59')
    srd(h, 20, 32, 33, W_BYTES)
    h('s_lshl_b32 s51, s44, 1')
    h('s_lshr_b32 s52, s46, 1')
    h('s_add_u32 s51, s51, s52')
    h('s_lshl_b32 s52, s43, 1')
    h('s_and_b32 s53, s46, 1')
    h('s_add_u32 s52, s52, s53')
    h('s_cmp_eq_u32 s42, 0')
    h('s_cselect_b32 s53, 4, 5')
    h('s_cselect_b32 s52, s43, s52')
    h('s_lshl_b32 s51, s51, s53')
    h('s_add_u32 s51, s51, s52')
    h('s_mul_i32 s51, s51, 12288')
    h(f'v_lshlrev_b32 v{T1}, 4, v{L}')
    h(f'v_add_u32 v{KVO}, s51, v{T1}')
    h('s_movk_i32 s61, 4096')
    h('s_movk_i32 s62, 8192')
    def kv_load(pc):
        s = 12 if pc < 12 else 16
        pp = pc % 12
        so = ['0', 's61', 's62'][pp >> 2]
        return (f'buffer_load_dwordx4 {vr(KV+4*pc,4)}, v{KVO}, s[{s}:{s+3}], {so} offen offset:{(pp&3)*1024}{M("kv")}', ('KV', pc))
    h(f'v_lshlrev_b32 v{T1}, 4, v{I}')
    h(f's_mul_i32 s51, s46, {KW_SZ}')
    h(f'v_mul_u32_u24 v{T2}, 272, v{G}')
    h(f'v_add3_u32 v{KW}, v{T1}, v{T2}, s51')
    h(f's_mul_i32 s51, s46, {VW_SZ}')
    h(f's_add_u32 s51, s51, {VREG}')
    h(f'v_mul_u32_u24 v{T2}, 288, v{G}')
    h(f'v_add3_u32 v{VW}, v{T1}, v{T2}, s51')
    h('s_lshl_b32 s51, s43, 8')
    h('s_lshl_b32 s52, s46, 6')
    h('s_add_u32 s51, s51, s52')
    h('s_mul_i32 s51, s51, 1152')
    h(f'v_add_u32 v{T0}, s51, v{T0}')
    h(f'v_and_b32 v{T1}, 7, v{L}')
    h(f'v_lshlrev_b32 v{T2}, 1, v{G}')
    h(f'v_xor_b32 v{T1}, v{T1}, v{T2}')
    h(f'v_lshl_add_u32 v{T0}, v{T1}, 4, v{T0}')
    for q in range(4):
        h(f'v_add_u32 v{OW+q}, {q*8192}, v{T0}')
    if rot: h('s_mov_b32 s63, s44')
    else: h('s_mov_b32 s63, 0')
    def wo_round(r):
        slot = WS[r % 3]
        it = []
        it.append('s_lshl_b32 s48, s63, 7')
        it.append(f's_add_u32 s49, s48, {32*1152}')
        it.append(f's_add_u32 m0, s57, {slot}')
        for q in range(4):
            it.append((f'buffer_load_dwordx4 v{OW+q}, s[20:23], s48 offen offset:{q*1024}{M("wo")} lds', ('W', r)))
        it.append(f's_add_u32 m0, s57, {slot+4096}')
        for q in range(4):
            it.append((f'buffer_load_dwordx4 v{OW+q}, s[20:23], s49 offen offset:{q*1024}{M("wo")} lds', ('W', r)))
        it.append('s_add_u32 s63, s63, 1')
        it.append('s_cmp_eq_u32 s63, 9')
        it.append('s_cselect_b32 s63, 0, s63')
        return it
    def kv_writes(which):
        it = []
        for pp in range(12):
            tile, q = pp >> 2, pp & 3
            if which == 0: it.append(f'ds_write_b128 v{KW}, {vr(KV+4*pp,4)} offset:{tile*4352+q*4*272}')
            else: it.append(f'ds_write_b128 v{VW}, {vr(KV+48+4*pp,4)} offset:{tile*4608+q*4*288}')
        return it
    kvs = [int(c) for c in o.get('kvs', '0,6,6,6,6,0,0,0,0').split(',')]
    assert sum(kvs) == 24
    kvn = 0
    def kv_some(tau):
        nonlocal kvn
        for _ in range(kvs[tau]):
            em(h, [kv_load(kvn)]); kvn += 1
    kv_some(0)
    pre = int(o.get('pre', 3))
    for tau in range(1, pre):
        em(h, dma_stage(tau)); kv_some(tau)
    sh()
    h.wait_vm(lambda t: t == ('S', 0))
    h('s_barrier')
    for tau in range(pre, 3):
        em(h, dma_stage(tau)); kv_some(tau)
    for st in range(9):
        if st < 8: h.wait_vm(lambda t: t == ('S', st+1), 'lgkmcnt(0)')
        else: h('s_waitcnt lgkmcnt(0)')
        h('s_barrier')
        if (st in (1, 3, 5, 7) and not o.get('fine')) or (o.get('fine') and st >= 5): sh()
        if st + 3 <= 8:
            em(h, dma_stage(st+3)); kv_some(st+3)
        if st == 6:
            h.wait_vm(lambda t: t[0] == 'KV' and t[1] < 12)
            em(h, kv_writes(0))
            if o.get('fine'):
                sh(); h('s_waitcnt lgkmcnt(0)'); sh()
        if st == 7:
            h.wait_vm(lambda t: t[0] == 'KV')
            em(h, kv_writes(1))
            if o.get('fine'):
                sh(); h('s_waitcnt lgkmcnt(0)'); sh()
        if st == 8:
            em(h, wo_round(0))
    sh()
    h('s_barrier')
    em(h, wo_round(1)); em(h, wo_round(2))
    h.wait_vm(lambda t: t == ('W', 0))
    sh()
    h('s_barrier')
    sh()
    for r in range(8):
        h.wait_vm(lambda t: t == ('W', r+1))
        h('s_barrier')
        if r in (1, 4): sh()
        if r + 3 <= 8: em(h, wo_round(r+3))
    sh()
    sh.dump(40, 41, 0, 3)
    h.label('M_END')
    h('s_endpgm')
    print('main: compute inst', a.ninst, 'nops', a.nops_inserted, 'helper', h.ninst, 'stamps', st_.n, sh.n)
    return p.text() + a.text() + h.text()

def gen_reduce(o):
    M = lambda k: (' ' + o[k].replace('+', ' ')) if k in o else ''
    ts = o.get('ts'); tsmode = o.get('tsmode', 's_memrealtime')
    a = Asm()
    st_ = Stamps(a, ts, tsmode)
    a('s_cmp_ge_u32 s2, 432')
    a('s_cbranch_scc1 R_END')
    st_()
    a('s_load_dwordx2 s[28:29], s[0:1], 80')
    a('s_load_dwordx2 s[30:31], s[0:1], 96')
    a(f'v_and_b32 v{L}, 63, v0')
    a(f'v_lshrrev_b32 v{T0}, 6, v0')
    a(f'v_and_b32 v{I}, 15, v0')
    a(f'v_readfirstlane_b32 s45, v{T0}')
    a(f'v_lshrrev_b32 v{G}, 4, v{L}')
    a('s_lshl_b32 s46, s2, 2')
    a('s_add_u32 s46, s46, s45')
    a('s_lshl_b32 s47, s46, 14')
    a(f'v_lshlrev_b32 v{T0}, 4, v{L}')
    a(f'v_add_u32 v{T0}, s47, v{T0}')
    a('s_movk_i32 s50, 4096'); a('s_movk_i32 s51, 8192'); a('s_movk_i32 s52, 12288')
    a('s_waitcnt lgkmcnt(0)')
    srd(a, 4, 30, 31, P_BYTES)
    srd(a, 8, 28, 29, OUT_BYTES)
    D = 16
    for hp in range(16):
        so = ['0', 's50', 's51', 's52'][hp >> 2]
        a(f'buffer_load_dwordx4 {vr(D+4*hp,4)}, v{T0}, s[4:7], {so} offen offset:{(hp&3)*1024}{M("pl")}', hp)
    a(f's_mul_hi_u32 s48, s46, {(1<<32)//108 + 1}')
    assert all((x*((1<<32)//108+1)) >> 32 == x//108 for x in range(1728))
    a('s_mul_i32 s49, s48, 108')
    a('s_sub_u32 s49, s46, s49')
    a('s_mul_i32 s53, s49, 171')
    a('s_lshr_b32 s53, s53, 11')
    assert all((x*171) >> 11 == x//12 for x in range(108))
    a('s_mul_i32 s54, s53, 12')
    a('s_sub_u32 s54, s49, s54')
    a('s_mul_i32 s55, s54, 43')
    a('s_lshr_b32 s55, s55, 7')
    assert all((x*43) >> 7 == x//3 for x in range(12))
    a('s_mul_i32 s56, s55, 3')
    a('s_sub_u32 s56, s54, s56')
    a('s_and_b32 s57, s48, 7')
    a('s_mul_i32 s57, s57, 96')
    a('s_lshr_b32 s58, s55, 1')
    a('s_mul_i32 s58, s58, 48')
    a('s_add_u32 s57, s57, s58')
    a('s_lshl_b32 s58, s56, 4')
    a('s_add_u32 s57, s57, s58')
    a('s_mul_i32 s57, s57, 2304')
    a('s_lshr_b32 s58, s48, 3')
    a('s_mul_i32 s58, s58, 1152')
    a('s_add_u32 s57, s57, s58')
    a('s_lshl_b32 s58, s53, 7')
    a('s_add_u32 s57, s57, s58')
    a('s_and_b32 s58, s55, 1')
    a('s_lshl_b32 s58, s58, 6')
    a('s_add_u32 s57, s57, s58')
    a(f'v_mul_u32_u24 v{T1}, 2304, v{I}')
    a(f'v_lshl_add_u32 v{T1}, v{G}, 3, v{T1}')
    a(f'v_add_u32 v{T1}, s57, v{T1}')
    a('s_mov_b32 s59, 0xffff0000')
    ACC = 8
    for hp in range(16):
        a.wait_vm(lambda t: t == hp)
        for j in range(4):
            r = D + 4*hp + j
            if hp == 0:
                a(f'v_lshlrev_b32 v{ACC+2*j}, 16, v{r}')
                a(f'v_and_b32 v{ACC+2*j+1}, s59, v{r}')
            else:
                a(f'v_lshlrev_b32 v{T2}, 16, v{r}')
                a(f'v_and_b32 v{r}, s59, v{r}')
                a(f'v_add_f32 v{ACC+2*j}, v{ACC+2*j}, v{T2}')
                a(f'v_add_f32 v{ACC+2*j+1}, v{ACC+2*j+1}, v{r}')
    for j in range(4):
        a(f'v_cvt_pk_bf16_f32 v{D+j}, v{ACC+2*j}, v{ACC+2*j+1}')
    a(f'buffer_store_dwordx2 {vr(D,2)}, v{T1}, s[8:11], 0 offen{M("out")}')
    a(f'buffer_store_dwordx2 {vr(D+2,2)}, v{T1}, s[8:11], 0 offen offset:32{M("out")}')
    st_.dump(30, 31, 1, 2)
    a.label('R_END')
    a('s_endpgm')
    return a.text()

if __name__ == '__main__':
    out = sys.argv[1]
    o = dict(x.split('=') if '=' in x else (x, 1) for x in sys.argv[2:])
    txt = build_file([
        dict(name='main_kernel', grid=256, block=512, lds=163840, body=gen_main(o), vgpr=256, sgpr=102, accum=256),
        dict(name='reduce_kernel', grid=432, block=256, lds=0, body=gen_reduce(o), vgpr=80, sgpr=102, accum=80),
    ])
    open(out, 'w').write(txt)
```

```python
import sys, struct, math
sys.path.insert(0, 'gen')
from asmgen import Asm, interleave
from common import *
from v2 import Stamps, srd, em, f32bits, vr

X_BYTES = 16*48*576*2
W_BYTES = 576*4096*2
KV_A = 16*16*48*128*2
KV_B = 16*32*48*128*2
OUT_BYTES = 16*48*1152*2
NBLK = 56
P_BYTES = 32*NBLK*8*1024
FOFF = P_BYTES
NP = 3
WS_BYTES = FOFF + 32*NP*4*128
OOB = 0x7ffffff0

KREG = 0; XREG = 49152; QS = [65536, 98304, 131072]; VREG = 65536
HS = [131072, 98304, 65536, 32768, 0]
L, I, G, T0, T1, T2 = 1, 2, 3, 4, 5, 6
CO = ' sc0 sc1'

def lane_ids(a):
    a(f'v_and_b32 v{L}, 63, v0')
    a(f'v_and_b32 v{I}, 15, v0')
    a(f'v_lshrrev_b32 v{G}, 4, v{L}')

def mod9(a, d, t):
    a(f's_cmp_ge_u32 s{d}, 9')
    a(f's_cselect_b32 s{t}, 9, 0')
    a(f's_sub_u32 s{d}, s{d}, s{t}')

def poll(a, lbl, load, expect):
    a('s_mov_b32 s59, 0')
    a.label(f'{lbl}_POLL')
    a(load)
    a('s_waitcnt vmcnt(0)'); a.vm = []
    a(f'v_cmp_ne_u32 vcc, {expect}, v{T2}')
    a('s_add_u32 s59, s59, 1')
    a('s_nop 0')
    a(f's_cbranch_vccz {lbl}_GO')
    a('s_sleep 1')
    a('s_cmp_lt_u32 s59, 0x40000')
    a(f's_cbranch_scc1 {lbl}_POLL')
    a.label(f'{lbl}_GO')

def wait_counter(a, lbl, srd_dbg):
    a('s_lshl_b32 s51, s42, 4')
    a('s_add_u32 s51, s51, s44')
    a('s_lshl_b32 s51, s51, 3')
    a(f'v_mov_b32 v{T0}, 0')
    poll(a, lbl, f'buffer_load_dword v{T2}, v{T0}, s[{srd_dbg}:{srd_dbg+3}], s51 offen{CO}', 8)

def reduce_block(a, lbl, phase, blk0, sidx, srd_ws, srd_out, o, st=None):
    M = lambda k: (' ' + o[k].replace('+', ' ')) if k in o else ''
    a(f's_add_u32 s47, s{sidx}, {blk0}')
    a('s_mul_i32 s48, s47, 171')
    a('s_lshr_b32 s48, s48, 11')
    a('s_mul_i32 s49, s48, 12')
    a('s_sub_u32 s49, s47, s49')
    a('s_mul_i32 s50, s49, 43')
    a('s_lshr_b32 s50, s50, 7')
    a('s_mul_i32 s51, s50, 3')
    a('s_sub_u32 s51, s49, s51')
    a('s_lshr_b32 s56, s49, 1')
    a('s_and_b32 s57, s49, 1')
    a('s_lshl_b32 s57, s57, 1')
    a('s_cmp_eq_u32 s48, 4')
    a('s_cselect_b32 s50, s56, s50')
    a('s_cselect_b32 s51, s57, s51')
    a('s_cselect_b32 s56, 1, 0')
    a('s_cselect_b32 s57, 0, 1')
    a('s_add_u32 s56, s56, s51')
    a('s_lshl_b32 s48, s48, 1')
    a('s_add_u32 s48, s48, s62')
    a('s_add_u32 s57, s57, s48')
    mod9(a, 48, 58); mod9(a, 57, 58)
    a('s_mul_i32 s58, s44, 110592')
    a('s_mul_i32 s59, s42, 1152')
    a('s_add_u32 s58, s58, s59')
    a('s_lshl_b32 s59, s50, 5')
    a('s_add_u32 s58, s58, s59')
    a(f'v_mul_u32_u24 v7, 2304, v{I}')
    a(f'v_lshl_add_u32 v7, v{G}, 3, v7')
    a(f'v_add_u32 v7, s58, v7')
    a('s_mul_i32 s51, s51, 36864')
    a('s_lshl_b32 s48, s48, 7')
    a('s_add_u32 s48, s48, s51')
    a('s_cmp_eq_u32 s56, 3')
    a('s_mul_i32 s56, s56, 36864')
    a(f's_cselect_b32 s56, {OOB:#x}, s56')
    a('s_lshl_b32 s57, s57, 7')
    a('s_add_u32 s57, s57, s56')
    a('s_lshl_b32 s51, s42, 4')
    a('s_add_u32 s51, s51, s44')
    a(f's_mul_i32 s56, s51, {NP*4}')
    a('s_add_u32 s56, s56, s50')
    a('s_lshl_b32 s56, s56, 7')
    a(f's_add_u32 s56, s56, {FOFF + phase*512}')
    a(f'v_and_b32 v{T0}, 7, v{L}')
    a(f'v_lshlrev_b32 v{T0}, 2, v{T0}')
    a(f's_mul_i32 s51, s51, {NBLK}')
    a('s_add_u32 s51, s51, s47')
    a('s_lshl_b32 s51, s51, 13')
    a(f'v_lshlrev_b32 v{T1}, 4, v{L}')
    a(f'v_add_u32 v{T1}, s51, v{T1}')
    poll(a, lbl, f'buffer_load_dword v{T2}, v{T0}, s[{srd_ws}:{srd_ws+3}], s56 offen{CO}', 1)
    if st: st()
    a('s_movk_i32 s47, 4096')
    D = 16; ACC = 8
    for hq in range(8):
        so = ['0', 's47'][hq >> 2]
        a(f'buffer_load_dwordx4 {vr(D+4*hq,4)}, v{T1}, s[{srd_ws}:{srd_ws+3}], {so} offen offset:{(hq&3)*1024}{CO}', ('R', hq))
    a('s_mov_b32 s59, 0xffff0000')
    for hq in range(8):
        a.wait_vm(lambda t: t == ('R', hq))
        for j in range(4):
            r = D + 4*hq + j
            if hq == 0:
                a(f'v_lshlrev_b32 v{ACC+2*j}, 16, v{r}')
                a(f'v_and_b32 v{ACC+2*j+1}, s59, v{r}')
            else:
                a(f'v_lshlrev_b32 v{T2}, 16, v{r}')
                a(f'v_and_b32 v{r}, s59, v{r}')
                a(f'v_add_f32 v{ACC+2*j}, v{ACC+2*j}, v{T2}')
                a(f'v_add_f32 v{ACC+2*j+1}, v{ACC+2*j+1}, v{r}')
    for j in range(4):
        a(f'v_cvt_pk_bf16_f32 v{D+j}, v{ACC+2*j}, v{ACC+2*j+1}')
    a(f'buffer_store_dwordx2 {vr(D,2)}, v7, s[{srd_out}:{srd_out+3}], s48 offen{M("out")}')
    a(f'buffer_store_dwordx2 {vr(D+2,2)}, v7, s[{srd_out}:{srd_out+3}], s57 offen{M("out")}')

def gen_main(o):
    ts = o.get('ts'); tsmode = o.get('tsmode', 's_memrealtime')
    M = lambda k: (' ' + o[k].replace('+', ' ')) if k in o else ''
    p = Asm()
    p('s_cmp_ge_u32 s2, 256')
    p('s_cbranch_scc1 M_END')
    if ts: p(f'{tsmode} s[64:65]')
    p('s_load_dwordx8 s[24:31], s[0:1], 0')
    p('s_load_dwordx8 s[32:39], s[0:1], 40')
    p('s_load_dwordx2 s[40:41], s[0:1], 96')
    p('s_load_dwordx2 s[20:21], s[0:1], 32')
    p('s_load_dwordx2 s[22:23], s[0:1], 72')
    p('s_load_dwordx4 s[52:55], s[0:1], 80')
    p('s_and_b32 s47, s2, 7')
    p('s_lshr_b32 s48, s2, 3')
    p('s_lshr_b32 s42, s47, 2')
    p('s_and_b32 s49, s47, 3')
    p('s_lshl_b32 s49, s49, 1')
    p('s_and_b32 s3, s48, 1')
    p('s_add_u32 s43, s49, s3')
    p('s_lshr_b32 s44, s48, 1')
    p('s_cmp_ge_u32 s44, 9')
    p('s_cselect_b32 s63, 1, 0')
    p('s_cselect_b32 s49, 9, 0')
    p('s_sub_u32 s62, s44, s49')
    p(f'v_lshrrev_b32 v{T0}, 6, v0')
    lane_ids(p)
    p(f'v_readfirstlane_b32 s45, v{T0}')
    p('s_and_b32 s46, s45, 3')
    p('s_cmp_ge_u32 s45, 4')
    p('s_cbranch_scc1 HELPER')

    a = Asm()
    st_ = Stamps(a, ts, tsmode); st_.n = 1
    a(f's_setprio {o.get("cprio", 2)}')
    WQ = 8; XR = 24; KR = 26; VRD = 27; OXW = 28
    QA = 40; F0 = 136; SP = 224
    a('s_lshl_b32 s50, s42, 4')
    a('s_add_u32 s50, s50, s44')
    a(f's_mul_i32 s51, s50, {NP*4}')
    a('s_add_u32 s51, s51, s46')
    a('s_lshl_b32 s51, s51, 7')
    a('s_lshl_b32 s56, s43, 2')
    a('s_add_u32 s51, s51, s56')
    a(f's_add_u32 s61, s51, {FOFF}')
    a(f'v_lshlrev_b32 v{T0}, 9, v{L}')
    a(f'v_add_u32 v{T0}, s61, v{T0}')
    a(f'v_mov_b32 v{T1}, {OOB:#x}')
    a(f'v_cmp_gt_u32 vcc, {NP}, v{L}')
    a(f'v_cndmask_b32 v{T2}, v{T1}, v{T0}, vcc')
    a(f'v_mov_b32 v7, 0')
    a('s_waitcnt lgkmcnt(0)')
    srd(a, 4, 40, 41, WS_BYTES)
    a(f'buffer_store_dword v7, v{T2}, s[4:7], 0 offen{CO}')
    srd(a, 8, 52, 53, OUT_BYTES)
    srd(a, 12, 54, 55, 256)
    a(f's_mul_i32 s50, s50, {NBLK*8}')
    a('s_add_u32 s50, s50, s43')
    a('s_lshl_b32 s58, s50, 10')
    a('s_lshl_b32 s50, s63, 1')
    a('s_xor_b32 s50, s50, s46')
    a('s_xor_b32 s50, s50, 2')
    a('s_mul_i32 s50, s50, 12288')
    a(f'v_lshlrev_b32 v{T0}, 4, v{L}')
    a(f'v_add_u32 v{OXW}, s50, v{T0}')
    a('s_lshl_b32 s50, s46, 13')
    a(f's_add_u32 s50, s50, {QS[0]}')
    a(f'v_lshlrev_b32 v{T0}, 11, v{G}')
    a(f'v_add_u32 v{T0}, s50, v{T0}')
    a(f'v_lshrrev_b32 v{T2}, 2, v{I}')
    a(f'v_lshl_add_u32 v{T0}, v{T2}, 8, v{T0}')
    a(f'v_and_b32 v{T1}, 1, v{G}')
    a(f'v_lshl_add_u32 v{T1}, v{T1}, 2, v{T2}')
    a(f'v_and_b32 v{T2}, 3, v{I}')
    a(f'v_lshl_add_u32 v{T0}, v{T2}, 3, v{T0}')
    for t in range(8):
        a(f'v_xor_b32 v{T2}, {t}, v{T1}')
        a(f'v_lshl_add_u32 v{WQ+t}, v{T2}, 5, v{T0}')
        a(f'v_add_u32 v{WQ+8+t}, 65536, v{WQ+t}')
    a(f'v_lshrrev_b32 v{T0}, 1, v{I}')
    a(f'v_xor_b32 v{T0}, v{T0}, v{G}')
    a(f'v_lshlrev_b32 v{T0}, 4, v{T0}')
    a('s_lshl_b32 s50, s63, 6')
    a(f'v_xor_b32 v{T0}, s50, v{T0}')
    a(f'v_lshlrev_b32 v{T1}, 7, v{I}')
    a(f'v_add_u32 v{T1}, {XREG}, v{T1}')
    a(f'v_add_u32 v{XR}, v{T1}, v{T0}')
    a(f'v_xor_b32 v{T0}, 64, v{T0}')
    a(f'v_add_u32 v{XR+1}, v{T1}, v{T0}')
    a('s_lshl_b32 s50, s46, 12')
    a(f'v_lshrrev_b32 v{T0}, 1, v{G}')
    a(f'v_xor_b32 v{T0}, v{T0}, v{I}')
    a(f'v_lshlrev_b32 v{T0}, 4, v{T0}')
    a(f'v_lshl_add_u32 v{T0}, v{I}, 8, v{T0}')
    a(f'v_and_b32 v{T1}, 1, v{G}')
    a(f'v_lshl_add_u32 v{T0}, v{T1}, 3, v{T0}')
    a(f'v_add_u32 v{KR}, s50, v{T0}')
    a(f's_add_u32 s50, s50, {VREG}')
    a(f'v_lshrrev_b32 v{T0}, 2, v{L}')
    a(f'v_and_b32 v{T1}, 7, v{T0}')
    a(f'v_lshlrev_b32 v{T1}, 5, v{T1}')
    a(f'v_lshl_add_u32 v{T0}, v{T0}, 8, v{T1}')
    a(f'v_and_b32 v{T1}, 3, v{I}')
    a(f'v_lshl_add_u32 v{T0}, v{T1}, 3, v{T0}')
    a(f'v_add_u32 v{VRD}, s50, v{T0}')
    AR, PO, FL, ONE, OX0, OX1 = 4, 5, 6, 7, 2, 3
    a(f'v_lshrrev_b32 v{T0}, 2, v{L}')
    a(f'v_lshlrev_b32 v{T1}, 7, v{T0}')
    a(f'v_and_b32 v{T2}, 3, v{I}')
    a(f'v_lshl_add_u32 v{T1}, v{T2}, 3, v{T1}')
    a(f'v_lshrrev_b32 v{T0}, 1, v{T0}')
    a(f'v_and_b32 v{T0}, 3, v{T0}')
    a(f'v_xor_b32 v{T0}, s46, v{T0}')
    a(f'v_lshl_add_u32 v{T0}, v{T0}, 5, v{T1}')
    a(f'v_add_u32 v29, {HS[0]}, v{T0}')
    a(f'v_lshlrev_b32 v{T0}, 4, v{L}')
    a(f'v_add_u32 v30, s58, v{T0}')
    a(f'v_mov_b32 v{T1}, {OOB:#x}')
    a(f'v_mov_b32 v{T2}, s61')
    a(f'v_cmp_eq_u32 vcc, 0, v{L}')
    a(f'v_cndmask_b32 v31, v{T1}, v{T2}, vcc')
    a(f'v_mov_b32 v{OX0}, v{T0}')
    a(f'v_mov_b32 v{AR}, v29'); a(f'v_mov_b32 v{PO}, v30'); a(f'v_mov_b32 v{FL}, v31'); a(f'v_mov_b32 v{ONE}, 1')
    a(f's_mul_i32 s24, s46, {3*8192}')
    a(f's_lshl_b32 s25, s46, 14')
    a(f's_add_u32 s25, s25, {48*8192}')
    cscale = math.log2(math.e) / math.sqrt(128.0)
    a(f's_mov_b32 s60, {f32bits(cscale):#x}')

    def FA(s, t): return F0 + s*44 + 12 + t*4
    def FB(s, mt): return F0 + s*44 + mt*4
    def frag_reads(n):
        slot = n % 3
        hi = 1 if slot == 2 else 0
        so = 32768 if slot == 1 else 0
        s = n % 2
        it = []
        for mt in range(3):
            it.append(f'ds_read_b128 {vr(FB(s,mt),4)}, v{XR+(n&1)} offset:{((n>>1)&1)*6144+mt*2048}')
        for t in range(8):
            for half in range(2):
                it.append(f'ds_read_b64_tr_b16 {vr(FA(s,t)+2*half,2)}, v{WQ+8*hi+t} offset:{so+half*1024}')
        return it
    def mfmas(n):
        s = n % 2; it = []
        for t in range(8):
            for mt in range(3):
                d = vr(QA+(t*3+mt)*4, 4)
                c = '0' if n == 0 else d
                it.append(f'v_mfma_f32_16x16x32_bf16 {d}, {vr(FA(s,t),4)}, {vr(FB(s,mt),4)}, {c}')
        return it
    set0 = [F0 + 4*i for i in range(11)]
    set1 = [F0 + 44 + 4*i for i in range(11)]
    KFt = set1 + [SP]
    QBt = set0 + [SP+4]
    PB = SP + 8; TM = SP + 26
    VF32 = QA; VF16 = QA + 32
    SA = QA + 48
    QX = [QA + 84 + 4*i for i in range(3)]
    def kf(kt, s): return KFt[kt*4+s]
    def kv_addrs():
        it = []
        for j in range(8): it.append(f'v_xor_b32 v{WQ+j}, {j*32}, v{KR}')
        for t in range(8): it.append(f'v_xor_b32 v{WQ+8+t}, {t*32}, v{VRD}')
        return it
    def k_reads():
        it = []
        for s in range(4):
            for kt in range(3):
                r = kf(kt, s)
                it.append(f'ds_read_b64 {vr(r,2)}, v{WQ+2*s} offset:{kt*16384}')
                it.append(f'ds_read_b64 {vr(r+2,2)}, v{WQ+2*s+1} offset:{kt*16384}')
        return it
    def v_reads():
        it = []
        for t in range(8):
            it.append(f'ds_read_b64_tr_b16 {vr(VF32+4*t,2)}, v{WQ+8+t} offset:0')
            it.append(f'ds_read_b64_tr_b16 {vr(VF32+4*t+2,2)}, v{WQ+8+t} offset:16384')
        for t in range(8):
            it.append(f'ds_read_b64_tr_b16 {vr(VF16+2*t,2)}, v{WQ+8+t} offset:32768')
        return it
    a('s_waitcnt vmcnt(0)'); a.vm = []
    a('s_barrier')
    st_()
    em(a, frag_reads(0))
    for n in range(17):
        a.comment(f'--- kstep {n}')
        a('s_waitcnt lgkmcnt(0)')
        a('s_barrier')
        if n in (3, 8, 13): st_()
        interleave(a, mfmas(n), frag_reads(n+1), ratio=1.0)
    def qb(s, qt): return QBt[qt*4+s]
    def cvt_q(qt):
        it = []
        for s in range(4):
            for hh in range(2):
                d = QA + ((2*s+hh)*3+qt)*4
                it.append(f'v_cvt_pk_bf16_f32 v{qb(s,qt)+2*hh}, v{d}, v{d+1}')
                it.append(f'v_cvt_pk_bf16_f32 v{qb(s,qt)+2*hh+1}, v{d+2}, v{d+3}')
        return it
    def sa(kt, qt): return SA + (qt*3+kt)*4
    def s_mfma(qt):
        it = []
        for s in range(4):
            for kt in range(3):
                d = vr(sa(kt,qt), 4)
                c = '0' if s == 0 else d
                it.append(f'v_mfma_f32_16x16x32_bf16 {d}, {vr(kf(kt,s),4)}, {vr(qb(s,qt),4)}, {c}')
        return it
    def softmax(qt):
        b = sa(0, qt); m = TM + 2*qt; t = m + 1
        it = []
        it.append(f'v_max3_f32 v{m}, v{b}, v{b+1}, v{b+2}')
        it.append(f'v_max3_f32 v{t}, v{b+3}, v{b+4}, v{b+5}')
        it.append(f'v_max3_f32 v{m}, v{m}, v{b+6}, v{b+7}')
        it.append(f'v_max3_f32 v{t}, v{t}, v{b+8}, v{b+9}')
        it.append(f'v_max3_f32 v{m}, v{m}, v{b+10}, v{b+11}')
        it.append(f'v_max_f32 v{m}, v{m}, v{t}')
        for sw in ('v_permlane32_swap_b32', 'v_permlane16_swap_b32'):
            it.append(f'v_mov_b32 v{t}, v{m}')
            it.append(f'{sw} v{m}, v{t}')
            it.append(f'v_max_f32 v{m}, v{m}, v{t}')
        it.append(f'v_mul_f32 v{m}, s60, v{m}')
        for j in range(12): it.append(f'v_fma_f32 v{b+j}, v{b+j}, s60, -v{m}')
        for j in range(12): it.append(f'v_exp_f32 v{b+j}, v{b+j}')
        it.append(f'v_add_f32 v{m}, v{b}, v{b+1}')
        it.append(f'v_add_f32 v{t}, v{b+2}, v{b+3}')
        for j in range(4, 12, 2):
            it.append(f'v_add_f32 v{m}, v{m}, v{b+j}')
            it.append(f'v_add_f32 v{t}, v{t}, v{b+j+1}')
        it.append(f'v_add_f32 v{m}, v{m}, v{t}')
        for sw in ('v_permlane32_swap_b32', 'v_permlane16_swap_b32'):
            it.append(f'v_mov_b32 v{t}, v{m}')
            it.append(f'{sw} v{m}, v{t}')
            it.append(f'v_add_f32 v{m}, v{m}, v{t}')
        it.append(f'v_rcp_f32 v{m}, v{m}')
        for j in range(12): it.append(f'v_mul_f32 v{b+j}, v{b+j}, v{m}')
        for j in range(6): it.append(f'v_cvt_pk_bf16_f32 v{PB+qt*6+j}, v{b+2*j}, v{b+2*j+1}')
        return it
    X0 = KFt[:8]
    X1 = KFt[8:12] + [sa(0,0), sa(1,0), sa(2,0)] + QX[:1]
    def oa(t, qt): return (X0, X1, X0)[qt][t]
    def pv_mfma(qt):
        it = []; pp = PB + qt*6
        for t in range(8):
            d = vr(oa(t,qt), 4)
            it.append(f'v_mfma_f32_16x16x32_bf16 {d}, {vr(VF32+4*t,4)}, {vr(pp,4)}, 0')
        for t in range(8):
            d = vr(oa(t,qt), 4)
            it.append(f'v_mfma_f32_16x16x16_bf16 {d}, {vr(VF16+2*t,2)}, {vr(pp+4,2)}, {d}')
        return it
    def o_pack(qt):
        it = []
        for s in range(4):
            r = qb(s, qt)
            for hh in range(2):
                d = oa(2*s+hh, qt)
                it.append(f'v_cvt_pk_bf16_f32 v{r+2*hh}, v{d}, v{d+1}')
                it.append(f'v_cvt_pk_bf16_f32 v{r+2*hh+1}, v{d+2}, v{d+3}')
            it.append(f'ds_write_b128 v{OXW}, {vr(r,4)} offset:{(qt*4+s)*1024}')
        return it
    def zipl(*ls):
        out = []; n = max(len(x) for x in ls)
        for i in range(n):
            for x in ls:
                if i < len(x): out.append(x[i])
        return out
    a('s_waitcnt lgkmcnt(0)')
    a('s_barrier')
    st_()
    m17 = mfmas(17)
    m17 = [m17[t*3+mt] for mt in range(3) for t in range(8)]
    interleave(a, m17[:8], kv_addrs(), ratio=2)
    em(a, m17[8:12])
    interleave(a, m17[12:20], cvt_q(0), ratio=2)
    interleave(a, m17[20:24], cvt_q(1)[:8], ratio=2)
    interleave(a, k_reads(), cvt_q(1)[8:] + cvt_q(2), ratio=1)
    s0 = s_mfma(0)
    for s4 in range(4):
        a(f's_waitcnt lgkmcnt({min(15, 18-6*s4)})')
        em(a, s0[3*s4:3*s4+3])
    sm0, sm1, sm2 = softmax(0), softmax(1), softmax(2)
    em(a, s_mfma(1)[:4])
    interleave(a, s_mfma(1)[4:] + s_mfma(2), sm0[:40], ratio=2)
    st_()
    a('s_barrier')
    st_()
    z = zipl(sm0[40:], sm1[:33])
    interleave(a, v_reads(), z[:48], ratio=2)
    a('s_waitcnt lgkmcnt(0)')
    a('s_barrier')
    em(a, z[48:])
    z = zipl(sm1[33:], sm2[:40])
    interleave(a, pv_mfma(0), z, ratio=2)
    z = zipl(sm2[40:], o_pack(0))
    interleave(a, pv_mfma(1), z, ratio=2)
    interleave(a, pv_mfma(2), o_pack(1), ratio=1.25)
    em(a, o_pack(2))
    a('s_waitcnt lgkmcnt(0)')
    st_()
    a('s_barrier')
    st_()
    BF = 64
    def bf(kk, mt): return BF + (kk*3+mt)*4
    ACC = [40, 52]
    AFR = 8; AD = 5; LA = 4
    PK = 28
    NK = 144
    def a_reads(n):
        k = n % 8
        d = AFR + (n % AD)*4
        return [f'ds_read_b64_tr_b16 {vr(d+2*half,2)}, v{AR} offset:{k*4096+half*2048}' for half in range(2)]
    def b_reads(kk):
        hsel = (kk >> 2) & 1
        return [f'ds_read_b128 {vr(bf(kk,mt),4)}, v{OX0} offset:{(24576 if kk < 8 else 0)+hsel*12288+(mt*4+(kk&3))*1024}' for mt in range(3)]
    def o_mfmas(n):
        r, kk = n // 16, n % 16
        it = []
        for mt in range(3):
            d = vr(ACC[r % 2] + mt*4, 4)
            c = '0' if kk == 0 else d
            it.append(f'v_mfma_f32_16x16x32_bf16 {d}, {vr(AFR+(n%AD)*4,4)}, {vr(bf(kk,mt),4)}, {c}')
        return it
    def p_store(r):
        it = []
        if r < 8:
            for mt in range(3):
                d = ACC[r % 2] + mt*4
                q = PK + mt*4 + 2*(r & 1)
                it.append(f'v_cvt_pk_bf16_f32 v{q}, v{d}, v{d+1}')
                it.append(f'v_cvt_pk_bf16_f32 v{q+1}, v{d+2}, v{d+3}')
                if r & 1:
                    it.append(f's_add_u32 s26, s24, {((r>>1)*12+mt)*8192}')
                    it.append((f'buffer_store_dwordx4 {vr(PK+mt*4,4)}, v{PO}, s[4:7], s26 offen{CO}', ('P', r)))
        else:
            for mt in range(3):
                d = ACC[0] + mt*4
                q = PK + mt*2
                it.append(f'v_cvt_pk_bf16_f32 v{q}, v{d}, v{d+1}')
                it.append(f'v_cvt_pk_bf16_f32 v{q+1}, v{d+2}, v{d+3}')
            it.append('s_add_u32 s26, s25, 8192')
            it.append((f'buffer_store_dwordx4 {vr(PK,4)}, v{PO}, s[4:7], s25 offen{CO}', ('P', r)))
            it.append((f'buffer_store_dwordx4 {vr(PK+4,4)}, v{PO}, s[4:7], s26 offen{CO}', ('P', r)))
        return it
    def flag(ph, upto):
        def f():
            a.wait_vm(lambda t: t is not None and t[0] == 'P' and t[1] <= upto)
            a(f'buffer_store_dword v{ONE}, v{FL}, s[4:7], 0 offen offset:{ph*512}{CO}', ('F', ph))
        return f
    lq = []
    def ds(x, tag):
        a(x); lq.append(tag)
    def need(tags):
        idx = max((i for i, t in enumerate(lq) if t in tags), default=-1)
        if idx < 0: return
        n = len(lq) - 1 - idx
        a(f's_waitcnt lgkmcnt({min(n, 15)})')
        del lq[:idx+1]
    for n in range(LA):
        for x in a_reads(n): ds(x, ('A', n))
        for x in b_reads(n): ds(x, ('B', n))
    LASTB = int(o.get('lastb', 15))
    for u in range(18):
        r = u // 2
        oth = {g: [] for g in range(24)}
        if u % 2 == 0 and r > 0:
            g = 3
            for x in p_store(r-1):
                oth[g].append(x)
                if not (isinstance(x, str) and x.startswith('s_')): g += 1
        if u == 10: oth[20].append(flag(0, 3))
        if u == 14: oth[20].append(flag(1, 5))
        for k in range(8):
            n = u*8 + k
            need({('A', n), ('B', n)} | ({('B', n+3)} if k == 4 else set()))
            if k == 4 and u < 17:
                if u <= LASTB:
                    a('s_barrier')
                    if u in (3, 9): st_()
                dlt = HS[(u+1) % 5] - HS[u % 5]
                a(f'v_add_u32 v{AR}, {dlt & 0xffffffff:#x}, v{AR}')
            rd = []
            if n + LA < NK: rd += [(x, ('A', n+LA)) for x in a_reads(n+LA)]
            if n + LA < 16: rd += [(x, ('B', n+LA)) for x in b_reads(n+LA)]
            for i, m in enumerate(o_mfmas(n)):
                a(m)
                take = rd[:2] if len(rd) > 3 - i else rd[:1]
                rd = rd[len(take):]
                for x, tg in take: ds(x, tg)
                em(a, oth[k*3+i])
            assert not rd
    em(a, p_store(8))
    st_()
    flag(2, 8)()
    st_()
    a('s_lshl_b32 s61, s46, 3')
    a('s_add_u32 s61, s61, s43')
    a('s_cmp_ge_u32 s61, 20')
    a('s_cbranch_scc1 C_DONE')
    lane_ids(a)
    wait_counter(a, 'CC', 12)
    reduce_block(a, 'CR', 2, 36, 61, 4, 8, o, st_ if ts else None)
    a.label('C_DONE')
    st_.dump(40, 41, 0, 3)
    a('s_endpgm')

    h = Asm()
    sh = Stamps(h, ts, tsmode); sh.n = 1
    h.label('HELPER')
    WO = 8; XO = 12; XT = 14; KO = 16; VO = 20; OW = 24; AT = 30
    h('s_mul_i32 s47, s3, 5')
    h('s_add_u32 s47, s47, s62')
    mod9(h, 47, 48)
    h('s_mov_b32 s60, s47')
    h('s_lshl_b32 s49, s43, 2')
    h('s_add_u32 s49, s49, s46')
    h('s_lshl_b32 s48, s49, 8')
    h(f'v_lshlrev_b32 v{T0}, 13, v{G}')
    h(f'v_add_u32 v{T0}, s48, v{T0}')
    h(f'v_lshlrev_b32 v{T1}, 1, v{G}')
    h(f'v_xor_b32 v{T1}, v{T1}, v{I}')
    h(f'v_lshlrev_b32 v{T1}, 4, v{T1}')
    h(f'v_xor_b32 v{T2}, 128, v{T1}')
    h(f'v_add_u32 v{T1}, v{T0}, v{T1}')
    h(f'v_add_u32 v{T2}, v{T0}, v{T2}')
    for q in range(4):
        h(f'v_add_u32 v{WO+q}, {4*q*8192 - q*1024}, v{T1 if (q >> 1) == 0 else T2}')
    h('s_mul_i32 s48, s46, 12')
    h('s_mul_i32 s50, s44, 55296')
    h(f'v_lshrrev_b32 v{T0}, 3, v{L}')
    h(f'v_and_b32 v7, 7, v{L}')
    for pp in range(2):
        h(f'v_add_u32 v{T1}, s48, v{T0}')
        if pp: h(f'v_add_u32 v{T1}, 8, v{T1}')
        h(f'v_bfe_u32 v{T2}, v{T1}, 1, 3')
        h(f'v_xor_b32 v{T2}, v{T2}, v7')
        h(f'v_mul_u32_u24 v{T1}, 1152, v{T1}')
        h(f'v_lshl_add_u32 v{T1}, v{T2}, 4, v{T1}')
        h(f'v_add_u32 v{XO+pp}, s50, v{T1}')
    h(f'v_subrev_u32 v{XO+1}, 1024, v{XO+1}')
    h('s_lshl_b32 s57, s46, 13')
    h('s_mul_i32 s58, s46, 1536')
    h('s_waitcnt lgkmcnt(0)')
    h('s_cmp_eq_u32 s42, 0')
    h('s_cselect_b64 s[24:25], s[24:25], s[32:33]')
    h('s_cselect_b64 s[26:27], s[26:27], s[34:35]')
    h('s_cselect_b64 s[28:29], s[28:29], s[36:37]')
    h('s_cselect_b64 s[30:31], s[30:31], s[38:39]')
    h('s_cselect_b64 s[32:33], s[20:21], s[22:23]')
    h(f's_mov_b32 s59, {KV_B}')
    h(f's_cselect_b32 s59, {KV_A}, s59')
    srd(h, 4, 24, 25, X_BYTES)
    srd(h, 8, 30, 31, W_BYTES)
    sh()
    def x_chunk(c):
        it = []
        it.append('s_lshl_b32 s48, s60, 7')
        it.append(f's_add_u32 m0, s58, {XREG + (c & 1)*6144}')
        it.append((f'buffer_load_dwordx4 v{XO}, s[4:7], s48 offen{M("x")} lds', ('X', c)))
        it.append('s_mov_b32 exec_hi, 0')
        it.append((f'buffer_load_dwordx4 v{XO+1}, s[4:7], s48 offen offset:1024{M("x")} lds', ('X', c)))
        it.append('s_mov_b32 exec_hi, -1')
        it.append('s_add_u32 s60, s60, 1')
        it.append('s_cmp_eq_u32 s60, 9')
        it.append('s_cselect_b32 s60, 0, s60')
        return it
    def dma_stage(n):
        slot = QS[n % 3]
        it = []
        it.append(f's_xor_b32 s48, s63, {n & 1}')
        it.append('s_lshl_b32 s49, s47, 1')
        it.append('s_add_u32 s49, s49, s48')
        it.append('s_lshl_b32 s49, s49, 18')
        it.append(f's_add_u32 s50, s49, {16*8192}')
        it.append(f's_add_u32 m0, s57, {slot}')
        for q in range(4):
            it.append((f'buffer_load_dwordx4 v{WO+q}, s[8:11], s49 offen offset:{q*1024}{M("wq")} lds', ('S', n)))
        it.append(f's_add_u32 m0, s57, {slot+4096}')
        for q in range(4):
            it.append((f'buffer_load_dwordx4 v{WO+q}, s[8:11], s50 offen offset:{q*1024}{M("wq")} lds', ('S', n)))
        if n & 1:
            it.append('s_add_u32 s47, s47, 1')
            it.append('s_cmp_eq_u32 s47, 9')
            it.append('s_cselect_b32 s47, 0, s47')
        return it
    em(h, x_chunk(0))
    em(h, dma_stage(0))
    em(h, x_chunk(1))
    h(f'v_mul_u32_u24 v{T1}, 43, v{L}')
    h(f'v_lshrrev_b32 v{T1}, 9, v{T1}')
    assert all((x*43) >> 9 == x//12 for x in range(64))
    h(f'v_mul_u32_u24 v{T2}, 12, v{T1}')
    h(f'v_sub_u32 v{T2}, v{L}, v{T2}')
    h('s_mul_i32 s48, s46, 12')
    h(f'v_add_u32 v{T2}, s48, v{T2}')
    h(f'v_mul_u32_u24 v{T2}, 1152, v{T2}')
    h(f'v_add_u32 v{T1}, s60, v{T1}')
    h(f'v_subrev_u32 v{XT}, 9, v{T1}')
    h(f'v_min_u32 v{T1}, v{T1}, v{XT}')
    h(f'v_lshl_add_u32 v{T2}, v{T1}, 7, v{T2}')
    h('s_mul_i32 s50, s44, 55296')
    h(f'v_add_u32 v{T2}, s50, v{T2}')
    h(f'v_mov_b32 v{T1}, {OOB:#x}')
    h(f'v_cmp_gt_u32 vcc, 36, v{L}')
    h(f'v_cndmask_b32 v{XT}, v{T1}, v{T2}, vcc')
    h(f'buffer_load_dword v32, v{XT}, s[4:7], 0 offen', ('T', 0))
    em(h, dma_stage(1))
    srd(h, 12, 26, 27, 's59')
    srd(h, 16, 28, 29, 's59')
    srd(h, 20, 32, 33, W_BYTES)
    srd(h, 36, 54, 55, 256)
    h('s_lshl_b32 s56, s43, 2')
    h('s_add_u32 s56, s56, s46')
    h('s_lshr_b32 s51, s56, 1')
    h('s_cmp_eq_u32 s42, 0')
    h('s_cselect_b32 s59, 4, 5')
    h('s_cselect_b32 s56, s51, s56')
    h('s_lshl_b32 s51, s44, s59')
    h('s_add_u32 s51, s51, s56')
    h('s_mul_i32 s51, s51, 12288')
    h(f'v_lshlrev_b32 v7, 8, v{G}')
    h(f'v_add_u32 v7, s51, v7')
    h(f'v_xor_b32 v{T1}, v{I}, v{G}')
    h(f'v_lshlrev_b32 v{T1}, 4, v{T1}')
    for q in range(4):
        h(f'v_xor_b32 v{T2}, {q*64}, v{T1}')
        h(f'v_add_u32 v{KO+q}, v7, v{T2}')
    h(f'v_lshlrev_b32 v{T1}, 1, v{G}')
    h(f'v_xor_b32 v{T1}, v{I}, v{T1}')
    h(f'v_lshlrev_b32 v{T1}, 4, v{T1}')
    h(f'v_add_u32 v{VO}, v7, v{T1}')
    h(f'v_xor_b32 v{T1}, 128, v{T1}')
    h(f'v_add_u32 v{VO+1}, v7, v{T1}')
    h(f'v_cmp_eq_u32 vcc, 256, v0')
    h('s_lshl_b32 s56, s42, 4')
    h('s_add_u32 s56, s56, s44')
    h('s_lshl_b32 s56, s56, 3')
    h(f'v_mov_b32 v{T1}, s56')
    h(f'v_mov_b32 v{T2}, {OOB:#x}')
    h(f'v_cndmask_b32 v{AT}, v{T2}, v{T1}, vcc')
    h(f'v_mov_b32 v{AT+1}, 1')
    h('s_movk_i32 s34, 4096')
    h('s_movk_i32 s35, 8192')
    h('s_lshl_b32 s56, s46, 12')
    def kv_tile(which, tile):
        it = []
        reg = KREG if which == 0 else VREG
        sr = 12 if which == 0 else 16
        so = ['0', 's34', 's35'][tile]
        it.append(f's_add_u32 m0, s56, {reg + tile*16384}')
        for q in range(4):
            vo = KO + q if which == 0 else VO + (q & 1)
            it.append((f'buffer_load_dwordx4 v{vo}, s[{sr}:{sr+3}], {so} offen offset:{q*1024}{M("kv")} lds', ('K' if which == 0 else 'V', tile)))
        return it
    h('s_lshl_b32 s51, s43, 9')
    h('s_lshl_b32 s59, s46, 6')
    h('s_add_u32 s51, s51, s59')
    h('s_mul_i32 s51, s51, 1152')
    h(f'v_mul_u32_u24 v{T0}, 1152, v{T0}')
    h(f'v_add_u32 v{T0}, s51, v{T0}')
    h(f'v_and_b32 v{T1}, 7, v{L}')
    h(f'v_lshlrev_b32 v{T2}, 1, v{G}')
    h(f'v_xor_b32 v{T1}, v{T1}, v{T2}')
    h(f'v_lshl_add_u32 v{T0}, v{T1}, 4, v{T0}')
    for q in range(4):
        h(f'v_add_u32 v{OW+q}, {q*8192}, v{T0}')
    h('s_mov_b32 s61, s62')
    def wo_half(u):
        slot = HS[u % 5]
        it = []
        it.append(f's_xor_b32 s48, s63, {u & 1}')
        it.append(f's_mul_i32 s48, s48, {256*1152}')
        it.append('s_lshl_b32 s49, s61, 7')
        it.append('s_add_u32 s48, s48, s49')
        it.append(f's_add_u32 s49, s48, {32*1152}')
        it.append(f's_add_u32 m0, s57, {slot}')
        for q in range(4):
            it.append((f'buffer_load_dwordx4 v{OW+q}, s[20:23], s48 offen offset:{q*1024}{M("wo")} lds', ('W', u)))
        it.append(f's_add_u32 m0, s57, {slot+4096}')
        for q in range(4):
            it.append((f'buffer_load_dwordx4 v{OW+q}, s[20:23], s49 offen offset:{q*1024}{M("wo")} lds', ('W', u)))
        if u & 1:
            it.append('s_add_u32 s61, s61, 1')
            it.append('s_cmp_eq_u32 s61, 9')
            it.append('s_cselect_b32 s61, 0, s61')
        return it
    sh()
    h.wait_vm(lambda t: t == ('S', 0))
    h('s_barrier')
    h(f'buffer_atomic_add v{AT+1}, v{AT}, s[36:39], 0 offen sc1', ('A', 0))
    em(h, dma_stage(2))
    kats = [int(x) for x in str(o.get('kat', '8')).split(',')]
    vm0 = list(h.vm)
    if len(kats) > 1:
        h(f's_and_b32 s59, s44, {len(kats)-1}')
        for vi in range(1, len(kats)):
            h(f's_cmp_eq_u32 s59, {vi}')
            h(f's_cbranch_scc1 HQ{vi}')
    n0 = sh.n
    for vi, kat in enumerate(kats):
        h.vm = list(vm0); sh.n = n0
        if vi: h.label(f'HQ{vi}')
        for n in range(17):
            h.wait_vm(lambda t: t == ('S', n+1) or t == ('X', (n+1) >> 1))
            h('s_barrier')
            if n in (3, 8, 13): sh()
            if (n & 1) and (n >> 1) + 2 <= 8: em(h, x_chunk((n >> 1) + 2))
            if n + 3 <= 17: em(h, dma_stage(n+3))
            if n == kat:
                for tile in range(3): em(h, kv_tile(0, tile))
            if n == 15: em(h, kv_tile(1, 0)); em(h, kv_tile(1, 1))
            if n == 16: em(h, kv_tile(1, 2))
        h.wait_vm(lambda t: t[0] == 'K')
        assert all(t[0] == 'V' for t in h.vm) and len(h.vm) == 12, h.vm
        if vi + 1 < len(kats): h('s_branch HQ_END')
    h.label('HQ_END')
    sh()
    h('s_barrier')
    em(h, wo_half(0))
    h.wait_vm(lambda t: t[0] == 'V')
    sh()
    h('s_barrier')
    h('s_barrier')
    em(h, wo_half(1)); em(h, wo_half(2))
    h.wait_vm(lambda t: t == ('W', 0))
    sh()
    h('s_barrier')
    nxt = 3
    for u in range(LASTB+1):
        if u < LASTB:
            assert nxt > u+1
            h.wait_vm(lambda t: t == ('W', u+1))
        else:
            assert nxt == 18
            h.wait_vm(lambda t: t[0] == 'W')
        h('s_barrier')
        while nxt <= 17 and ((nxt >= 5 and nxt - 5 <= u - 1) or (nxt in (3, 4) and u >= nxt - 3)):
            em(h, wo_half(nxt)); nxt += 1
    assert nxt == 18, nxt
    sh()
    srd(h, 4, 40, 41, WS_BYTES)
    srd(h, 8, 52, 53, OUT_BYTES)
    wait_counter(h, 'HC', 36)
    sh()
    h('s_lshl_b32 s61, s46, 3')
    h('s_add_u32 s61, s61, s43')
    h('s_cmp_ge_u32 s61, 24')
    h('s_cbranch_scc1 HA_DONE')
    reduce_block(h, 'HA', 0, 0, 61, 4, 8, o, sh if ts else None)
    h.label('HA_DONE')
    sh()
    h('s_sub_u32 s61, 31, s61')
    h('s_cmp_ge_u32 s61, 12')
    h('s_cbranch_scc1 HB_DONE')
    h('s_nop 1')
    reduce_block(h, 'HB', 1, 24, 61, 4, 8, o, sh if ts else None)
    h.label('HB_DONE')
    sh.dump(40, 41, 0, 3)
    h.label('M_END')
    h('s_endpgm')
    print('main: compute inst', a.ninst, 'nops', a.nops_inserted, 'helper', h.ninst, 'stamps', st_.n, sh.n)
    return p.text() + a.text() + h.text()

if __name__ == '__main__':
    out = sys.argv[1]
    o = dict(x.split('=') if '=' in x else (x, 1) for x in sys.argv[2:])
    txt = build_file([dict(name=NAME + '_kernel', grid=256, block=512, lds=163840, body=gen_main(o), vgpr=256, sgpr=102, accum=256)])
    open(out, 'w').write(txt)
```

```python
import sys, struct, math
sys.path.insert(0, 'gen')
from asmgen import Asm, interleave
from common import *
from v2 import Stamps, srd, em, f32bits, vr

X_BYTES = 16*48*576*2
W_BYTES = 576*4096*2
KV_A = 16*16*48*128*2
KV_B = 16*32*48*128*2
OUT_BYTES = 16*48*1152*2
NBLK = 56
P_BYTES = 32*NBLK*8*1024
OSOFF = P_BYTES
FOFF = OSOFF + 256*24576
NP = 3
GOFF = FOFF + 32*NP*4*128
WS_BYTES = GOFF + 256*128
OOB = 0x7ffffff0

KREG = 0; XREG = 49152; QS = 98304
VT = [131072, 147456, 98304]
HS = [65536, 32768, 98304, 131072]
L, I, G, T0, T1, T2 = 1, 2, 3, 4, 5, 6
CO = ' sc0 sc1'

def lane_ids(a):
    a(f'v_and_b32 v{L}, 63, v0')
    a(f'v_and_b32 v{I}, 15, v0')
    a(f'v_lshrrev_b32 v{G}, 4, v{L}')

def modn(a, d, t, n):
    a(f's_cmp_ge_u32 s{d}, {n}')
    a(f's_cselect_b32 s{t}, {n}, 0')
    a(f's_sub_u32 s{d}, s{d}, s{t}')

def poll(a, lbl, load, vreg, expect, keep_vm=False):
    vm = list(a.vm)
    a('s_mov_b32 s59, 0')
    a.label(f'{lbl}_POLL')
    a(load)
    a('s_waitcnt vmcnt(0)')
    a(f'v_cmp_gt_u32 vcc, {expect}, v{vreg}')
    a('s_add_u32 s59, s59, 1')
    a('s_nop 0')
    a(f's_cbranch_vccz {lbl}_GO')
    a('s_sleep 1')
    a('s_cmp_lt_u32 s59, 0x40000')
    a(f's_cbranch_scc1 {lbl}_POLL')
    a.label(f'{lbl}_GO')
    a.vm = vm if keep_vm else []

def check_or_poll(a, lbl, load, vreg, expect):
    a(f'v_cmp_gt_u32 vcc, {expect}, v{vreg}')
    a('s_nop 1')
    a(f's_cbranch_vccz {lbl}_GO')
    poll(a, lbl, load, vreg, expect, keep_vm=True)

def reduce_block(a, lbl, phase, blk0, sidx, srd_ws, srd_out, o, st=None):
    M = lambda k: (' ' + o[k].replace('+', ' ')) if k in o else ''
    a(f's_add_u32 s47, s{sidx}, {blk0}')
    a('s_mul_i32 s48, s47, 171')
    a('s_lshr_b32 s48, s48, 11')
    a('s_mul_i32 s49, s48, 12')
    a('s_sub_u32 s49, s47, s49')
    a('s_mul_i32 s50, s49, 43')
    a('s_lshr_b32 s50, s50, 7')
    a('s_mul_i32 s51, s50, 3')
    a('s_sub_u32 s51, s49, s51')
    a('s_lshr_b32 s56, s49, 1')
    a('s_and_b32 s57, s49, 1')
    a('s_lshl_b32 s57, s57, 1')
    a('s_cmp_eq_u32 s48, 4')
    a('s_cselect_b32 s50, s56, s50')
    a('s_cselect_b32 s51, s57, s51')
    a('s_cselect_b32 s56, 1, 0')
    a('s_cselect_b32 s57, 0, 1')
    a('s_add_u32 s56, s56, s51')
    a('s_lshl_b32 s48, s48, 1')
    a('s_add_u32 s48, s48, s44')
    a('s_add_u32 s57, s57, s48')
    modn(a, 48, 58, 9); modn(a, 57, 58, 9)
    a('s_mul_i32 s58, s62, 110592')
    a('s_mul_i32 s59, s42, 1152')
    a('s_add_u32 s58, s58, s59')
    a('s_lshl_b32 s59, s50, 5')
    a('s_add_u32 s58, s58, s59')
    a(f'v_mul_u32_u24 v7, 2304, v{I}')
    a(f'v_lshl_add_u32 v7, v{G}, 3, v7')
    a(f'v_add_u32 v7, s58, v7')
    a('s_mul_i32 s51, s51, 36864')
    a('s_lshl_b32 s48, s48, 7')
    a('s_add_u32 s48, s48, s51')
    a('s_cmp_eq_u32 s56, 3')
    a('s_mul_i32 s56, s56, 36864')
    a(f's_cselect_b32 s56, {OOB:#x}, s56')
    a('s_lshl_b32 s57, s57, 7')
    a('s_add_u32 s57, s57, s56')
    a('s_lshl_b32 s51, s42, 4')
    a('s_add_u32 s51, s51, s62')
    a(f's_mul_i32 s56, s51, {NP*4}')
    a('s_add_u32 s56, s56, s50')
    a('s_lshl_b32 s56, s56, 7')
    a(f's_add_u32 s56, s56, {FOFF + phase*512}')
    a(f'v_and_b32 v{T0}, 7, v{L}')
    a(f'v_lshlrev_b32 v{T0}, 2, v{T0}')
    a(f's_mul_i32 s51, s51, {NBLK}')
    a('s_add_u32 s51, s51, s47')
    a('s_lshl_b32 s51, s51, 13')
    a(f'v_lshlrev_b32 v{T1}, 4, v{L}')
    a(f'v_add_u32 v{T1}, s51, v{T1}')
    poll(a, lbl, f'buffer_load_dword v{T2}, v{T0}, s[{srd_ws}:{srd_ws+3}], s56 offen{CO}', T2, 1)
    if st: st()
    a('s_movk_i32 s47, 4096')
    D = 16; ACC = 8
    for hq in range(8):
        so = ['0', 's47'][hq >> 2]
        a(f'buffer_load_dwordx4 {vr(D+4*hq,4)}, v{T1}, s[{srd_ws}:{srd_ws+3}], {so} offen offset:{(hq&3)*1024}{CO}', ('R', hq))
    a('s_mov_b32 s59, 0xffff0000')
    for hq in range(8):
        a.wait_vm(lambda t: t == ('R', hq))
        for j in range(4):
            r = D + 4*hq + j
            if hq == 0:
                a(f'v_lshlrev_b32 v{ACC+2*j}, 16, v{r}')
                a(f'v_and_b32 v{ACC+2*j+1}, s59, v{r}')
            else:
                a(f'v_lshlrev_b32 v{T2}, 16, v{r}')
                a(f'v_and_b32 v{r}, s59, v{r}')
                a(f'v_add_f32 v{ACC+2*j}, v{ACC+2*j}, v{T2}')
                a(f'v_add_f32 v{ACC+2*j+1}, v{ACC+2*j+1}, v{r}')
    for j in range(4):
        a(f'v_cvt_pk_bf16_f32 v{D+j}, v{ACC+2*j}, v{ACC+2*j+1}')
    a(f'buffer_store_dwordx2 {vr(D,2)}, v7, s[{srd_out}:{srd_out+3}], s48 offen{M("out")}')
    a(f'buffer_store_dwordx2 {vr(D+2,2)}, v7, s[{srd_out}:{srd_out+3}], s57 offen{M("out")}')

def gen_main(o):
    ts = o.get('ts'); tsmode = o.get('tsmode', 's_memrealtime')
    M = lambda k: (' ' + o[k].replace('+', ' ')) if k in o else ''
    p = Asm()
    p('s_cmp_ge_u32 s2, 256')
    p('s_cbranch_scc1 M_END')
    if ts: p(f'{tsmode} s[64:65]')
    p('s_load_dwordx8 s[24:31], s[0:1], 0')
    p('s_load_dwordx8 s[32:39], s[0:1], 40')
    p('s_load_dwordx2 s[40:41], s[0:1], 96')
    p('s_load_dwordx2 s[20:21], s[0:1], 32')
    p('s_load_dwordx2 s[22:23], s[0:1], 72')
    p('s_load_dwordx4 s[52:55], s[0:1], 80')
    p('s_and_b32 s47, s2, 7')
    p('s_lshr_b32 s48, s2, 3')
    p('s_lshr_b32 s42, s47, 2')
    p('s_and_b32 s49, s47, 3')
    p('s_lshl_b32 s49, s49, 2')
    p('s_and_b32 s3, s48, 3')
    p('s_add_u32 s43, s49, s3')
    p('s_lshr_b32 s44, s48, 2')
    p('s_and_b32 s49, s43, 1')
    p('s_lshl_b32 s62, s44, 1')
    p('s_add_u32 s62, s62, s49')
    p('s_lshl_b32 s63, s42, 3')
    p('s_add_u32 s63, s63, s44')
    p('s_lshl_b32 s63, s63, 4')
    p('s_add_u32 s63, s63, s43')
    p(f'v_lshrrev_b32 v{T0}, 6, v0')
    lane_ids(p)
    p(f'v_readfirstlane_b32 s45, v{T0}')
    p('s_and_b32 s46, s45, 3')
    p('s_cmp_ge_u32 s45, 4')
    p('s_cbranch_scc1 HELPER')

    a = Asm()
    st_ = Stamps(a, ts, tsmode); st_.n = 1
    fine = o.get('fine')
    if fine: st_.on = False
    a(f's_setprio {o.get("cprio", 2)}')
    WQ = 8; XR = 24; KR = 26; VRD = 27; OXW = 28
    QA = 40; F0 = 136; SP = 224
    a('s_lshr_b32 s48, s46, 1')
    a('s_and_b32 s49, s46, 1')
    a('s_and_b32 s50, s43, 1')
    a('s_xor_b32 s57, s48, s50')
    a('s_lshl_b32 s50, s42, 4')
    a('s_add_u32 s50, s50, s62')
    a(f's_mul_i32 s51, s50, {NP*4}')
    a('s_add_u32 s51, s51, s46')
    a('s_lshl_b32 s51, s51, 7')
    a('s_lshr_b32 s56, s43, 1')
    a('s_lshl_b32 s58, s56, 2')
    a('s_add_u32 s51, s51, s58')
    a(f's_add_u32 s61, s51, {FOFF}')
    a('s_lshl_b32 s51, s63, 7')
    a(f's_add_u32 s51, s51, {GOFF}')
    a('s_cmp_eq_u32 s46, 0')
    a(f's_cselect_b32 s51, s51, {OOB:#x}')
    a(f'v_lshlrev_b32 v{T0}, 9, v{L}')
    a(f'v_add_u32 v{T0}, s61, v{T0}')
    a(f'v_mov_b32 v{T1}, {OOB:#x}')
    a(f'v_cmp_gt_u32 vcc, {NP}, v{L}')
    a(f'v_cndmask_b32 v{T2}, v{T1}, v{T0}, vcc')
    a(f'v_mov_b32 v{T0}, s51')
    a(f'v_cmp_eq_u32 vcc, {NP}, v{L}')
    a(f'v_cndmask_b32 v{T2}, v{T2}, v{T0}, vcc')
    a(f'v_cmp_eq_u32 vcc, 0, v{L}')
    a(f'v_cndmask_b32 v32, v{T1}, v{T0}, vcc')
    a(f'v_mov_b32 v{T0}, s61')
    a(f'v_cndmask_b32 v31, v{T1}, v{T0}, vcc')
    a(f'v_mov_b32 v7, 0')
    a('s_waitcnt lgkmcnt(0)')
    srd(a, 4, 40, 41, WS_BYTES)
    a(f'buffer_store_dword v7, v{T2}, s[4:7], 0 offen{CO}')
    srd(a, 8, 52, 53, OUT_BYTES)
    a(f's_mul_i32 s50, s50, {NBLK*8}')
    a('s_add_u32 s50, s50, s56')
    a('s_lshl_b32 s58, s50, 10')
    a(f'v_lshlrev_b32 v{T0}, 4, v{L}')
    a(f'v_add_u32 v30, s58, v{T0}')
    a('s_mul_i32 s50, s49, 12288')
    a('s_mul_i32 s51, s63, 24576')
    a(f's_add_u32 s51, s51, {OSOFF}')
    a('s_mul_i32 s51, s51, s57')
    a('s_add_u32 s50, s50, s51')
    a(f'v_add_u32 v{OXW}, s50, v{T0}')
    a(f'v_mov_b32 v33, v{T0}')
    a('s_lshl_b32 s50, s49, 13')
    a(f's_add_u32 s50, s50, {QS}')
    a(f'v_lshlrev_b32 v{T0}, 11, v{G}')
    a(f'v_add_u32 v{T0}, s50, v{T0}')
    a(f'v_lshrrev_b32 v{T2}, 2, v{I}')
    a(f'v_lshl_add_u32 v{T0}, v{T2}, 8, v{T0}')
    a(f'v_and_b32 v{T1}, 1, v{G}')
    a(f'v_lshl_add_u32 v{T1}, v{T1}, 2, v{T2}')
    a(f'v_and_b32 v{T2}, 3, v{I}')
    a(f'v_lshl_add_u32 v{T0}, v{T2}, 3, v{T0}')
    for t in range(8):
        a(f'v_xor_b32 v{T2}, {t}, v{T1}')
        a(f'v_lshl_add_u32 v{WQ+t}, v{T2}, 5, v{T0}')
    a('s_mul_i32 s50, s48, 6144')
    a(f's_add_u32 s50, s50, {XREG}')
    a(f'v_lshrrev_b32 v{T0}, 1, v{I}')
    a(f'v_xor_b32 v{T0}, v{T0}, v{G}')
    a(f'v_lshlrev_b32 v{T0}, 4, v{T0}')
    a(f'v_lshlrev_b32 v{T1}, 7, v{I}')
    a(f'v_add_u32 v{T1}, s50, v{T1}')
    a(f'v_add_u32 v{XR}, v{T1}, v{T0}')
    a(f'v_xor_b32 v{T0}, 64, v{T0}')
    a(f'v_add_u32 v{XR+1}, v{T1}, v{T0}')
    a('s_lshl_b32 s50, s46, 12')
    a(f'v_lshrrev_b32 v{T0}, 1, v{G}')
    a(f'v_xor_b32 v{T0}, v{T0}, v{I}')
    a(f'v_lshlrev_b32 v{T0}, 4, v{T0}')
    a(f'v_lshl_add_u32 v{T0}, v{I}, 8, v{T0}')
    a(f'v_and_b32 v{T1}, 1, v{G}')
    a(f'v_lshl_add_u32 v{T0}, v{T1}, 3, v{T0}')
    a(f'v_add_u32 v{KR}, s50, v{T0}')
    for j in range(8): a(f'v_xor_b32 v{WQ+8+j}, {j*32}, v{KR}')
    a(f's_add_u32 s50, s50, {QS}')
    a(f'v_lshrrev_b32 v{T0}, 2, v{L}')
    a(f'v_and_b32 v{T1}, 7, v{T0}')
    a(f'v_lshlrev_b32 v{T1}, 5, v{T1}')
    a(f'v_lshl_add_u32 v{T0}, v{T0}, 8, v{T1}')
    a(f'v_and_b32 v{T1}, 3, v{I}')
    a(f'v_lshl_add_u32 v{T0}, v{T1}, 3, v{T0}')
    a(f'v_add_u32 v{VRD}, s50, v{T0}')
    AR, PO, FL, ONE, OX0, GF = 4, 5, 6, 7, 2, 3
    a(f'v_lshrrev_b32 v{T0}, 2, v{L}')
    a(f'v_lshlrev_b32 v{T1}, 7, v{T0}')
    a(f'v_and_b32 v{T2}, 3, v{I}')
    a(f'v_lshl_add_u32 v{T1}, v{T2}, 3, v{T1}')
    a(f'v_lshrrev_b32 v{T0}, 1, v{T0}')
    a(f'v_and_b32 v{T0}, 3, v{T0}')
    a(f'v_xor_b32 v{T0}, s46, v{T0}')
    a(f'v_lshl_add_u32 v{T0}, v{T0}, 5, v{T1}')
    a(f'v_add_u32 v{AR}, {HS[0]}, v{T0}')
    a(f'v_mov_b32 v{PO}, v30'); a(f'v_mov_b32 v{FL}, v31'); a(f'v_mov_b32 v{GF}, v32'); a(f'v_mov_b32 v{OX0}, v33'); a(f'v_mov_b32 v{ONE}, 1')
    a(f's_mul_i32 s24, s46, {3*8192}')
    a(f's_lshl_b32 s25, s46, 14')
    a(f's_add_u32 s25, s25, {48*8192}')
    a('s_movk_i32 s27, 4096'); a('s_movk_i32 s28, 8192')
    cscale = math.log2(math.e) / math.sqrt(128.0)
    a(f's_mov_b32 s60, {f32bits(cscale):#x}')

    def FA(s, t): return F0 + s*44 + 12 + t*4
    def FB(s, mt): return F0 + s*44 + mt*4
    def frag_reads(n):
        s = n % 2
        it = []
        for mt in range(3):
            it.append(f'ds_read_b128 {vr(FB(s,mt),4)}, v{XR+(n&1)} offset:{((n>>1)%3)*12288+mt*2048}')
        for t in range(8):
            for half in range(2):
                it.append(f'ds_read_b64_tr_b16 {vr(FA(s,t)+2*half,2)}, v{WQ+t} offset:{(n%4)*16384+half*1024}')
        return it
    def mfmas(n):
        s = n % 2; it = []
        for t in range(8):
            for mt in range(3):
                d = vr(QA+(t*3+mt)*4, 4)
                c = '0' if n == 0 else d
                it.append(f'v_mfma_f32_16x16x32_bf16 {d}, {vr(FA(s,t),4)}, {vr(FB(s,mt),4)}, {c}')
        return it
    set0 = [F0 + 4*i for i in range(11)]
    set1 = [F0 + 44 + 4*i for i in range(11)]
    KFt = set1 + [SP]
    QBt = set0 + [SP+4]
    PB = SP + 8; TM = SP + 26
    VF32 = QA; VF16 = QA + 32
    SA = QA + 48
    QX = [QA + 84 + 4*i for i in range(3)]
    def kf(kt, s): return KFt[kt*4+s]
    def v_addrs(): return [f'v_xor_b32 v{WQ+t}, {t*32}, v{VRD}' for t in range(8)]
    def k_reads():
        it = []
        for s in range(4):
            for kt in range(3):
                r = kf(kt, s)
                it.append(f'ds_read_b64 {vr(r,2)}, v{WQ+8+2*s} offset:{kt*16384}')
                it.append(f'ds_read_b64 {vr(r+2,2)}, v{WQ+8+2*s+1} offset:{kt*16384}')
        return it
    def v_reads():
        it = []
        for t in range(8):
            it.append(f'ds_read_b64_tr_b16 {vr(VF32+4*t,2)}, v{WQ+t} offset:{VT[0]-QS}')
            it.append(f'ds_read_b64_tr_b16 {vr(VF32+4*t+2,2)}, v{WQ+t} offset:{VT[1]-QS}')
        for t in range(8):
            it.append(f'ds_read_b64_tr_b16 {vr(VF16+2*t,2)}, v{WQ+t} offset:{VT[2]-QS}')
        return it
    a('s_waitcnt vmcnt(0)'); a.vm = []
    a('s_barrier')
    st_()
    em(a, frag_reads(0))
    for n in range(17):
        a.comment(f'--- kstep {n}')
        a('s_waitcnt lgkmcnt(0)')
        a('s_barrier')
        if n in (3, 8, 13): st_()
        interleave(a, mfmas(n), frag_reads(n+1), ratio=1.0)
    def qb(s, qt): return QBt[qt*4+s]
    def cvt_q(qt):
        it = []
        for s in range(4):
            for hh in range(2):
                d = QA + ((2*s+hh)*3+qt)*4
                it.append(f'v_cvt_pk_bf16_f32 v{qb(s,qt)+2*hh}, v{d}, v{d+1}')
                it.append(f'v_cvt_pk_bf16_f32 v{qb(s,qt)+2*hh+1}, v{d+2}, v{d+3}')
        return it
    def sa(kt, qt): return SA + (qt*3+kt)*4
    def s_mfma(qt):
        it = []
        for s in range(4):
            for kt in range(3):
                d = vr(sa(kt,qt), 4)
                c = '0' if s == 0 else d
                it.append(f'v_mfma_f32_16x16x32_bf16 {d}, {vr(kf(kt,s),4)}, {vr(qb(s,qt),4)}, {c}')
        return it
    def softmax(qt):
        b = sa(0, qt); m = TM + 2*qt; t = m + 1
        it = []
        it.append(f'v_max3_f32 v{m}, v{b}, v{b+1}, v{b+2}')
        it.append(f'v_max3_f32 v{t}, v{b+3}, v{b+4}, v{b+5}')
        it.append(f'v_max3_f32 v{m}, v{m}, v{b+6}, v{b+7}')
        it.append(f'v_max3_f32 v{t}, v{t}, v{b+8}, v{b+9}')
        it.append(f'v_max3_f32 v{m}, v{m}, v{b+10}, v{b+11}')
        it.append(f'v_max_f32 v{m}, v{m}, v{t}')
        for sw in ('v_permlane32_swap_b32', 'v_permlane16_swap_b32'):
            it.append(f'v_mov_b32 v{t}, v{m}')
            it.append(f'{sw} v{m}, v{t}')
            it.append(f'v_max_f32 v{m}, v{m}, v{t}')
        it.append(f'v_mul_f32 v{m}, s60, v{m}')
        for j in range(12): it.append(f'v_fma_f32 v{b+j}, v{b+j}, s60, -v{m}')
        for j in range(12): it.append(f'v_exp_f32 v{b+j}, v{b+j}')
        it.append(f'v_add_f32 v{m}, v{b}, v{b+1}')
        it.append(f'v_add_f32 v{t}, v{b+2}, v{b+3}')
        for j in range(4, 12, 2):
            it.append(f'v_add_f32 v{m}, v{m}, v{b+j}')
            it.append(f'v_add_f32 v{t}, v{t}, v{b+j+1}')
        it.append(f'v_add_f32 v{m}, v{m}, v{t}')
        for sw in ('v_permlane32_swap_b32', 'v_permlane16_swap_b32'):
            it.append(f'v_mov_b32 v{t}, v{m}')
            it.append(f'{sw} v{m}, v{t}')
            it.append(f'v_add_f32 v{m}, v{m}, v{t}')
        it.append(f'v_rcp_f32 v{m}, v{m}')
        for j in range(12): it.append(f'v_mul_f32 v{b+j}, v{b+j}, v{m}')
        for j in range(6): it.append(f'v_cvt_pk_bf16_f32 v{PB+qt*6+j}, v{b+2*j}, v{b+2*j+1}')
        return it
    X0 = KFt[:8]
    X1 = KFt[8:12] + [sa(0,0), sa(1,0), sa(2,0)] + QX[:1]
    def oa(t, qt): return (X0, X1, X0)[qt][t]
    def pv_mfma(qt):
        it = []; pp = PB + qt*6
        for t in range(8):
            d = vr(oa(t,qt), 4)
            it.append(f'v_mfma_f32_16x16x32_bf16 {d}, {vr(VF32+4*t,4)}, {vr(pp,4)}, 0')
        for t in range(8):
            d = vr(oa(t,qt), 4)
            it.append(f'v_mfma_f32_16x16x16_bf16 {d}, {vr(VF16+2*t,2)}, {vr(pp+4,2)}, {d}')
        return it
    def o_pack(qt, giver):
        it = []
        for s in range(4):
            r = qb(s, qt)
            for hh in range(2):
                d = oa(2*s+hh, qt)
                it.append(f'v_cvt_pk_bf16_f32 v{r+2*hh}, v{d}, v{d+1}')
                it.append(f'v_cvt_pk_bf16_f32 v{r+2*hh+1}, v{d+2}, v{d+3}')
            if not giver: it.append(f'ds_write_b128 v{OXW}, {vr(r,4)} offset:{(qt*4+s)*1024}')
        return it
    def o_give():
        return [(f'buffer_store_dwordx4 {vr(qb(s,qt),4)}, v{OXW}, s[4:7], {["0","s27","s28"][qt]} offen offset:{s*1024}{CO}', ('G', 0)) for qt in range(3) for s in range(4)]
    def zipl(*ls):
        out = []; n = max(len(x) for x in ls)
        for i in range(n):
            for x in ls:
                if i < len(x): out.append(x[i])
        return out
    a('s_waitcnt lgkmcnt(0)')
    a('s_barrier')
    st_()
    m17 = mfmas(17)
    m17 = [m17[t*3+mt] for mt in range(3) for t in range(8)]
    interleave(a, m17[:8], v_addrs(), ratio=1)
    em(a, m17[8:12])
    interleave(a, m17[12:20], cvt_q(0), ratio=2)
    interleave(a, m17[20:24], cvt_q(1)[:8], ratio=2)
    interleave(a, k_reads(), cvt_q(1)[8:] + cvt_q(2), ratio=1)
    s0 = s_mfma(0)
    for s4 in range(4):
        a(f's_waitcnt lgkmcnt({min(15, 18-6*s4)})')
        em(a, s0[3*s4:3*s4+3])
    sm0, sm1, sm2 = softmax(0), softmax(1), softmax(2)
    em(a, s_mfma(1)[:4])
    interleave(a, s_mfma(1)[4:] + s_mfma(2), sm0[:40], ratio=2)
    st_()
    a('s_barrier')
    st_()
    z = zipl(sm0[40:], sm1[:33])
    interleave(a, v_reads(), z[:48], ratio=2)
    a('s_waitcnt lgkmcnt(0)')
    a('s_barrier')
    em(a, z[48:])
    z = zipl(sm1[33:], sm2[:40])
    interleave(a, pv_mfma(0), z, ratio=2)
    a('s_cmp_eq_u32 s57, 1')
    a('s_cbranch_scc1 GIVER')
    hist = list(a.hist)
    for giver in (0, 1):
        if giver:
            a.label('GIVER'); a.hist = list(hist)
        z = zipl(sm2[40:], o_pack(0, giver))
        interleave(a, pv_mfma(1), z, ratio=2)
        interleave(a, pv_mfma(2), o_pack(1, giver), ratio=1.25)
        em(a, o_pack(2, giver))
        if giver: em(a, o_give())
        else:
            a('s_waitcnt lgkmcnt(0)')
            a('s_branch ATT_END')
    a.label('ATT_END')
    st_()
    a('s_barrier')
    if fine: st_.on = True
    st_()
    AFR = 8; AD = 5; LA = 4
    ACC = 28
    BF = 160
    def bf(k, mt): return BF + (k*3+mt)*4
    def acc(r, mt): return ACC + (r*3+mt)*4
    NK = 144
    def a_reads(n):
        k = n % 8
        d = AFR + (n % AD)*4
        return [f'ds_read_b64_tr_b16 {vr(d+2*half,2)}, v{AR} offset:{k*4096+half*2048}' for half in range(2)]
    def b_reads(k):
        return [f'ds_read_b128 {vr(bf(k,mt),4)}, v{OX0} offset:{(k>>2)*12288+(mt*4+(k&3))*1024}' for mt in range(3)]
    def o_mfmas(n):
        u, k = n // 8, n % 8
        it = []
        for mt in range(3):
            d = vr(acc(u % 9, mt), 4)
            c = '0' if (k == 0 and u < 9) else d
            it.append(f'v_mfma_f32_16x16x32_bf16 {d}, {vr(AFR+(n%AD)*4,4)}, {vr(bf(k,mt),4)}, {c}')
        return it
    def p_pack(r):
        it = []
        for mt in range(3):
            d = acc(r, mt)
            if r < 8: q = acc(r & ~1, mt) + 2*(r & 1)
            else: q = acc(8, 0) + 2*mt
            it.append(f'v_cvt_pk_bf16_f32 v{q}, v{d}, v{d+1}')
            it.append(f'v_cvt_pk_bf16_f32 v{q+1}, v{d+2}, v{d+3}')
        return it
    def p_store(pp):
        it = []
        if pp < 4:
            for mt in range(3):
                it.append(f's_add_u32 s26, s24, {(pp*12+mt)*8192}')
                it.append((f'buffer_store_dwordx4 {vr(acc(2*pp,mt),4)}, v{PO}, s[4:7], s26 offen{CO}', ('P', pp)))
        else:
            it.append('s_add_u32 s26, s25, 8192')
            it.append((f'buffer_store_dwordx4 {vr(acc(8,0),4)}, v{PO}, s[4:7], s25 offen{CO}', ('P', pp)))
            it.append((f'buffer_store_dwordx4 {vr(acc(8,0)+4,4)}, v{PO}, s[4:7], s26 offen{CO}', ('P', pp)))
        return it
    def flag(ph, upto):
        def f():
            a.wait_vm(lambda t: t[0] == 'P' and t[1] <= upto)
            a(f'buffer_store_dword v{ONE}, v{FL}, s[4:7], 0 offen offset:{ph*512}{CO}', ('F', ph))
        return f
    def gflag():
        a('s_waitcnt vmcnt(0)'); a.vm = []
        a(f'buffer_store_dword v{ONE}, v{GF}, s[4:7], 0 offen{CO}', ('F', 9))
    lq = []
    def ds(x, tag):
        a(x); lq.append(tag)
    def need(tags):
        idx = max((i for i, t in enumerate(lq) if t in tags), default=-1)
        if idx < 0: return
        n = len(lq) - 1 - idx
        a(f's_waitcnt lgkmcnt({min(n, 15)})')
        del lq[:idx+1]
    for n in range(LA):
        for x in a_reads(n): ds(x, ('A', n))
        for x in b_reads(n): ds(x, ('B', n))
    LASTB = int(o.get('lastb', 15))
    ER = int(o.get('er', 1))
    GU = int(o.get('gu', 1))
    SA_, SB_ = int(o.get('sa', 13)), int(o.get('sb', 15))
    FA_, FB_ = int(o.get('fa', 15)), int(o.get('fb', 17))
    for u in range(18):
        a.comment(f'--- half-round {u}')
        oth = {g: [] for g in range(24)}
        g = 3
        if u >= 10:
            for x in p_pack(u-10):
                oth[g].append(x); g += 1
        if u == FA_ and FA_ > LASTB: oth[1].append(flag(0, 1))
        if u == FB_: oth[1].append(flag(1, 2))
        st = []
        if u == SA_: st += p_store(0) + p_store(1)
        if u == SB_: st += p_store(2)
        for x in st:
            oth[g].append(x)
            if not isinstance(x, str): g += 1
        for k in range(8):
            n = u*8 + k
            need({('A', n), ('B', n)} | ({('A', n+3)} if (k == 4 and u <= LASTB and ER) else set()))
            if k == 4 and u < 17:
                if u <= LASTB:
                    if u == GU: a('s_waitcnt vmcnt(0)'); a.vm = []
                    if u == FA_: a.wait_vm(lambda t: t[0] == 'P' and t[1] <= 1)
                    a('s_barrier')
                    if (u in (3, 9) and not fine) or (fine and u >= 2): st_()
                dlt = HS[(u+1) % 4] - HS[u % 4]
                a(f'v_add_u32 v{AR}, {dlt & 0xffffffff:#x}, v{AR}')
            rd = []
            if n + LA < NK: rd += [(x, ('A', n+LA)) for x in a_reads(n+LA)]
            if n + LA < 8: rd += [(x, ('B', n+LA)) for x in b_reads(n+LA)]
            if 65 <= n <= 72: rd += [(x, ('B', n+7)) for x in b_reads(n-65)]
            for i, m in enumerate(o_mfmas(n)):
                a(m)
                take = rd[:2] if len(rd) > 3 - i else rd[:1]
                rd = rd[len(take):]
                for x, tg in take: ds(x, tg)
                em(a, oth[k*3+i])
            assert not rd
    em(a, p_store(3))
    em(a, p_pack(8))
    em(a, p_store(4))
    st_()
    flag(2, 4)()
    st_()
    a('s_lshl_b32 s61, s46, 3')
    a('s_lshr_b32 s47, s43, 1')
    a('s_add_u32 s61, s61, s47')
    a('s_cmp_ge_u32 s61, 20')
    a('s_cbranch_scc1 C_DONE')
    lane_ids(a)
    reduce_block(a, 'CR', 2, 36, 61, 4, 8, o, st_ if (ts and not fine) else None)
    a.label('C_DONE')
    st_.dump(40, 41, 0, 3)
    a('s_endpgm')

    h = Asm()
    sh = Stamps(h, ts, tsmode); sh.n = 1
    h.label('HELPER')
    WO = 8; XO = 12; KO = 16; VO = 20; OW = 24; AT = 30; PV_ = 32; CV = 33; PA = 34; PD = 35; ZA = 36
    h('s_lshl_b32 s47, s3, 1')
    h('s_add_u32 s47, s47, s44')
    modn(h, 47, 48, 9)
    h('s_mov_b32 s60, s47')
    h('s_and_b32 s48, s46, 1')
    h('s_lshl_b32 s48, s48, 17')
    h('s_lshl_b32 s49, s43, 1')
    h('s_lshr_b32 s50, s46, 1')
    h('s_add_u32 s49, s49, s50')
    h('s_lshl_b32 s49, s49, 8')
    h('s_add_u32 s48, s48, s49')
    h(f'v_lshlrev_b32 v{T0}, 13, v{G}')
    h(f'v_add_u32 v{T0}, s48, v{T0}')
    h(f'v_lshlrev_b32 v{T1}, 1, v{G}')
    h(f'v_xor_b32 v{T1}, v{T1}, v{I}')
    h(f'v_lshlrev_b32 v{T1}, 4, v{T1}')
    h(f'v_xor_b32 v{T2}, 128, v{T1}')
    h(f'v_add_u32 v{T1}, v{T0}, v{T1}')
    h(f'v_add_u32 v{T2}, v{T0}, v{T2}')
    for q in range(4):
        h(f'v_add_u32 v{WO+q}, {4*q*8192 - q*1024}, v{T1 if (q >> 1) == 0 else T2}')
    h('s_mul_i32 s48, s44, 96')
    h('s_mul_i32 s49, s46, 24')
    h('s_add_u32 s48, s48, s49')
    h('s_mul_i32 s48, s48, 1152')
    h(f'v_lshrrev_b32 v{T0}, 3, v{L}')
    h(f'v_mul_u32_u24 v{T0}, 1152, v{T0}')
    h(f'v_add_u32 v7, s48, v{T0}')
    h(f'v_and_b32 v{T1}, 7, v{L}')
    h(f'v_xor_b32 v{T1}, v{T1}, v{G}')
    h('s_and_b32 s49, s46, 1')
    h('s_lshl_b32 s49, s49, 2')
    h(f'v_xor_b32 v{T1}, s49, v{T1}')
    h(f'v_lshlrev_b32 v{T1}, 4, v{T1}')
    h(f'v_xor_b32 v{T2}, 64, v{T1}')
    h(f'v_add_u32 v{T1}, v7, v{T1}')
    h(f'v_add_u32 v{T2}, v7, v{T2}')
    for pp in range(3):
        h(f'v_add_u32 v{XO+pp}, {pp*9216 - pp*1024}, v{T1 if pp % 2 == 0 else T2}')
    h('s_lshl_b32 s56, s46, 12')
    h('s_lshl_b32 s57, s46, 13')
    h('s_mul_i32 s58, s46, 3072')
    h('s_waitcnt lgkmcnt(0)')
    h('s_cmp_eq_u32 s42, 0')
    h('s_cselect_b64 s[24:25], s[24:25], s[32:33]')
    h('s_cselect_b64 s[26:27], s[26:27], s[34:35]')
    h('s_cselect_b64 s[28:29], s[28:29], s[36:37]')
    h('s_cselect_b64 s[30:31], s[30:31], s[38:39]')
    h('s_cselect_b64 s[32:33], s[20:21], s[22:23]')
    h(f's_mov_b32 s59, {KV_B}')
    h(f's_cselect_b32 s59, {KV_A}, s59')
    srd(h, 4, 24, 25, X_BYTES)
    srd(h, 8, 30, 31, W_BYTES)
    sh()
    def x_chunk(c):
        it = []
        it.append('s_lshl_b32 s48, s60, 7')
        it.append(f's_add_u32 m0, s58, {XREG + (c % 3)*12288}')
        for pp in range(3):
            it.append((f'buffer_load_dwordx4 v{XO+pp}, s[4:7], s48 offen offset:{pp*1024}{M("x")} lds', ('X', c)))
        it.append('s_add_u32 s60, s60, 1')
        it.append('s_cmp_eq_u32 s60, 9')
        it.append('s_cselect_b32 s60, 0, s60')
        return it
    def dma_stage(n):
        it = []
        it.append('s_lshl_b32 s49, s47, 19')
        if n & 1: it.append(f's_add_u32 s49, s49, {32*8192}')
        it.append(f's_add_u32 m0, s56, {QS + (n % 4)*16384}')
        for q in range(4):
            it.append((f'buffer_load_dwordx4 v{WO+q}, s[8:11], s49 offen offset:{q*1024}{M("wq")} lds', ('S', n)))
        if n & 1:
            it.append('s_add_u32 s47, s47, 1')
            it.append('s_cmp_eq_u32 s47, 9')
            it.append('s_cselect_b32 s47, 0, s47')
        return it
    em(h, x_chunk(0)); em(h, dma_stage(0)); em(h, dma_stage(1))
    srd(h, 12, 26, 27, 's59')
    srd(h, 16, 28, 29, 's59')
    srd(h, 20, 32, 33, W_BYTES)
    srd(h, 36, 54, 55, 256)
    srd(h, 28, 40, 41, WS_BYTES)
    h('s_lshl_b32 s51, s44, 1')
    h('s_lshr_b32 s50, s46, 1')
    h('s_add_u32 s51, s51, s50')
    h('s_lshl_b32 s50, s43, 1')
    h('s_and_b32 s59, s46, 1')
    h('s_add_u32 s50, s50, s59')
    h('s_cmp_eq_u32 s42, 0')
    h('s_cselect_b32 s59, 4, 5')
    h('s_cselect_b32 s50, s43, s50')
    h('s_lshl_b32 s51, s51, s59')
    h('s_add_u32 s51, s51, s50')
    h('s_mul_i32 s51, s51, 12288')
    h(f'v_lshlrev_b32 v7, 8, v{G}')
    h(f'v_add_u32 v7, s51, v7')
    h(f'v_xor_b32 v{T1}, v{I}, v{G}')
    h(f'v_lshlrev_b32 v{T1}, 4, v{T1}')
    for q in range(4):
        h(f'v_xor_b32 v{T2}, {q*64}, v{T1}')
        h(f'v_add_u32 v{KO+q}, v7, v{T2}')
    h(f'v_lshlrev_b32 v{T1}, 1, v{G}')
    h(f'v_xor_b32 v{T1}, v{I}, v{T1}')
    h(f'v_lshlrev_b32 v{T1}, 4, v{T1}')
    h(f'v_add_u32 v{VO}, v7, v{T1}')
    h(f'v_xor_b32 v{T1}, 128, v{T1}')
    h(f'v_add_u32 v{VO+1}, v7, v{T1}')
    h(f'v_cmp_eq_u32 vcc, 256, v0')
    h('s_lshr_b32 s50, s63, 4')
    h('s_lshl_b32 s50, s50, 4')
    h(f'v_mov_b32 v{ZA}, s50')
    h(f'v_mov_b32 v{T2}, {OOB:#x}')
    h(f'v_cndmask_b32 v{AT}, v{T2}, v{ZA}, vcc')
    h(f'v_mov_b32 v{AT+1}, 1')
    h('s_xor_b32 s50, s63, 1')
    h('s_lshl_b32 s51, s50, 7')
    h(f's_add_u32 s51, s51, {GOFF}')
    h(f'v_and_b32 v{T1}, 1, v{L}')
    h(f'v_lshlrev_b32 v{T1}, 2, v{T1}')
    h(f'v_add_u32 v{PA}, s51, v{T1}')
    h('s_mul_i32 s50, s50, 24576')
    h('s_mul_i32 s51, s46, 6144')
    h('s_add_u32 s50, s50, s51')
    h(f's_add_u32 s50, s50, {OSOFF}')
    h(f'v_lshlrev_b32 v{T1}, 4, v{L}')
    h(f'v_add_u32 v{PD}, s50, v{T1}')
    h('s_movk_i32 s34, 4096')
    h('s_movk_i32 s35, 8192')
    def kv_tile(which, tile):
        it = []
        base = KREG + tile*16384 if which == 0 else VT[tile]
        sr = 12 if which == 0 else 16
        so = ['0', 's34', 's35'][tile]
        it.append(f's_add_u32 m0, s56, {base}')
        for q in range(4):
            vo = KO + q if which == 0 else VO + (q & 1)
            it.append((f'buffer_load_dwordx4 v{vo}, s[{sr}:{sr+3}], {so} offen offset:{q*1024}{M("kv")} lds', ('K' if which == 0 else 'V', tile)))
        return it
    h('s_lshl_b32 s51, s46, 6')
    h('s_mul_i32 s51, s51, 1152')
    h(f'v_add_u32 v{T0}, s51, v{T0}')
    h(f'v_and_b32 v{T1}, 7, v{L}')
    h(f'v_lshlrev_b32 v{T2}, 1, v{G}')
    h(f'v_xor_b32 v{T1}, v{T1}, v{T2}')
    h(f'v_lshl_add_u32 v{T0}, v{T1}, 4, v{T0}')
    for q in range(4):
        h(f'v_add_u32 v{OW+q}, {q*8192}, v{T0}')
    h('s_mov_b32 s61, s44')
    h(f's_mul_i32 s32, s43, {256*1152}')
    h('s_xor_b32 s33, s43, 1')
    h(f's_mul_i32 s33, s33, {256*1152}')
    def wo_half(u):
        slot = HS[u % 4]
        it = []
        it.append('s_lshl_b32 s48, s61, 7')
        it.append(f's_add_u32 s48, s48, s{32 if u < 9 else 33}')
        it.append(f's_add_u32 s49, s48, {32*1152}')
        it.append(f's_add_u32 m0, s57, {slot}')
        for q in range(4):
            it.append((f'buffer_load_dwordx4 v{OW+q}, s[20:23], s48 offen offset:{q*1024}{M("wo")} lds', ('W', u)))
        it.append(f's_add_u32 m0, s57, {slot+4096}')
        for q in range(4):
            it.append((f'buffer_load_dwordx4 v{OW+q}, s[20:23], s49 offen offset:{q*1024}{M("wo")} lds', ('W', u)))
        it.append('s_add_u32 s61, s61, 1')
        it.append('s_cmp_eq_u32 s61, 9')
        it.append('s_cselect_b32 s61, 0, s61')
        return it
    spf = str(o.get('spf', ''))
    pf = []
    if 'w' in spf:
        h('s_lshl_b32 s50, s46, 6')
        h('s_mul_i32 s50, s50, 1152')
        h('s_add_u32 s50, s50, s32')
        h('s_lshl_b32 s51, s44, 7')
        h('s_add_u32 s50, s50, s51')
        h('s_add_u32 s24, s20, s50'); h('s_addc_u32 s25, s21, 0')
        h('s_lshl_b32 s50, s44, 2')
        h('s_add_u32 s50, s50, s46')
        h(f's_mul_i32 s50, s50, {8*1152}')
        h('s_add_u32 s50, s50, s32')
        h('s_add_u32 s26, s20, s50'); h('s_addc_u32 s27, s21, 0')
        pf += [f's_load_dword s{96 + (i % 4)}, s[26:27], {(i >> 1)*1152 + 1024 + (i & 1)*64}' for i in range(16)]
        pf += [f's_load_dword s{96 + (i % 4)}, s[24:25], {(i >> 1)*1152 + (i & 1)*64}' for i in range(128)]
    npf = int(o.get('npf', 5)); pf0 = int(o.get('pf0', 0))
    em(h, x_chunk(1)); em(h, dma_stage(2))
    sh()
    h.wait_vm(lambda t: t == ('S', 0))
    h('s_barrier')
    h('s_cmp_lg_u32 s46, 0')
    h('s_cbranch_scc1 H_NOCNT')
    h('s_lshr_b32 s50, s63, 4')
    h('s_lshl_b32 s50, s50, 4')
    h('s_mov_b32 s100, 1')
    h('s_atomic_add s100, s[54:55], s50')
    h.label('H_NOCNT')
    em(h, dma_stage(3)); em(h, x_chunk(2))
    kats = [int(x) for x in str(o.get('kat', '8')).split(',')]
    vm0 = list(h.vm)
    if len(kats) > 1:
        h(f's_and_b32 s59, s44, {len(kats)-1}')
        for vi in range(1, len(kats)):
            h(f's_cmp_eq_u32 s59, {vi}')
            h(f's_cbranch_scc1 HQ{vi}')
    n0 = sh.n
    for vi, kat in enumerate(kats):
        h.vm = list(vm0); sh.n = n0
        if vi: h.label(f'HQ{vi}')
        for n in range(17):
            h.wait_vm(lambda t: t == ('S', n+1) or t == ('X', (n+1) >> 1))
            h('s_barrier')
            if n in (3, 8, 13): sh()
            if n + 4 <= 17: em(h, dma_stage(n+4))
            if (n & 1) and (n >> 1) + 3 <= 8: em(h, x_chunk((n >> 1) + 3))
            if o.get('kall'):
                if n == kat:
                    for tile in range(3): em(h, kv_tile(0, tile))
            elif kat <= n < kat + 3: em(h, kv_tile(0, n - kat))
            if n >= 14: em(h, kv_tile(1, n - 14))
            if pf0 <= n <= int(o.get('pf1', 16)): em(h, pf[(n-pf0)*npf:(n-pf0+1)*npf])
        h.wait_vm(lambda t: t[0] == 'K')
        assert all(t[0] == 'V' for t in h.vm), h.vm
        h.vm = [('V', 0)]*12
        if vi + 1 < len(kats): h('s_branch HQ_END')
    h.label('HQ_END')
    sh()
    h('s_barrier')
    cload = f'buffer_load_dword v{CV}, v{ZA}, s[36:39], 0 offen{CO}'
    h(cload, ('C', 0))
    em(h, wo_half(0))
    h.wait_vm(lambda t: t[0] == 'V')
    sh()
    h('s_barrier')
    h('s_barrier')
    em(h, wo_half(1)); em(h, wo_half(2))
    h.wait_vm(lambda t: t == ('W', 0))
    if int(o.get('w3early', 0)): em(h, wo_half(3))
    sh()
    h('s_barrier')
    check_or_poll(h, 'HC', cload, CV, 16)
    if not int(o.get('w3early', 0)): em(h, wo_half(3))
    PI, PC = int(o.get('pi', 3)), int(o.get('pc', 5))
    h('s_lshl_b32 s24, s63, 7')
    h(f's_add_u32 s24, s24, {GOFF}')
    h('s_xor_b32 s25, s24, 128')
    h('s_lshl_b32 s26, s42, 4')
    h('s_add_u32 s26, s26, s62')
    h(f's_mul_i32 s26, s26, {NP*4}')
    h('s_add_u32 s26, s26, s46')
    h('s_lshl_b32 s26, s26, 7')
    h('s_lshr_b32 s27, s43, 1')
    h('s_lshl_b32 s27, s27, 2')
    h('s_add_u32 s26, s26, s27')
    h(f's_add_u32 s26, s26, {FOFF}')
    h('s_mov_b32 s100, 1')
    assert GOFF % 256 == 0
    nxt = 4
    for u in range(LASTB+1):
        if u < LASTB:
            assert nxt > u+1
            h.wait_vm(lambda t: t == ('W', u+1) or (u == 7 and t[0] == 'O'))
        else:
            assert nxt == 18
            h.wait_vm(lambda t: t[0] == 'W')
        h('s_barrier')
        if u == GU:
            h('s_cmp_lg_u32 s46, 0')
            h('s_cbranch_scc1 H_NOG')
            h('s_atomic_add s100, s[40:41], s24')
            h.label('H_NOG')
        if u == FA_: h('s_atomic_add s100, s[40:41], s26')
        if u == PC:
            h('s_mov_b32 s59, 0')
            h.label('HP_POLL')
            h('s_waitcnt lgkmcnt(0)')
            h('s_cmp_ge_u32 s101, 1')
            h('s_cbranch_scc1 HP_GO')
            h('s_load_dword s101, s[40:41], s25 glc')
            h('s_add_u32 s59, s59, 1')
            h('s_cmp_lt_u32 s59, 0x40000')
            h('s_cbranch_scc1 HP_POLL')
            h.label('HP_GO')
            h('s_mul_i32 s48, s46, 6144')
            h('s_mov_b32 m0, s48')
            for q in range(4): h(f'buffer_load_dwordx4 v{PD}, s[28:31], 0 offen offset:{q*1024}{CO} lds', ('O', q))
            h('s_add_u32 m0, s48, 4096')
            for q in range(2): h(f'buffer_load_dwordx4 v{PD}, s[28:31], s34 offen offset:{q*1024}{CO} lds', ('O', q))
        if u == PI: h('s_load_dword s101, s[40:41], s25 glc')
        if nxt <= 17 and nxt - 4 <= u - 1 + ER:
            em(h, wo_half(nxt)); nxt += 1
    assert nxt == 18, nxt
    sh()
    srd(h, 8, 52, 53, OUT_BYTES)
    h('s_lshl_b32 s61, s46, 3')
    h('s_lshr_b32 s47, s43, 1')
    h('s_add_u32 s61, s61, s47')
    h('s_cmp_ge_u32 s61, 24')
    h('s_cbranch_scc1 HA_DONE')
    reduce_block(h, 'HA', 0, 0, 61, 28, 8, o, sh if ts else None)
    h.label('HA_DONE')
    sh()
    h('s_sub_u32 s61, 31, s61')
    h('s_cmp_ge_u32 s61, 12')
    h('s_cbranch_scc1 HB_DONE')
    h('s_nop 1')
    reduce_block(h, 'HB', 1, 24, 61, 28, 8, o, sh if ts else None)
    h.label('HB_DONE')
    sh.dump(40, 41, 0, 3)
    h.label('M_END')
    h('s_endpgm')
    print('main: compute inst', a.ninst, 'nops', a.nops_inserted, 'helper', h.ninst, 'stamps', st_.n, sh.n)
    return p.text() + a.text() + h.text()

if __name__ == '__main__':
    out = sys.argv[1]
    o = dict(x.split('=') if '=' in x else (x, 1) for x in sys.argv[2:])
    txt = build_file([dict(name=NAME + '_kernel', grid=256, block=512, lds=163840, body=gen_main(o), vgpr=256, sgpr=102, accum=256)])
    open(out, 'w').write(txt)
```

```python
import sys, struct, math
sys.path.insert(0, 'gen')
from asmgen import Asm, interleave
from common import *
from v2 import Stamps, srd, em, f32bits, vr

X_BYTES = 16*48*576*2
W_BYTES = 576*4096*2
KV_A = 16*16*48*128*2
KV_B = 16*32*48*128*2
OUT_BYTES = 16*48*1152*2
NBLK = 56
P_BYTES = 32*NBLK*8*1024
OSOFF = P_BYTES
FOFF = OSOFF + 256*24576
NP = 3
GOFF = FOFF + 32*NP*4*128
WS_BYTES = GOFF + 256*128
OOB = 0x7ffffff0

KREG = 0; XREG = 49152; QS = 98304
VT = [131072, 147456, 98304]
HS = [65536, 32768, 98304, 131072]
L, I, G, T0, T1, T2 = 1, 2, 3, 4, 5, 6
CO = ' sc0 sc1'
SLEEP = 1

def lane_ids(a):
    a(f'v_and_b32 v{L}, 63, v0')
    a(f'v_and_b32 v{I}, 15, v0')
    a(f'v_lshrrev_b32 v{G}, 4, v{L}')

def modn(a, d, t, n):
    a(f's_cmp_ge_u32 s{d}, {n}')
    a(f's_cselect_b32 s{t}, {n}, 0')
    a(f's_sub_u32 s{d}, s{d}, s{t}')

def poll(a, lbl, load, vreg, expect, keep_vm=False):
    vm = list(a.vm)
    a('s_mov_b32 s59, 0')
    a.label(f'{lbl}_POLL')
    a(load)
    a('s_waitcnt vmcnt(0)')
    a(f'v_cmp_gt_u32 vcc, {expect}, v{vreg}')
    a('s_add_u32 s59, s59, 1')
    a('s_nop 0')
    a(f's_cbranch_vccz {lbl}_GO')
    a(f's_sleep {SLEEP}')
    a('s_cmp_lt_u32 s59, 0x40000')
    a(f's_cbranch_scc1 {lbl}_POLL')
    a.label(f'{lbl}_GO')
    a.vm = vm if keep_vm else []

def check_or_poll(a, lbl, load, vreg, expect):
    a(f'v_cmp_gt_u32 vcc, {expect}, v{vreg}')
    a('s_nop 1')
    a(f's_cbranch_vccz {lbl}_GO')
    poll(a, lbl, load, vreg, expect, keep_vm=True)

def reduce_block(a, lbl, phase, blk0, sidx, srd_ws, srd_out, o, st=None):
    M = lambda k: (' ' + o[k].replace('+', ' ')) if k in o else ''
    a(f's_add_u32 s47, s{sidx}, {blk0}')
    a('s_mul_i32 s48, s47, 171')
    a('s_lshr_b32 s48, s48, 11')
    a('s_mul_i32 s49, s48, 12')
    a('s_sub_u32 s49, s47, s49')
    a('s_mul_i32 s50, s49, 43')
    a('s_lshr_b32 s50, s50, 7')
    a('s_mul_i32 s51, s50, 3')
    a('s_sub_u32 s51, s49, s51')
    a('s_lshr_b32 s56, s49, 1')
    a('s_and_b32 s57, s49, 1')
    a('s_lshl_b32 s57, s57, 1')
    a('s_cmp_eq_u32 s48, 4')
    a('s_cselect_b32 s50, s56, s50')
    a('s_cselect_b32 s51, s57, s51')
    a('s_cselect_b32 s56, 1, 0')
    a('s_cselect_b32 s57, 0, 1')
    a('s_add_u32 s56, s56, s51')
    a('s_lshl_b32 s48, s48, 1')
    a('s_add_u32 s48, s48, s44')
    a('s_add_u32 s57, s57, s48')
    modn(a, 48, 58, 9); modn(a, 57, 58, 9)
    a('s_mul_i32 s58, s62, 110592')
    a('s_mul_i32 s59, s42, 1152')
    a('s_add_u32 s58, s58, s59')
    a('s_lshl_b32 s59, s50, 5')
    a('s_add_u32 s58, s58, s59')
    a(f'v_mul_u32_u24 v7, 2304, v{I}')
    a(f'v_lshl_add_u32 v7, v{G}, 3, v7')
    a(f'v_add_u32 v7, s58, v7')
    a('s_mul_i32 s51, s51, 36864')
    a('s_lshl_b32 s48, s48, 7')
    a('s_add_u32 s48, s48, s51')
    a('s_cmp_eq_u32 s56, 3')
    a('s_mul_i32 s56, s56, 36864')
    a(f's_cselect_b32 s56, {OOB:#x}, s56')
    a('s_lshl_b32 s57, s57, 7')
    a('s_add_u32 s57, s57, s56')
    a('s_lshl_b32 s51, s42, 4')
    a('s_add_u32 s51, s51, s62')
    a(f's_mul_i32 s56, s51, {NP*4}')
    a('s_add_u32 s56, s56, s50')
    a('s_lshl_b32 s56, s56, 7')
    a(f's_add_u32 s56, s56, {FOFF + phase*512}')
    a(f'v_and_b32 v{T0}, 7, v{L}')
    a(f'v_lshlrev_b32 v{T0}, 2, v{T0}')
    a(f's_mul_i32 s51, s51, {NBLK}')
    a('s_add_u32 s51, s51, s47')
    a('s_lshl_b32 s51, s51, 13')
    a(f'v_lshlrev_b32 v{T1}, 4, v{L}')
    a(f'v_add_u32 v{T1}, s51, v{T1}')
    poll(a, lbl, f'buffer_load_dword v{T2}, v{T0}, s[{srd_ws}:{srd_ws+3}], s56 offen{CO}', T2, 1)
    if st: st()
    a('s_movk_i32 s47, 4096')
    D = 16; ACC = 8
    for hq in range(8):
        so = ['0', 's47'][hq >> 2]
        a(f'buffer_load_dwordx4 {vr(D+4*hq,4)}, v{T1}, s[{srd_ws}:{srd_ws+3}], {so} offen offset:{(hq&3)*1024}{CO}', ('R', hq))
    a('s_mov_b32 s59, 0xffff0000')
    for hq in range(8):
        a.wait_vm(lambda t: t == ('R', hq))
        for j in range(4):
            r = D + 4*hq + j
            if hq == 0:
                a(f'v_lshlrev_b32 v{ACC+2*j}, 16, v{r}')
                a(f'v_and_b32 v{ACC+2*j+1}, s59, v{r}')
            else:
                a(f'v_lshlrev_b32 v{T2}, 16, v{r}')
                a(f'v_and_b32 v{r}, s59, v{r}')
                a(f'v_add_f32 v{ACC+2*j}, v{ACC+2*j}, v{T2}')
                a(f'v_add_f32 v{ACC+2*j+1}, v{ACC+2*j+1}, v{r}')
    for j in range(4):
        a(f'v_cvt_pk_bf16_f32 v{D+j}, v{ACC+2*j}, v{ACC+2*j+1}')
    a(f'buffer_store_dwordx2 {vr(D,2)}, v7, s[{srd_out}:{srd_out+3}], s48 offen{M("out")}')
    a(f'buffer_store_dwordx2 {vr(D+2,2)}, v7, s[{srd_out}:{srd_out+3}], s57 offen{M("out")}')

def gen_main(o):
    ts = o.get('ts'); tsmode = o.get('tsmode', 's_memrealtime')
    M = lambda k: (' ' + o[k].replace('+', ' ')) if k in o else ''
    p = Asm()
    p('s_cmp_ge_u32 s2, 256')
    p('s_cbranch_scc1 M_END')
    if ts: p(f'{tsmode} s[64:65]')
    p('s_load_dwordx8 s[24:31], s[0:1], 0')
    p('s_load_dwordx8 s[32:39], s[0:1], 40')
    p('s_load_dwordx2 s[40:41], s[0:1], 96')
    p('s_load_dwordx2 s[20:21], s[0:1], 32')
    p('s_load_dwordx2 s[22:23], s[0:1], 72')
    p('s_load_dwordx4 s[52:55], s[0:1], 80')
    p('s_and_b32 s47, s2, 7')
    p('s_lshr_b32 s48, s2, 3')
    p('s_lshr_b32 s42, s47, 2')
    p('s_and_b32 s49, s47, 3')
    p('s_lshl_b32 s49, s49, 2')
    p('s_and_b32 s3, s48, 3')
    p('s_add_u32 s43, s49, s3')
    p('s_lshr_b32 s44, s48, 2')
    p('s_and_b32 s49, s43, 1')
    p('s_lshl_b32 s62, s44, 1')
    p('s_add_u32 s62, s62, s49')
    p('s_lshl_b32 s63, s42, 3')
    p('s_add_u32 s63, s63, s44')
    p('s_lshl_b32 s63, s63, 4')
    p('s_add_u32 s63, s63, s43')
    p(f'v_lshrrev_b32 v{T0}, 6, v0')
    lane_ids(p)
    p(f'v_readfirstlane_b32 s45, v{T0}')
    p('s_and_b32 s46, s45, 3')
    p('s_cmp_ge_u32 s45, 4')
    p('s_cbranch_scc1 HELPER')

    a = Asm()
    st_ = Stamps(a, ts, tsmode); st_.n = 1
    fine = o.get('fine')
    if fine: st_.on = False
    a(f's_setprio {o.get("cprio", 2)}')
    WQ = 8; XR = 24; KR = 26; VRD = 27; OXW = 28
    QA = 40; F0 = 136; SP = 224
    a('s_lshr_b32 s48, s46, 1')
    a('s_and_b32 s49, s46, 1')
    a('s_and_b32 s50, s43, 1')
    a('s_xor_b32 s57, s48, s50')
    a('s_lshl_b32 s50, s42, 4')
    a('s_add_u32 s50, s50, s62')
    a(f's_mul_i32 s51, s50, {NP*4}')
    a('s_add_u32 s51, s51, s46')
    a('s_lshl_b32 s51, s51, 7')
    a('s_lshr_b32 s56, s43, 1')
    a('s_lshl_b32 s58, s56, 2')
    a('s_add_u32 s51, s51, s58')
    a(f's_add_u32 s61, s51, {FOFF}')
    a('s_lshl_b32 s51, s63, 7')
    a(f's_add_u32 s51, s51, {GOFF}')
    a('s_cmp_eq_u32 s46, 0')
    a(f's_cselect_b32 s51, s51, {OOB:#x}')
    a(f'v_lshlrev_b32 v{T0}, 9, v{L}')
    a(f'v_add_u32 v{T0}, s61, v{T0}')
    a(f'v_mov_b32 v{T1}, {OOB:#x}')
    a(f'v_cmp_gt_u32 vcc, {NP}, v{L}')
    a(f'v_cndmask_b32 v{T2}, v{T1}, v{T0}, vcc')
    a(f'v_mov_b32 v{T0}, s51')
    a(f'v_cmp_eq_u32 vcc, {NP}, v{L}')
    a(f'v_cndmask_b32 v{T2}, v{T2}, v{T0}, vcc')
    a(f'v_cmp_eq_u32 vcc, 0, v{L}')
    a(f'v_cndmask_b32 v32, v{T1}, v{T0}, vcc')
    a(f'v_mov_b32 v{T0}, s61')
    a(f'v_cndmask_b32 v31, v{T1}, v{T0}, vcc')
    a(f'v_mov_b32 v7, 0')
    a('s_waitcnt lgkmcnt(0)')
    srd(a, 4, 40, 41, WS_BYTES)
    a(f'buffer_store_dword v7, v{T2}, s[4:7], 0 offen{CO}')
    cpf = o.get('cpf')
    if cpf:
        a('s_getpc_b64 s[16:17]')
        a.label('PCREF')
        a('s_and_b32 s16, s16, 0xffffff00')
        if cpf == 's':
            a('s_lshr_b32 s18, s2, 3')
            a('s_lshl_b32 s18, s18, 2')
            a('s_add_u32 s18, s18, s46')
            a('s_mul_i32 s18, s18, 256')
            a('s_min_u32 s18, s18, CODE_END - PCREF - 192')
            a('s_add_u32 s16, s16, s18'); a('s_addc_u32 s17, s17, 0')
            for i in range(4): a(f's_load_dword s{96+i}, s[16:17], {i*64}')
        else:
            pass
    srd(a, 8, 52, 53, OUT_BYTES)
    a(f's_mul_i32 s50, s50, {NBLK*8}')
    a('s_add_u32 s50, s50, s56')
    a('s_lshl_b32 s58, s50, 10')
    a(f'v_lshlrev_b32 v{T0}, 4, v{L}')
    a(f'v_add_u32 v30, s58, v{T0}')
    a('s_mul_i32 s50, s49, 12288')
    a('s_mul_i32 s51, s63, 24576')
    a(f's_add_u32 s51, s51, {OSOFF}')
    a('s_mul_i32 s51, s51, s57')
    a('s_add_u32 s50, s50, s51')
    a(f'v_add_u32 v{OXW}, s50, v{T0}')
    a(f'v_mov_b32 v33, v{T0}')
    a('s_lshl_b32 s50, s49, 13')
    a(f's_add_u32 s50, s50, {QS}')
    a(f'v_lshlrev_b32 v{T0}, 11, v{G}')
    a(f'v_add_u32 v{T0}, s50, v{T0}')
    a(f'v_lshrrev_b32 v{T2}, 2, v{I}')
    a(f'v_lshl_add_u32 v{T0}, v{T2}, 8, v{T0}')
    a(f'v_and_b32 v{T1}, 1, v{G}')
    a(f'v_lshl_add_u32 v{T1}, v{T1}, 2, v{T2}')
    a(f'v_and_b32 v{T2}, 3, v{I}')
    a(f'v_lshl_add_u32 v{T0}, v{T2}, 3, v{T0}')
    for t in range(8):
        a(f'v_xor_b32 v{T2}, {t}, v{T1}')
        a(f'v_lshl_add_u32 v{WQ+t}, v{T2}, 5, v{T0}')
    a('s_mul_i32 s50, s48, 6144')
    a(f's_add_u32 s50, s50, {XREG}')
    a(f'v_lshrrev_b32 v{T0}, 1, v{I}')
    a(f'v_xor_b32 v{T0}, v{T0}, v{G}')
    a(f'v_lshlrev_b32 v{T0}, 4, v{T0}')
    a(f'v_lshlrev_b32 v{T1}, 7, v{I}')
    a(f'v_add_u32 v{T1}, s50, v{T1}')
    a(f'v_add_u32 v{XR}, v{T1}, v{T0}')
    a(f'v_xor_b32 v{T0}, 64, v{T0}')
    a(f'v_add_u32 v{XR+1}, v{T1}, v{T0}')
    a('s_lshl_b32 s50, s46, 12')
    a(f'v_lshrrev_b32 v{T0}, 1, v{G}')
    a(f'v_xor_b32 v{T0}, v{T0}, v{I}')
    a(f'v_lshlrev_b32 v{T0}, 4, v{T0}')
    a(f'v_lshl_add_u32 v{T0}, v{I}, 8, v{T0}')
    a(f'v_and_b32 v{T1}, 1, v{G}')
    a(f'v_lshl_add_u32 v{T0}, v{T1}, 3, v{T0}')
    a(f'v_add_u32 v{KR}, s50, v{T0}')
    for j in range(8): a(f'v_xor_b32 v{WQ+8+j}, {j*32}, v{KR}')
    a(f's_add_u32 s50, s50, {QS}')
    a(f'v_lshrrev_b32 v{T0}, 2, v{L}')
    a(f'v_and_b32 v{T1}, 7, v{T0}')
    a(f'v_lshlrev_b32 v{T1}, 5, v{T1}')
    a(f'v_lshl_add_u32 v{T0}, v{T0}, 8, v{T1}')
    a(f'v_and_b32 v{T1}, 3, v{I}')
    a(f'v_lshl_add_u32 v{T0}, v{T1}, 3, v{T0}')
    a(f'v_add_u32 v{VRD}, s50, v{T0}')
    AR, PO, FL, ONE, OX0, GF = 4, 5, 6, 7, 2, 3
    a(f'v_lshrrev_b32 v{T0}, 2, v{L}')
    a(f'v_lshlrev_b32 v{T1}, 7, v{T0}')
    a(f'v_and_b32 v{T2}, 3, v{I}')
    a(f'v_lshl_add_u32 v{T1}, v{T2}, 3, v{T1}')
    a(f'v_lshrrev_b32 v{T0}, 1, v{T0}')
    a(f'v_and_b32 v{T0}, 3, v{T0}')
    a(f'v_xor_b32 v{T0}, s46, v{T0}')
    a(f'v_lshl_add_u32 v{T0}, v{T0}, 5, v{T1}')
    a(f'v_add_u32 v{AR}, {HS[0]}, v{T0}')
    a(f'v_mov_b32 v{PO}, v30'); a(f'v_mov_b32 v{FL}, v31'); a(f'v_mov_b32 v{GF}, v32'); a(f'v_mov_b32 v{OX0}, v33'); a(f'v_mov_b32 v{ONE}, 1')
    if o.get('tlb'):
        a('s_cmp_eq_u32 s42, 0')
        a('s_cselect_b64 s[26:27], s[26:27], s[34:35]')
        a('s_cselect_b64 s[28:29], s[28:29], s[36:37]')
        a('s_cselect_b64 s[32:33], s[20:21], s[22:23]')
        a(f's_mov_b32 s59, {KV_B}')
        a(f's_cselect_b32 s59, {KV_A}, s59')
        a('s_cselect_b32 s58, 4, 5')
        a('s_lshl_b32 s50, s43, 1')
        a('s_add_u32 s50, s50, s49')
        a('s_cmp_eq_u32 s42, 0')
        a('s_cselect_b32 s50, s43, s50')
        a('s_lshl_b32 s51, s44, 1')
        a('s_add_u32 s51, s51, s48')
        a('s_lshl_b32 s51, s51, s58')
        a('s_add_u32 s51, s51, s50')
        a('s_mul_i32 s51, s51, 12288')
        a('v_mov_b32 v34, 0')
        srd(a, 12, 26, 27, 's59')
        a('buffer_load_dword v35, v34, s[12:15], s51 offen')
        srd(a, 16, 28, 29, 's59')
        a('buffer_load_dword v36, v34, s[16:19], s51 offen')
        srd(a, 20, 32, 33, W_BYTES)
        a('s_and_b32 s50, s43, 14')
        a('s_lshl_b32 s50, s50, 1')
        a('s_add_u32 s50, s50, s46')
        a(f's_mul_i32 s50, s50, {128*1152}')
        a('buffer_load_dword v37, v34, s[20:23], s50 offen')
        a('v_readfirstlane_b32 s50, v30')
        a(f's_mul_i32 s51, s46, {14*8192}')
        a('s_add_u32 s50, s50, s51')
        a('buffer_load_dword v38, v34, s[4:7], s50 offen')
        a('s_mul_i32 s50, s63, 24576')
        a(f's_add_u32 s50, s50, {OSOFF}')
        a('buffer_load_dword v39, v34, s[4:7], s50 offen')
        a('s_mul_i32 s50, s62, 110592')
        a('buffer_load_dword v29, v34, s[8:11], s50 offen')
    a(f's_mul_i32 s24, s46, {3*8192}')
    a(f's_lshl_b32 s25, s46, 14')
    a(f's_add_u32 s25, s25, {48*8192}')
    a('s_movk_i32 s27, 4096'); a('s_movk_i32 s28, 8192')
    cscale = math.log2(math.e) / math.sqrt(128.0)
    a(f's_mov_b32 s60, {f32bits(cscale):#x}')

    def FA(s, t): return F0 + s*44 + 12 + t*4
    def FB(s, mt): return F0 + s*44 + mt*4
    def frag_reads(n):
        s = n % 2
        it = []
        for mt in range(3):
            it.append(f'ds_read_b128 {vr(FB(s,mt),4)}, v{XR+(n&1)} offset:{((n>>1)%3)*12288+mt*2048}')
        for t in range(8):
            for half in range(2):
                it.append(f'ds_read_b64_tr_b16 {vr(FA(s,t)+2*half,2)}, v{WQ+t} offset:{(n%4)*16384+half*1024}')
        return it
    def mfmas(n):
        s = n % 2; it = []
        for t in range(8):
            for mt in range(3):
                d = vr(QA+(t*3+mt)*4, 4)
                c = '0' if n == 0 else d
                it.append(f'v_mfma_f32_16x16x32_bf16 {d}, {vr(FA(s,t),4)}, {vr(FB(s,mt),4)}, {c}')
        return it
    set0 = [F0 + 4*i for i in range(11)]
    set1 = [F0 + 44 + 4*i for i in range(11)]
    KFt = set1 + [SP]
    QBt = set0 + [SP+4]
    PB = SP + 8; TM = SP + 26
    VF32 = QA; VF16 = QA + 32
    SA = QA + 48
    QX = [QA + 84 + 4*i for i in range(3)]
    def kf(kt, s): return KFt[kt*4+s]
    def v_addrs(): return [f'v_xor_b32 v{WQ+t}, {t*32}, v{VRD}' for t in range(8)]
    def k_reads():
        it = []
        for s in range(4):
            for kt in range(3):
                r = kf(kt, s)
                it.append(f'ds_read_b64 {vr(r,2)}, v{WQ+8+2*s} offset:{kt*16384}')
                it.append(f'ds_read_b64 {vr(r+2,2)}, v{WQ+8+2*s+1} offset:{kt*16384}')
        return it
    def v_reads():
        it = []
        for t in range(8):
            it.append(f'ds_read_b64_tr_b16 {vr(VF32+4*t,2)}, v{WQ+t} offset:{VT[0]-QS}')
            it.append(f'ds_read_b64_tr_b16 {vr(VF32+4*t+2,2)}, v{WQ+t} offset:{VT[1]-QS}')
        for t in range(8):
            it.append(f'ds_read_b64_tr_b16 {vr(VF16+2*t,2)}, v{WQ+t} offset:{VT[2]-QS}')
        return it
    a('s_waitcnt vmcnt(0)'); a.vm = []
    a('s_barrier')
    st_()
    em(a, frag_reads(0))
    for n in range(17):
        a.comment(f'--- kstep {n}')
        a('s_waitcnt lgkmcnt(0)')
        a('s_barrier')
        if n in (3, 8, 13): st_()
        interleave(a, mfmas(n), frag_reads(n+1), ratio=1.0)
    def qb(s, qt): return QBt[qt*4+s]
    def cvt_q(qt):
        it = []
        for s in range(4):
            for hh in range(2):
                d = QA + ((2*s+hh)*3+qt)*4
                it.append(f'v_cvt_pk_bf16_f32 v{qb(s,qt)+2*hh}, v{d}, v{d+1}')
                it.append(f'v_cvt_pk_bf16_f32 v{qb(s,qt)+2*hh+1}, v{d+2}, v{d+3}')
        return it
    def sa(kt, qt): return SA + (qt*3+kt)*4
    def s_mfma(qt):
        it = []
        for s in range(4):
            for kt in range(3):
                d = vr(sa(kt,qt), 4)
                c = '0' if s == 0 else d
                it.append(f'v_mfma_f32_16x16x32_bf16 {d}, {vr(kf(kt,s),4)}, {vr(qb(s,qt),4)}, {c}')
        return it
    def softmax(qt):
        b = sa(0, qt); m = TM + 2*qt; t = m + 1
        it = []
        it.append(f'v_max3_f32 v{m}, v{b}, v{b+1}, v{b+2}')
        it.append(f'v_max3_f32 v{t}, v{b+3}, v{b+4}, v{b+5}')
        it.append(f'v_max3_f32 v{m}, v{m}, v{b+6}, v{b+7}')
        it.append(f'v_max3_f32 v{t}, v{t}, v{b+8}, v{b+9}')
        it.append(f'v_max3_f32 v{m}, v{m}, v{b+10}, v{b+11}')
        it.append(f'v_max_f32 v{m}, v{m}, v{t}')
        for sw in ('v_permlane32_swap_b32', 'v_permlane16_swap_b32'):
            it.append(f'v_mov_b32 v{t}, v{m}')
            it.append(f'{sw} v{m}, v{t}')
            it.append(f'v_max_f32 v{m}, v{m}, v{t}')
        it.append(f'v_mul_f32 v{m}, s60, v{m}')
        for j in range(12): it.append(f'v_fma_f32 v{b+j}, v{b+j}, s60, -v{m}')
        for j in range(12): it.append(f'v_exp_f32 v{b+j}, v{b+j}')
        it.append(f'v_add_f32 v{m}, v{b}, v{b+1}')
        it.append(f'v_add_f32 v{t}, v{b+2}, v{b+3}')
        for j in range(4, 12, 2):
            it.append(f'v_add_f32 v{m}, v{m}, v{b+j}')
            it.append(f'v_add_f32 v{t}, v{t}, v{b+j+1}')
        it.append(f'v_add_f32 v{m}, v{m}, v{t}')
        for sw in ('v_permlane32_swap_b32', 'v_permlane16_swap_b32'):
            it.append(f'v_mov_b32 v{t}, v{m}')
            it.append(f'{sw} v{m}, v{t}')
            it.append(f'v_add_f32 v{m}, v{m}, v{t}')
        it.append(f'v_rcp_f32 v{m}, v{m}')
        for j in range(12): it.append(f'v_mul_f32 v{b+j}, v{b+j}, v{m}')
        for j in range(6): it.append(f'v_cvt_pk_bf16_f32 v{PB+qt*6+j}, v{b+2*j}, v{b+2*j+1}')
        return it
    X0 = KFt[:8]
    X1 = KFt[8:12] + [sa(0,0), sa(1,0), sa(2,0)] + QX[:1]
    def oa(t, qt): return (X0, X1, X0)[qt][t]
    def pv_mfma(qt):
        it = []; pp = PB + qt*6
        for t in range(8):
            d = vr(oa(t,qt), 4)
            it.append(f'v_mfma_f32_16x16x32_bf16 {d}, {vr(VF32+4*t,4)}, {vr(pp,4)}, 0')
        for t in range(8):
            d = vr(oa(t,qt), 4)
            it.append(f'v_mfma_f32_16x16x16_bf16 {d}, {vr(VF16+2*t,2)}, {vr(pp+4,2)}, {d}')
        return it
    def o_pack(qt, giver):
        it = []
        for s in range(4):
            r = qb(s, qt)
            for hh in range(2):
                d = oa(2*s+hh, qt)
                it.append(f'v_cvt_pk_bf16_f32 v{r+2*hh}, v{d}, v{d+1}')
                it.append(f'v_cvt_pk_bf16_f32 v{r+2*hh+1}, v{d+2}, v{d+3}')
            if not giver: it.append(f'ds_write_b128 v{OXW}, {vr(r,4)} offset:{(qt*4+s)*1024}')
        return it
    def o_give():
        return [(f'buffer_store_dwordx4 {vr(qb(s,qt),4)}, v{OXW}, s[4:7], {["0","s27","s28"][qt]} offen offset:{s*1024}{CO}', ('G', 0)) for qt in range(3) for s in range(4)]
    def zipl(*ls):
        out = []; n = max(len(x) for x in ls)
        for i in range(n):
            for x in ls:
                if i < len(x): out.append(x[i])
        return out
    a('s_waitcnt lgkmcnt(0)')
    a('s_barrier')
    st_()
    m17 = mfmas(17)
    m17 = [m17[t*3+mt] for mt in range(3) for t in range(8)]
    interleave(a, m17[:8], v_addrs(), ratio=1)
    em(a, m17[8:12])
    interleave(a, m17[12:20], cvt_q(0), ratio=2)
    interleave(a, m17[20:24], cvt_q(1)[:8], ratio=2)
    interleave(a, k_reads(), cvt_q(1)[8:] + cvt_q(2), ratio=1)
    s0 = s_mfma(0)
    for s4 in range(4):
        a(f's_waitcnt lgkmcnt({min(15, 18-6*s4)})')
        em(a, s0[3*s4:3*s4+3])
    sm0, sm1, sm2 = softmax(0), softmax(1), softmax(2)
    em(a, s_mfma(1)[:4])
    interleave(a, s_mfma(1)[4:] + s_mfma(2), sm0[:40], ratio=2)
    st_()
    a('s_barrier')
    st_()
    z = zipl(sm0[40:], sm1[:33])
    interleave(a, v_reads(), z[:48], ratio=2)
    a('s_waitcnt lgkmcnt(0)')
    a('s_barrier')
    em(a, z[48:])
    z = zipl(sm1[33:], sm2[:40])
    interleave(a, pv_mfma(0), z, ratio=2)
    a('s_cmp_eq_u32 s57, 1')
    a('s_cbranch_scc1 GIVER')
    hist = list(a.hist)
    for giver in (0, 1):
        if giver:
            a.label('GIVER'); a.hist = list(hist)
        z = zipl(sm2[40:], o_pack(0, giver))
        interleave(a, pv_mfma(1), z, ratio=2)
        interleave(a, pv_mfma(2), o_pack(1, giver), ratio=1.25)
        em(a, o_pack(2, giver))
        if giver: em(a, o_give())
        else:
            a('s_waitcnt lgkmcnt(0)')
            a('s_branch ATT_END')
    a.label('ATT_END')
    st_()
    a('s_barrier')
    if fine: st_.on = True
    st_()
    AFR = 8; AD = 5; LA = 4
    ACC = 28
    BF = 160
    def bf(k, mt): return BF + (k*3+mt)*4
    def acc(r, mt): return ACC + (r*3+mt)*4
    NK = 144
    def a_reads(n):
        k = n % 8
        d = AFR + (n % AD)*4
        return [f'ds_read_b64_tr_b16 {vr(d+2*half,2)}, v{AR} offset:{k*4096+half*2048}' for half in range(2)]
    def b_reads(k):
        return [f'ds_read_b128 {vr(bf(k,mt),4)}, v{OX0} offset:{(k>>2)*12288+(mt*4+(k&3))*1024}' for mt in range(3)]
    def o_mfmas(n):
        u, k = n // 8, n % 8
        it = []
        for mt in range(3):
            d = vr(acc(u % 9, mt), 4)
            c = '0' if (k == 0 and u < 9) else d
            it.append(f'v_mfma_f32_16x16x32_bf16 {d}, {vr(AFR+(n%AD)*4,4)}, {vr(bf(k,mt),4)}, {c}')
        return it
    def p_pack(r):
        it = []
        for mt in range(3):
            d = acc(r, mt)
            if r < 8: q = acc(r & ~1, mt) + 2*(r & 1)
            else: q = acc(8, 0) + 2*mt
            it.append(f'v_cvt_pk_bf16_f32 v{q}, v{d}, v{d+1}')
            it.append(f'v_cvt_pk_bf16_f32 v{q+1}, v{d+2}, v{d+3}')
        return it
    def p_store(pp):
        it = []
        if pp < 4:
            for mt in range(3):
                it.append(f's_add_u32 s26, s24, {(pp*12+mt)*8192}')
                it.append((f'buffer_store_dwordx4 {vr(acc(2*pp,mt),4)}, v{PO}, s[4:7], s26 offen{CO}', ('P', pp)))
        else:
            it.append('s_add_u32 s26, s25, 8192')
            it.append((f'buffer_store_dwordx4 {vr(acc(8,0),4)}, v{PO}, s[4:7], s25 offen{CO}', ('P', pp)))
            it.append((f'buffer_store_dwordx4 {vr(acc(8,0)+4,4)}, v{PO}, s[4:7], s26 offen{CO}', ('P', pp)))
        return it
    def flag(ph, upto):
        def f():
            a.wait_vm(lambda t: t[0] == 'P' and t[1] <= upto)
            a(f'buffer_store_dword v{ONE}, v{FL}, s[4:7], 0 offen offset:{ph*512}{CO}', ('F', ph))
        return f
    def gflag():
        a('s_waitcnt vmcnt(0)'); a.vm = []
        a(f'buffer_store_dword v{ONE}, v{GF}, s[4:7], 0 offen{CO}', ('F', 9))
    lq = []
    def ds(x, tag):
        a(x); lq.append(tag)
    def need(tags):
        idx = max((i for i, t in enumerate(lq) if t in tags), default=-1)
        if idx < 0: return
        n = len(lq) - 1 - idx
        a(f's_waitcnt lgkmcnt({min(n, 15)})')
        del lq[:idx+1]
    for n in range(LA):
        for x in a_reads(n): ds(x, ('A', n))
        for x in b_reads(n): ds(x, ('B', n))
    LASTB = int(o.get('lastb', 15))
    ER = int(o.get('er', 1))
    GU = int(o.get('gu', 1))
    SA_, SB_ = int(o.get('sa', 13)), int(o.get('sb', 15))
    FA_, FB_ = int(o.get('fa', 15)), int(o.get('fb', 17))
    for u in range(18):
        a.comment(f'--- half-round {u}')
        oth = {g: [] for g in range(24)}
        g = 3
        if u >= 10:
            for x in p_pack(u-10):
                oth[g].append(x); g += 1
        if u == FA_ and FA_ > LASTB: oth[1].append(flag(0, 1))
        if u == FB_: oth[1].append(flag(1, 2))
        st = []
        if u == SA_: st += p_store(0) + p_store(1)
        if u == SB_: st += p_store(2)
        for x in st:
            oth[g].append(x)
            if not isinstance(x, str): g += 1
        for k in range(8):
            n = u*8 + k
            need({('A', n), ('B', n)} | ({('A', n+3)} if (k == 4 and u <= LASTB and ER) else set()))
            if k == 4 and u < 17:
                if u <= LASTB:
                    if u == GU: a('s_waitcnt vmcnt(0)'); a.vm = []
                    if u == FA_: a.wait_vm(lambda t: t[0] == 'P' and t[1] <= 1)
                    a('s_barrier')
                    if (u in (3, 9) and not fine) or (fine and u >= 2): st_()
                dlt = HS[(u+1) % 4] - HS[u % 4]
                a(f'v_add_u32 v{AR}, {dlt & 0xffffffff:#x}, v{AR}')
            rd = []
            if n + LA < NK: rd += [(x, ('A', n+LA)) for x in a_reads(n+LA)]
            if n + LA < 8: rd += [(x, ('B', n+LA)) for x in b_reads(n+LA)]
            if 65 <= n <= 72: rd += [(x, ('B', n+7)) for x in b_reads(n-65)]
            for i, m in enumerate(o_mfmas(n)):
                a(m)
                take = rd[:2] if len(rd) > 3 - i else rd[:1]
                rd = rd[len(take):]
                for x, tg in take: ds(x, tg)
                em(a, oth[k*3+i])
            assert not rd
    em(a, p_store(3))
    em(a, p_pack(8))
    em(a, p_store(4))
    st_()
    flag(2, 4)()
    st_()
    a('s_lshl_b32 s61, s46, 3')
    a('s_lshr_b32 s47, s43, 1')
    a('s_add_u32 s61, s61, s47')
    a('s_cmp_ge_u32 s61, 20')
    a('s_cbranch_scc1 C_DONE')
    lane_ids(a)
    reduce_block(a, 'CR', 2, 36, 61, 4, 8, o, st_ if (ts and not fine) else None)
    a.label('C_DONE')
    st_.dump(40, 41, 0, 3)
    a('s_endpgm')

    h = Asm()
    sh = Stamps(h, ts, tsmode); sh.n = 1
    h.label('HELPER')
    WO = 8; XO = 12; KO = 16; VO = 20; OW = 24; AT = 30; PV_ = 32; CV = 33; PA = 34; PD = 35; ZA = 36
    h('s_lshl_b32 s47, s3, 1')
    h('s_add_u32 s47, s47, s44')
    modn(h, 47, 48, 9)
    h('s_mov_b32 s60, s47')
    h('s_and_b32 s48, s46, 1')
    h('s_lshl_b32 s48, s48, 17')
    h('s_lshl_b32 s49, s43, 1')
    h('s_lshr_b32 s50, s46, 1')
    h('s_add_u32 s49, s49, s50')
    h('s_lshl_b32 s49, s49, 8')
    h('s_add_u32 s48, s48, s49')
    h(f'v_lshlrev_b32 v{T0}, 13, v{G}')
    h(f'v_add_u32 v{T0}, s48, v{T0}')
    h(f'v_lshlrev_b32 v{T1}, 1, v{G}')
    h(f'v_xor_b32 v{T1}, v{T1}, v{I}')
    h(f'v_lshlrev_b32 v{T1}, 4, v{T1}')
    h(f'v_xor_b32 v{T2}, 128, v{T1}')
    h(f'v_add_u32 v{T1}, v{T0}, v{T1}')
    h(f'v_add_u32 v{T2}, v{T0}, v{T2}')
    for q in range(4):
        h(f'v_add_u32 v{WO+q}, {4*q*8192 - q*1024}, v{T1 if (q >> 1) == 0 else T2}')
    h('s_mul_i32 s48, s44, 96')
    h('s_mul_i32 s49, s46, 24')
    h('s_add_u32 s48, s48, s49')
    h('s_mul_i32 s48, s48, 1152')
    h(f'v_lshrrev_b32 v{T0}, 3, v{L}')
    h(f'v_mul_u32_u24 v{T0}, 1152, v{T0}')
    h(f'v_add_u32 v7, s48, v{T0}')
    h(f'v_and_b32 v{T1}, 7, v{L}')
    h(f'v_xor_b32 v{T1}, v{T1}, v{G}')
    h('s_and_b32 s49, s46, 1')
    h('s_lshl_b32 s49, s49, 2')
    h(f'v_xor_b32 v{T1}, s49, v{T1}')
    h(f'v_lshlrev_b32 v{T1}, 4, v{T1}')
    h(f'v_xor_b32 v{T2}, 64, v{T1}')
    h(f'v_add_u32 v{T1}, v7, v{T1}')
    h(f'v_add_u32 v{T2}, v7, v{T2}')
    for pp in range(3):
        h(f'v_add_u32 v{XO+pp}, {pp*9216 - pp*1024}, v{T1 if pp % 2 == 0 else T2}')
    h('s_lshl_b32 s56, s46, 12')
    h('s_lshl_b32 s57, s46, 13')
    h('s_mul_i32 s58, s46, 3072')
    h('s_waitcnt lgkmcnt(0)')
    h('s_cmp_eq_u32 s42, 0')
    h('s_cselect_b64 s[24:25], s[24:25], s[32:33]')
    h('s_cselect_b64 s[26:27], s[26:27], s[34:35]')
    h('s_cselect_b64 s[28:29], s[28:29], s[36:37]')
    h('s_cselect_b64 s[30:31], s[30:31], s[38:39]')
    h('s_cselect_b64 s[32:33], s[20:21], s[22:23]')
    h(f's_mov_b32 s59, {KV_B}')
    h(f's_cselect_b32 s59, {KV_A}, s59')
    srd(h, 4, 24, 25, X_BYTES)
    srd(h, 8, 30, 31, W_BYTES)
    sh()
    def x_chunk(c):
        it = []
        it.append('s_lshl_b32 s48, s60, 7')
        it.append(f's_add_u32 m0, s58, {XREG + (c % 3)*12288}')
        for pp in range(3):
            it.append((f'buffer_load_dwordx4 v{XO+pp}, s[4:7], s48 offen offset:{pp*1024}{M("x")} lds', ('X', c)))
        it.append('s_add_u32 s60, s60, 1')
        it.append('s_cmp_eq_u32 s60, 9')
        it.append('s_cselect_b32 s60, 0, s60')
        return it
    def dma_stage(n):
        it = []
        it.append('s_lshl_b32 s49, s47, 19')
        if n & 1: it.append(f's_add_u32 s49, s49, {32*8192}')
        it.append(f's_add_u32 m0, s56, {QS + (n % 4)*16384}')
        for q in range(4):
            it.append((f'buffer_load_dwordx4 v{WO+q}, s[8:11], s49 offen offset:{q*1024}{M("wq")} lds', ('S', n)))
        if n & 1:
            it.append('s_add_u32 s47, s47, 1')
            it.append('s_cmp_eq_u32 s47, 9')
            it.append('s_cselect_b32 s47, 0, s47')
        return it
    em(h, x_chunk(0)); em(h, dma_stage(0)); em(h, dma_stage(1))
    srd(h, 12, 26, 27, 's59')
    srd(h, 16, 28, 29, 's59')
    srd(h, 20, 32, 33, W_BYTES)
    srd(h, 36, 54, 55, 256)
    srd(h, 28, 40, 41, WS_BYTES)
    h('s_lshl_b32 s51, s44, 1')
    h('s_lshr_b32 s50, s46, 1')
    h('s_add_u32 s51, s51, s50')
    h('s_lshl_b32 s50, s43, 1')
    h('s_and_b32 s59, s46, 1')
    h('s_add_u32 s50, s50, s59')
    h('s_cmp_eq_u32 s42, 0')
    h('s_cselect_b32 s59, 4, 5')
    h('s_cselect_b32 s50, s43, s50')
    h('s_lshl_b32 s51, s51, s59')
    h('s_add_u32 s51, s51, s50')
    h('s_mul_i32 s51, s51, 12288')
    h(f'v_lshlrev_b32 v7, 8, v{G}')
    h(f'v_add_u32 v7, s51, v7')
    h(f'v_xor_b32 v{T1}, v{I}, v{G}')
    h(f'v_lshlrev_b32 v{T1}, 4, v{T1}')
    for q in range(4):
        h(f'v_xor_b32 v{T2}, {q*64}, v{T1}')
        h(f'v_add_u32 v{KO+q}, v7, v{T2}')
    h(f'v_lshlrev_b32 v{T1}, 1, v{G}')
    h(f'v_xor_b32 v{T1}, v{I}, v{T1}')
    h(f'v_lshlrev_b32 v{T1}, 4, v{T1}')
    h(f'v_add_u32 v{VO}, v7, v{T1}')
    h(f'v_xor_b32 v{T1}, 128, v{T1}')
    h(f'v_add_u32 v{VO+1}, v7, v{T1}')
    h(f'v_cmp_eq_u32 vcc, 256, v0')
    h('s_lshr_b32 s50, s63, 4')
    h('s_lshl_b32 s50, s50, 4')
    h(f'v_mov_b32 v{ZA}, s50')
    h(f'v_mov_b32 v{T2}, {OOB:#x}')
    h(f'v_cndmask_b32 v{AT}, v{T2}, v{ZA}, vcc')
    h(f'v_mov_b32 v{AT+1}, 1')
    h('s_xor_b32 s50, s63, 1')
    h('s_lshl_b32 s51, s50, 7')
    h(f's_add_u32 s51, s51, {GOFF}')
    h(f'v_and_b32 v{T1}, 1, v{L}')
    h(f'v_lshlrev_b32 v{T1}, 2, v{T1}')
    h(f'v_add_u32 v{PA}, s51, v{T1}')
    h('s_mul_i32 s50, s50, 24576')
    h('s_mul_i32 s51, s46, 6144')
    h('s_add_u32 s50, s50, s51')
    h(f's_add_u32 s50, s50, {OSOFF}')
    h(f'v_lshlrev_b32 v{T1}, 4, v{L}')
    h(f'v_add_u32 v{PD}, s50, v{T1}')
    h('s_movk_i32 s34, 4096')
    h('s_movk_i32 s35, 8192')
    def kv_tile(which, tile):
        it = []
        base = KREG + tile*16384 if which == 0 else VT[tile]
        sr = 12 if which == 0 else 16
        so = ['0', 's34', 's35'][tile]
        it.append(f's_add_u32 m0, s56, {base}')
        for q in range(4):
            vo = KO + q if which == 0 else VO + (q & 1)
            it.append((f'buffer_load_dwordx4 v{vo}, s[{sr}:{sr+3}], {so} offen offset:{q*1024}{M("kv")} lds', ('K' if which == 0 else 'V', tile)))
        return it
    h('s_lshl_b32 s51, s46, 6')
    h('s_mul_i32 s51, s51, 1152')
    h(f'v_add_u32 v{T0}, s51, v{T0}')
    h(f'v_and_b32 v{T1}, 7, v{L}')
    h(f'v_lshlrev_b32 v{T2}, 1, v{G}')
    h(f'v_xor_b32 v{T1}, v{T1}, v{T2}')
    h(f'v_lshl_add_u32 v{T0}, v{T1}, 4, v{T0}')
    for q in range(4):
        h(f'v_add_u32 v{OW+q}, {q*8192}, v{T0}')
    h('s_mov_b32 s61, s44')
    h(f's_mul_i32 s32, s43, {256*1152}')
    h('s_xor_b32 s33, s43, 1')
    h(f's_mul_i32 s33, s33, {256*1152}')
    def wo_half(u):
        slot = HS[u % 4]
        it = []
        it.append('s_lshl_b32 s48, s61, 7')
        it.append(f's_add_u32 s48, s48, s{32 if u < 9 else 33}')
        it.append(f's_add_u32 s49, s48, {32*1152}')
        it.append(f's_add_u32 m0, s57, {slot}')
        for q in range(4):
            it.append((f'buffer_load_dwordx4 v{OW+q}, s[20:23], s48 offen offset:{q*1024}{M("wo")} lds', ('W', u)))
        it.append(f's_add_u32 m0, s57, {slot+4096}')
        for q in range(4):
            it.append((f'buffer_load_dwordx4 v{OW+q}, s[20:23], s49 offen offset:{q*1024}{M("wo")} lds', ('W', u)))
        it.append('s_add_u32 s61, s61, 1')
        it.append('s_cmp_eq_u32 s61, 9')
        it.append('s_cselect_b32 s61, 0, s61')
        return it
    spf = str(o.get('spf', ''))
    pf = []
    if 'w' in spf:
        h('s_lshl_b32 s50, s46, 6')
        h('s_mul_i32 s50, s50, 1152')
        h('s_add_u32 s50, s50, s32')
        h('s_lshl_b32 s51, s44, 7')
        h('s_add_u32 s50, s50, s51')
        h('s_add_u32 s24, s20, s50'); h('s_addc_u32 s25, s21, 0')
        h('s_lshl_b32 s50, s44, 2')
        h('s_add_u32 s50, s50, s46')
        h(f's_mul_i32 s50, s50, {8*1152}')
        h('s_add_u32 s50, s50, s32')
        h('s_add_u32 s26, s20, s50'); h('s_addc_u32 s27, s21, 0')
        pf += [f's_load_dword s{96 + (i % 4)}, s[26:27], {(i >> 1)*1152 + 1024 + (i & 1)*64}' for i in range(16)]
        pf += [f's_load_dword s{96 + (i % 4)}, s[24:25], {(i >> 1)*1152 + (i & 1)*64}' for i in range(128)]
    npf = int(o.get('npf', 5)); pf0 = int(o.get('pf0', 0))
    em(h, x_chunk(1)); em(h, dma_stage(2))
    sh()
    h.wait_vm(lambda t: t == ('S', 0))
    h('s_barrier')
    h('s_cmp_lg_u32 s46, 0')
    h('s_cbranch_scc1 H_NOCNT')
    h('s_lshr_b32 s50, s63, 4')
    h('s_lshl_b32 s50, s50, 4')
    h('s_mov_b32 s100, 1')
    h('s_atomic_add s100, s[54:55], s50')
    h.label('H_NOCNT')
    em(h, dma_stage(3)); em(h, x_chunk(2))
    kats = [int(x) for x in str(o.get('kat', '8')).split(',')]
    vm0 = list(h.vm)
    if len(kats) > 1:
        h(f's_and_b32 s59, s44, {len(kats)-1}')
        for vi in range(1, len(kats)):
            h(f's_cmp_eq_u32 s59, {vi}')
            h(f's_cbranch_scc1 HQ{vi}')
    n0 = sh.n
    for vi, kat in enumerate(kats):
        h.vm = list(vm0); sh.n = n0
        if vi: h.label(f'HQ{vi}')
        for n in range(17):
            h.wait_vm(lambda t: t == ('S', n+1) or t == ('X', (n+1) >> 1))
            h('s_barrier')
            if n in (3, 8, 13): sh()
            if n + 4 <= 17: em(h, dma_stage(n+4))
            if (n & 1) and (n >> 1) + 3 <= 8: em(h, x_chunk((n >> 1) + 3))
            if o.get('kall'):
                if n == kat:
                    for tile in range(3): em(h, kv_tile(0, tile))
            elif kat <= n < kat + 3: em(h, kv_tile(0, n - kat))
            if n >= 14: em(h, kv_tile(1, n - 14))
            if pf0 <= n <= int(o.get('pf1', 16)): em(h, pf[(n-pf0)*npf:(n-pf0+1)*npf])
        h.wait_vm(lambda t: t[0] == 'K')
        assert all(t[0] == 'V' for t in h.vm), h.vm
        h.vm = [('V', 0)]*12
        if vi + 1 < len(kats): h('s_branch HQ_END')
    h.label('HQ_END')
    sh()
    h('s_barrier')
    cload = f'buffer_load_dword v{CV}, v{ZA}, s[36:39], 0 offen{CO}'
    h(cload, ('C', 0))
    em(h, wo_half(0))
    h.wait_vm(lambda t: t[0] == 'V')
    sh()
    h('s_barrier')
    h('s_barrier')
    em(h, wo_half(1)); em(h, wo_half(2))
    h.wait_vm(lambda t: t == ('W', 0))
    if int(o.get('w3early', 0)): em(h, wo_half(3))
    sh()
    h('s_barrier')
    check_or_poll(h, 'HC', cload, CV, 16)
    if not int(o.get('w3early', 0)): em(h, wo_half(3))
    PI, PC = int(o.get('pi', 3)), int(o.get('pc', 5))
    h('s_lshl_b32 s24, s63, 7')
    h(f's_add_u32 s24, s24, {GOFF}')
    h('s_xor_b32 s25, s24, 128')
    h('s_lshl_b32 s26, s42, 4')
    h('s_add_u32 s26, s26, s62')
    h(f's_mul_i32 s26, s26, {NP*4}')
    h('s_add_u32 s26, s26, s46')
    h('s_lshl_b32 s26, s26, 7')
    h('s_lshr_b32 s27, s43, 1')
    h('s_lshl_b32 s27, s27, 2')
    h('s_add_u32 s26, s26, s27')
    h(f's_add_u32 s26, s26, {FOFF}')
    h('s_mov_b32 s100, 1')
    assert GOFF % 256 == 0
    nxt = 4
    for u in range(LASTB+1):
        if u < LASTB:
            assert nxt > u+1
            h.wait_vm(lambda t: t == ('W', u+1) or (u == 7 and t[0] == 'O'))
        else:
            assert nxt == 18
            h.wait_vm(lambda t: t[0] == 'W')
        h('s_barrier')
        if u == GU:
            h('s_cmp_lg_u32 s46, 0')
            h('s_cbranch_scc1 H_NOG')
            h('s_atomic_add s100, s[40:41], s24')
            h.label('H_NOG')
        if u == FA_: h('s_atomic_add s100, s[40:41], s26')
        if u == PC:
            h('s_mov_b32 s59, 0')
            h.label('HP_POLL')
            h('s_waitcnt lgkmcnt(0)')
            h('s_cmp_ge_u32 s101, 1')
            h('s_cbranch_scc1 HP_GO')
            h('s_load_dword s101, s[40:41], s25 glc')
            h('s_add_u32 s59, s59, 1')
            h('s_cmp_lt_u32 s59, 0x40000')
            h('s_cbranch_scc1 HP_POLL')
            h.label('HP_GO')
            h('s_mul_i32 s48, s46, 6144')
            h('s_mov_b32 m0, s48')
            for q in range(4): h(f'buffer_load_dwordx4 v{PD}, s[28:31], 0 offen offset:{q*1024}{CO} lds', ('O', q))
            h('s_add_u32 m0, s48, 4096')
            for q in range(2): h(f'buffer_load_dwordx4 v{PD}, s[28:31], s34 offen offset:{q*1024}{CO} lds', ('O', q))
        if u == PI: h('s_load_dword s101, s[40:41], s25 glc')
        if nxt <= 17 and nxt - 4 <= u - 1 + ER:
            em(h, wo_half(nxt)); nxt += 1
    assert nxt == 18, nxt
    sh()
    srd(h, 8, 52, 53, OUT_BYTES)
    h('s_lshl_b32 s61, s46, 3')
    h('s_lshr_b32 s47, s43, 1')
    h('s_add_u32 s61, s61, s47')
    h('s_cmp_ge_u32 s61, 24')
    h('s_cbranch_scc1 HA_DONE')
    reduce_block(h, 'HA', 0, 0, 61, 28, 8, o, sh if ts else None)
    h.label('HA_DONE')
    sh()
    h('s_sub_u32 s61, 31, s61')
    h('s_cmp_ge_u32 s61, 12')
    h('s_cbranch_scc1 HB_DONE')
    h('s_nop 1')
    reduce_block(h, 'HB', 1, 24, 61, 28, 8, o, sh if ts else None)
    h.label('HB_DONE')
    sh.dump(40, 41, 0, 3)
    h.label('M_END')
    h('s_endpgm')
    h.label('CODE_END')
    print('main: compute inst', a.ninst, 'nops', a.nops_inserted, 'helper', h.ninst, 'stamps', st_.n, sh.n)
    return p.text() + a.text() + h.text()

if __name__ == '__main__':
    out = sys.argv[1]
    o = dict(x.split('=') if '=' in x else (x, 1) for x in sys.argv[2:])
    SLEEP = int(o.get('sleep', 1))
    txt = build_file([dict(name=NAME + '_kernel', grid=256, block=512, lds=163840, body=gen_main(o), vgpr=256, sgpr=102, accum=256)])
    open(out, 'w').write(txt)
```

```python
import sys, struct, math
sys.path.insert(0, 'gen')
from asmgen import Asm, interleave
from common import *
from v2 import Stamps, srd, em, f32bits, vr

X_BYTES = 16*48*576*2
W_BYTES = 576*4096*2
KV_A = 16*16*48*128*2
KV_B = 16*32*48*128*2
OUT_BYTES = 16*48*1152*2
NBLK = 56
P_BYTES = 32*NBLK*8*1024
OSOFF = P_BYTES
FOFF = OSOFF + 256*24576
NP = 3
GOFF = FOFF + 32*NP*4*128
WS_BYTES = GOFF + 256*128
OOB = 0x7ffffff0

KREG = 0; XREG = 49152; QS = 98304
VT = [131072, 147456, 98304]
HS = [65536, 32768, 98304, 131072]
L, I, G, T0, T1, T2 = 1, 2, 3, 4, 5, 6
CO = ' sc0 sc1'
SLEEP = 1

def lane_ids(a):
    a(f'v_and_b32 v{L}, 63, v0')
    a(f'v_and_b32 v{I}, 15, v0')
    a(f'v_lshrrev_b32 v{G}, 4, v{L}')

def modn(a, d, t, n):
    a(f's_cmp_ge_u32 s{d}, {n}')
    a(f's_cselect_b32 s{t}, {n}, 0')
    a(f's_sub_u32 s{d}, s{d}, s{t}')

def poll(a, lbl, load, vreg, expect, keep_vm=False):
    vm = list(a.vm)
    a('s_mov_b32 s59, 0')
    a.label(f'{lbl}_POLL')
    a(load)
    a('s_waitcnt vmcnt(0)')
    a(f'v_cmp_gt_u32 vcc, {expect}, v{vreg}')
    a('s_add_u32 s59, s59, 1')
    a('s_nop 0')
    a(f's_cbranch_vccz {lbl}_GO')
    a(f's_sleep {SLEEP}')
    a('s_cmp_lt_u32 s59, 0x40000')
    a(f's_cbranch_scc1 {lbl}_POLL')
    a.label(f'{lbl}_GO')
    a.vm = vm if keep_vm else []

def check_or_poll(a, lbl, load, vreg, expect):
    a(f'v_cmp_gt_u32 vcc, {expect}, v{vreg}')
    a('s_nop 1')
    a(f's_cbranch_vccz {lbl}_GO')
    poll(a, lbl, load, vreg, expect, keep_vm=True)

def reduce_block(a, lbl, phase, blk0, sidx, srd_ws, srd_out, o, st=None):
    M = lambda k: (' ' + o[k].replace('+', ' ')) if k in o else ''
    a(f's_add_u32 s47, s{sidx}, {blk0}')
    a('s_mul_i32 s48, s47, 171')
    a('s_lshr_b32 s48, s48, 11')
    a('s_mul_i32 s49, s48, 12')
    a('s_sub_u32 s49, s47, s49')
    a('s_mul_i32 s50, s49, 43')
    a('s_lshr_b32 s50, s50, 7')
    a('s_mul_i32 s51, s50, 3')
    a('s_sub_u32 s51, s49, s51')
    a('s_lshr_b32 s56, s49, 1')
    a('s_and_b32 s57, s49, 1')
    a('s_lshl_b32 s57, s57, 1')
    a('s_cmp_eq_u32 s48, 4')
    a('s_cselect_b32 s50, s56, s50')
    a('s_cselect_b32 s51, s57, s51')
    a('s_cselect_b32 s56, 1, 0')
    a('s_cselect_b32 s57, 0, 1')
    a('s_add_u32 s56, s56, s51')
    a('s_lshl_b32 s48, s48, 1')
    a('s_add_u32 s48, s48, s44')
    a('s_add_u32 s57, s57, s48')
    modn(a, 48, 58, 9); modn(a, 57, 58, 9)
    a('s_mul_i32 s58, s62, 110592')
    a('s_mul_i32 s59, s42, 1152')
    a('s_add_u32 s58, s58, s59')
    a('s_lshl_b32 s59, s50, 5')
    a('s_add_u32 s58, s58, s59')
    a(f'v_mul_u32_u24 v7, 2304, v{I}')
    a(f'v_lshl_add_u32 v7, v{G}, 3, v7')
    a(f'v_add_u32 v7, s58, v7')
    a('s_mul_i32 s51, s51, 36864')
    a('s_lshl_b32 s48, s48, 7')
    a('s_add_u32 s48, s48, s51')
    a('s_cmp_eq_u32 s56, 3')
    a('s_mul_i32 s56, s56, 36864')
    a(f's_cselect_b32 s56, {OOB:#x}, s56')
    a('s_lshl_b32 s57, s57, 7')
    a('s_add_u32 s57, s57, s56')
    a('s_lshl_b32 s51, s42, 4')
    a('s_add_u32 s51, s51, s62')
    a(f's_mul_i32 s56, s51, {NP*4}')
    a('s_add_u32 s56, s56, s50')
    a('s_lshl_b32 s56, s56, 7')
    a(f's_add_u32 s56, s56, {FOFF + phase*512}')
    a(f'v_and_b32 v{T0}, 7, v{L}')
    a(f'v_lshlrev_b32 v{T0}, 2, v{T0}')
    a(f's_mul_i32 s51, s51, {NBLK}')
    a('s_add_u32 s51, s51, s47')
    a('s_lshl_b32 s51, s51, 13')
    a(f'v_lshlrev_b32 v{T1}, 4, v{L}')
    a(f'v_add_u32 v{T1}, s51, v{T1}')
    poll(a, lbl, f'buffer_load_dword v{T2}, v{T0}, s[{srd_ws}:{srd_ws+3}], s56 offen{CO}', T2, 1)
    if st: st()
    a('s_movk_i32 s47, 4096')
    D = 16; ACC = 8
    for hq in range(8):
        so = ['0', 's47'][hq >> 2]
        a(f'buffer_load_dwordx4 {vr(D+4*hq,4)}, v{T1}, s[{srd_ws}:{srd_ws+3}], {so} offen offset:{(hq&3)*1024}{CO}', ('R', hq))
    a('s_mov_b32 s59, 0xffff0000')
    for hq in range(8):
        a.wait_vm(lambda t: t == ('R', hq))
        for j in range(4):
            r = D + 4*hq + j
            if hq == 0:
                a(f'v_lshlrev_b32 v{ACC+2*j}, 16, v{r}')
                a(f'v_and_b32 v{ACC+2*j+1}, s59, v{r}')
            else:
                a(f'v_lshlrev_b32 v{T2}, 16, v{r}')
                a(f'v_and_b32 v{r}, s59, v{r}')
                a(f'v_add_f32 v{ACC+2*j}, v{ACC+2*j}, v{T2}')
                a(f'v_add_f32 v{ACC+2*j+1}, v{ACC+2*j+1}, v{r}')
    for j in range(4):
        a(f'v_cvt_pk_bf16_f32 v{D+j}, v{ACC+2*j}, v{ACC+2*j+1}')
    a(f'buffer_store_dwordx2 {vr(D,2)}, v7, s[{srd_out}:{srd_out+3}], s48 offen{M("out")}')
    a(f'buffer_store_dwordx2 {vr(D+2,2)}, v7, s[{srd_out}:{srd_out+3}], s57 offen{M("out")}')

def gen_main(o):
    ts = o.get('ts'); tsmode = o.get('tsmode', 's_memrealtime')
    M = lambda k: (' ' + o[k].replace('+', ' ')) if k in o else ''
    p = Asm()
    p('s_cmp_ge_u32 s2, 256')
    p('s_cbranch_scc1 M_END')
    if ts: p(f'{tsmode} s[64:65]')
    p('s_load_dwordx8 s[24:31], s[0:1], 0')
    p('s_load_dwordx8 s[32:39], s[0:1], 40')
    p('s_load_dwordx2 s[40:41], s[0:1], 96')
    p('s_load_dwordx2 s[20:21], s[0:1], 32')
    p('s_load_dwordx2 s[22:23], s[0:1], 72')
    p('s_load_dwordx4 s[52:55], s[0:1], 80')
    p('s_and_b32 s47, s2, 7')
    p('s_lshr_b32 s48, s2, 3')
    p('s_lshr_b32 s42, s47, 2')
    p('s_and_b32 s49, s47, 3')
    p('s_lshl_b32 s49, s49, 2')
    p('s_and_b32 s3, s48, 3')
    p('s_add_u32 s43, s49, s3')
    p('s_lshr_b32 s44, s48, 2')
    p('s_and_b32 s49, s43, 1')
    p('s_lshl_b32 s62, s44, 1')
    p('s_add_u32 s62, s62, s49')
    p('s_lshl_b32 s63, s42, 3')
    p('s_add_u32 s63, s63, s44')
    p('s_lshl_b32 s63, s63, 4')
    p('s_add_u32 s63, s63, s43')
    p(f'v_lshrrev_b32 v{T0}, 6, v0')
    lane_ids(p)
    p(f'v_readfirstlane_b32 s45, v{T0}')
    p('s_and_b32 s46, s45, 3')
    p('s_cmp_ge_u32 s45, 4')
    p('s_cbranch_scc1 HELPER')

    a = Asm()
    st_ = Stamps(a, ts, tsmode); st_.n = 1
    fine = o.get('fine')
    if fine: st_.on = False
    a(f's_setprio {o.get("cprio", 2)}')
    WQ = 8; XR = 24; KR = 26; VRD = 27; OXW = 28
    QA = 40; F0 = 136; SP = 224
    a('s_lshr_b32 s48, s46, 1')
    a('s_and_b32 s49, s46, 1')
    a('s_and_b32 s50, s43, 1')
    a('s_xor_b32 s57, s48, s50')
    a('s_lshl_b32 s50, s42, 4')
    a('s_add_u32 s50, s50, s62')
    a(f's_mul_i32 s51, s50, {NP*4}')
    a('s_add_u32 s51, s51, s46')
    a('s_lshl_b32 s51, s51, 7')
    a('s_lshr_b32 s56, s43, 1')
    a('s_lshl_b32 s58, s56, 2')
    a('s_add_u32 s51, s51, s58')
    a(f's_add_u32 s61, s51, {FOFF}')
    a('s_lshl_b32 s51, s63, 7')
    a(f's_add_u32 s51, s51, {GOFF}')
    a('s_cmp_eq_u32 s46, 0')
    a(f's_cselect_b32 s51, s51, {OOB:#x}')
    a(f'v_lshlrev_b32 v{T0}, 9, v{L}')
    a(f'v_add_u32 v{T0}, s61, v{T0}')
    a(f'v_mov_b32 v{T1}, {OOB:#x}')
    a(f'v_cmp_gt_u32 vcc, {NP}, v{L}')
    a(f'v_cndmask_b32 v{T2}, v{T1}, v{T0}, vcc')
    a(f'v_mov_b32 v{T0}, s51')
    a(f'v_cmp_eq_u32 vcc, {NP}, v{L}')
    a(f'v_cndmask_b32 v{T2}, v{T2}, v{T0}, vcc')
    a(f'v_cmp_eq_u32 vcc, 0, v{L}')
    a(f'v_cndmask_b32 v32, v{T1}, v{T0}, vcc')
    a(f'v_mov_b32 v{T0}, s61')
    a(f'v_cndmask_b32 v31, v{T1}, v{T0}, vcc')
    a(f'v_mov_b32 v7, 0')
    a('s_waitcnt lgkmcnt(0)')
    srd(a, 4, 40, 41, WS_BYTES)
    a(f'buffer_store_dword v7, v{T2}, s[4:7], 0 offen{CO}')
    cpf = o.get('cpf')
    if cpf:
        a('s_getpc_b64 s[16:17]')
        a.label('PCREF')
        a('s_and_b32 s16, s16, 0xffffff00')
        if cpf == 's':
            a('s_lshr_b32 s18, s2, 3')
            a('s_lshl_b32 s18, s18, 2')
            a('s_add_u32 s18, s18, s46')
            a('s_mul_i32 s18, s18, 256')
            a('s_min_u32 s18, s18, CODE_END - PCREF - 192')
            a('s_add_u32 s16, s16, s18'); a('s_addc_u32 s17, s17, 0')
            for i in range(4): a(f's_load_dword s{96+i}, s[16:17], {i*64}')
        else:
            pass
    srd(a, 8, 52, 53, OUT_BYTES)
    a(f's_mul_i32 s50, s50, {NBLK*8}')
    a('s_add_u32 s50, s50, s56')
    a('s_lshl_b32 s58, s50, 10')
    a(f'v_lshlrev_b32 v{T0}, 4, v{L}')
    a(f'v_add_u32 v30, s58, v{T0}')
    a('s_mul_i32 s50, s49, 12288')
    a('s_mul_i32 s51, s63, 24576')
    a(f's_add_u32 s51, s51, {OSOFF}')
    a('s_mul_i32 s51, s51, s57')
    a('s_add_u32 s50, s50, s51')
    a(f'v_add_u32 v{OXW}, s50, v{T0}')
    a(f'v_mov_b32 v33, v{T0}')
    a('s_lshl_b32 s50, s49, 13')
    a(f's_add_u32 s50, s50, {QS}')
    a(f'v_lshlrev_b32 v{T0}, 11, v{G}')
    a(f'v_add_u32 v{T0}, s50, v{T0}')
    a(f'v_lshrrev_b32 v{T2}, 2, v{I}')
    a(f'v_lshl_add_u32 v{T0}, v{T2}, 8, v{T0}')
    a(f'v_and_b32 v{T1}, 1, v{G}')
    a(f'v_lshl_add_u32 v{T1}, v{T1}, 2, v{T2}')
    a(f'v_and_b32 v{T2}, 3, v{I}')
    a(f'v_lshl_add_u32 v{T0}, v{T2}, 3, v{T0}')
    for t in range(8):
        a(f'v_xor_b32 v{T2}, {t}, v{T1}')
        a(f'v_lshl_add_u32 v{WQ+t}, v{T2}, 5, v{T0}')
    a('s_mul_i32 s50, s48, 6144')
    a(f's_add_u32 s50, s50, {XREG}')
    a(f'v_lshrrev_b32 v{T0}, 1, v{I}')
    a(f'v_xor_b32 v{T0}, v{T0}, v{G}')
    a(f'v_lshlrev_b32 v{T0}, 4, v{T0}')
    a(f'v_lshlrev_b32 v{T1}, 7, v{I}')
    a(f'v_add_u32 v{T1}, s50, v{T1}')
    a(f'v_add_u32 v{XR}, v{T1}, v{T0}')
    a(f'v_xor_b32 v{T0}, 64, v{T0}')
    a(f'v_add_u32 v{XR+1}, v{T1}, v{T0}')
    a('s_lshl_b32 s50, s46, 12')
    a(f'v_lshrrev_b32 v{T0}, 1, v{G}')
    a(f'v_xor_b32 v{T0}, v{T0}, v{I}')
    a(f'v_lshlrev_b32 v{T0}, 4, v{T0}')
    a(f'v_lshl_add_u32 v{T0}, v{I}, 8, v{T0}')
    a(f'v_and_b32 v{T1}, 1, v{G}')
    a(f'v_lshl_add_u32 v{T0}, v{T1}, 3, v{T0}')
    a(f'v_add_u32 v{KR}, s50, v{T0}')
    for j in range(8): a(f'v_xor_b32 v{WQ+8+j}, {j*32}, v{KR}')
    a(f's_add_u32 s50, s50, {QS}')
    a(f'v_lshrrev_b32 v{T0}, 2, v{L}')
    a(f'v_and_b32 v{T1}, 7, v{T0}')
    a(f'v_lshlrev_b32 v{T1}, 5, v{T1}')
    a(f'v_lshl_add_u32 v{T0}, v{T0}, 8, v{T1}')
    a(f'v_and_b32 v{T1}, 3, v{I}')
    a(f'v_lshl_add_u32 v{T0}, v{T1}, 3, v{T0}')
    a(f'v_add_u32 v{VRD}, s50, v{T0}')
    AR, PO, FL, ONE, OX0, GF = 4, 5, 6, 7, 2, 3
    a(f'v_lshrrev_b32 v{T0}, 2, v{L}')
    a(f'v_lshlrev_b32 v{T1}, 7, v{T0}')
    a(f'v_and_b32 v{T2}, 3, v{I}')
    a(f'v_lshl_add_u32 v{T1}, v{T2}, 3, v{T1}')
    a(f'v_lshrrev_b32 v{T0}, 1, v{T0}')
    a(f'v_and_b32 v{T0}, 3, v{T0}')
    a(f'v_xor_b32 v{T0}, s46, v{T0}')
    a(f'v_lshl_add_u32 v{T0}, v{T0}, 5, v{T1}')
    a(f'v_add_u32 v{AR}, {HS[0]}, v{T0}')
    a(f'v_mov_b32 v{PO}, v30'); a(f'v_mov_b32 v{FL}, v31'); a(f'v_mov_b32 v{GF}, v32'); a(f'v_mov_b32 v{OX0}, v33'); a(f'v_mov_b32 v{ONE}, 1')
    a(f's_mul_i32 s24, s46, {3*8192}')
    a(f's_lshl_b32 s25, s46, 14')
    a(f's_add_u32 s25, s25, {48*8192}')
    a('s_movk_i32 s27, 4096'); a('s_movk_i32 s28, 8192')
    cscale = math.log2(math.e) / math.sqrt(128.0)
    a(f's_mov_b32 s60, {f32bits(cscale):#x}')

    def FA(s, t): return F0 + s*44 + 12 + t*4
    def FB(s, mt): return F0 + s*44 + mt*4
    def frag_reads(n):
        s = n % 2
        it = []
        for mt in range(3):
            it.append(f'ds_read_b128 {vr(FB(s,mt),4)}, v{XR+(n&1)} offset:{((n>>1)%3)*12288+mt*2048}')
        for t in range(8):
            for half in range(2):
                it.append(f'ds_read_b64_tr_b16 {vr(FA(s,t)+2*half,2)}, v{WQ+t} offset:{(n%4)*16384+half*1024}')
        return it
    def mfmas(n):
        s = n % 2; it = []
        for t in range(8):
            for mt in range(3):
                d = vr(QA+(t*3+mt)*4, 4)
                c = '0' if n == 0 else d
                it.append(f'v_mfma_f32_16x16x32_bf16 {d}, {vr(FA(s,t),4)}, {vr(FB(s,mt),4)}, {c}')
        return it
    set0 = [F0 + 4*i for i in range(11)]
    set1 = [F0 + 44 + 4*i for i in range(11)]
    KFt = set1 + [SP]
    QBt = set0 + [SP+4]
    PB = SP + 8; TM = SP + 26
    VF32 = QA; VF16 = QA + 32
    SA = QA + 48
    QX = [QA + 84 + 4*i for i in range(3)]
    def kf(kt, s): return KFt[kt*4+s]
    def v_addrs(): return [f'v_xor_b32 v{WQ+t}, {t*32}, v{VRD}' for t in range(8)]
    def k_reads():
        it = []
        for s in range(4):
            for kt in range(3):
                r = kf(kt, s)
                it.append(f'ds_read_b64 {vr(r,2)}, v{WQ+8+2*s} offset:{kt*16384}')
                it.append(f'ds_read_b64 {vr(r+2,2)}, v{WQ+8+2*s+1} offset:{kt*16384}')
        return it
    def v_reads():
        it = []
        for t in range(8):
            it.append(f'ds_read_b64_tr_b16 {vr(VF32+4*t,2)}, v{WQ+t} offset:{VT[0]-QS}')
            it.append(f'ds_read_b64_tr_b16 {vr(VF32+4*t+2,2)}, v{WQ+t} offset:{VT[1]-QS}')
        for t in range(8):
            it.append(f'ds_read_b64_tr_b16 {vr(VF16+2*t,2)}, v{WQ+t} offset:{VT[2]-QS}')
        return it
    a('s_waitcnt vmcnt(0)'); a.vm = []
    a('s_barrier')
    st_()
    em(a, frag_reads(0))
    for n in range(17):
        a.comment(f'--- kstep {n}')
        a('s_waitcnt lgkmcnt(0)')
        a('s_barrier')
        if n in (3, 8, 13): st_()
        interleave(a, mfmas(n), frag_reads(n+1), ratio=1.0)
    def qb(s, qt): return QBt[qt*4+s]
    def cvt_q(qt):
        it = []
        for s in range(4):
            for hh in range(2):
                d = QA + ((2*s+hh)*3+qt)*4
                it.append(f'v_cvt_pk_bf16_f32 v{qb(s,qt)+2*hh}, v{d}, v{d+1}')
                it.append(f'v_cvt_pk_bf16_f32 v{qb(s,qt)+2*hh+1}, v{d+2}, v{d+3}')
        return it
    def sa(kt, qt): return SA + (qt*3+kt)*4
    def s_mfma(qt):
        it = []
        for s in range(4):
            for kt in range(3):
                d = vr(sa(kt,qt), 4)
                c = '0' if s == 0 else d
                it.append(f'v_mfma_f32_16x16x32_bf16 {d}, {vr(kf(kt,s),4)}, {vr(qb(s,qt),4)}, {c}')
        return it
    def softmax(qt):
        b = sa(0, qt); m = TM + 2*qt; t = m + 1
        it = []
        it.append(f'v_max3_f32 v{m}, v{b}, v{b+1}, v{b+2}')
        it.append(f'v_max3_f32 v{t}, v{b+3}, v{b+4}, v{b+5}')
        it.append(f'v_max3_f32 v{m}, v{m}, v{b+6}, v{b+7}')
        it.append(f'v_max3_f32 v{t}, v{t}, v{b+8}, v{b+9}')
        it.append(f'v_max3_f32 v{m}, v{m}, v{b+10}, v{b+11}')
        it.append(f'v_max_f32 v{m}, v{m}, v{t}')
        for sw in ('v_permlane32_swap_b32', 'v_permlane16_swap_b32'):
            it.append(f'v_mov_b32 v{t}, v{m}')
            it.append(f'{sw} v{m}, v{t}')
            it.append(f'v_max_f32 v{m}, v{m}, v{t}')
        it.append(f'v_mul_f32 v{m}, s60, v{m}')
        for j in range(12): it.append(f'v_fma_f32 v{b+j}, v{b+j}, s60, -v{m}')
        for j in range(12): it.append(f'v_exp_f32 v{b+j}, v{b+j}')
        it.append(f'v_add_f32 v{m}, v{b}, v{b+1}')
        it.append(f'v_add_f32 v{t}, v{b+2}, v{b+3}')
        for j in range(4, 12, 2):
            it.append(f'v_add_f32 v{m}, v{m}, v{b+j}')
            it.append(f'v_add_f32 v{t}, v{t}, v{b+j+1}')
        it.append(f'v_add_f32 v{m}, v{m}, v{t}')
        for sw in ('v_permlane32_swap_b32', 'v_permlane16_swap_b32'):
            it.append(f'v_mov_b32 v{t}, v{m}')
            it.append(f'{sw} v{m}, v{t}')
            it.append(f'v_add_f32 v{m}, v{m}, v{t}')
        it.append(f'v_rcp_f32 v{m}, v{m}')
        for j in range(12): it.append(f'v_mul_f32 v{b+j}, v{b+j}, v{m}')
        for j in range(6): it.append(f'v_cvt_pk_bf16_f32 v{PB+qt*6+j}, v{b+2*j}, v{b+2*j+1}')
        return it
    X0 = KFt[:8]
    X1 = KFt[8:12] + [sa(0,0), sa(1,0), sa(2,0)] + QX[:1]
    def oa(t, qt): return (X0, X1, X0)[qt][t]
    def pv_mfma(qt):
        it = []; pp = PB + qt*6
        for t in range(8):
            d = vr(oa(t,qt), 4)
            it.append(f'v_mfma_f32_16x16x32_bf16 {d}, {vr(VF32+4*t,4)}, {vr(pp,4)}, 0')
        for t in range(8):
            d = vr(oa(t,qt), 4)
            it.append(f'v_mfma_f32_16x16x16_bf16 {d}, {vr(VF16+2*t,2)}, {vr(pp+4,2)}, {d}')
        return it
    def o_pack(qt, giver):
        it = []
        for s in range(4):
            r = qb(s, qt)
            for hh in range(2):
                d = oa(2*s+hh, qt)
                it.append(f'v_cvt_pk_bf16_f32 v{r+2*hh}, v{d}, v{d+1}')
                it.append(f'v_cvt_pk_bf16_f32 v{r+2*hh+1}, v{d+2}, v{d+3}')
            if not giver: it.append(f'ds_write_b128 v{OXW}, {vr(r,4)} offset:{(qt*4+s)*1024}')
        return it
    def o_give():
        return [(f'buffer_store_dwordx4 {vr(qb(s,qt),4)}, v{OXW}, s[4:7], {["0","s27","s28"][qt]} offen offset:{s*1024}{CO}', ('G', 0)) for qt in range(3) for s in range(4)]
    def zipl(*ls):
        out = []; n = max(len(x) for x in ls)
        for i in range(n):
            for x in ls:
                if i < len(x): out.append(x[i])
        return out
    a('s_waitcnt lgkmcnt(0)')
    a('s_barrier')
    st_()
    m17 = mfmas(17)
    m17 = [m17[t*3+mt] for mt in range(3) for t in range(8)]
    interleave(a, m17[:8], v_addrs(), ratio=1)
    em(a, m17[8:12])
    interleave(a, m17[12:20], cvt_q(0), ratio=2)
    interleave(a, m17[20:24], cvt_q(1)[:8], ratio=2)
    interleave(a, k_reads(), cvt_q(1)[8:] + cvt_q(2), ratio=1)
    s0 = s_mfma(0)
    for s4 in range(4):
        a(f's_waitcnt lgkmcnt({min(15, 18-6*s4)})')
        em(a, s0[3*s4:3*s4+3])
    sm0, sm1, sm2 = softmax(0), softmax(1), softmax(2)
    em(a, s_mfma(1)[:4])
    interleave(a, s_mfma(1)[4:] + s_mfma(2), sm0[:40], ratio=2)
    st_()
    a('s_barrier')
    st_()
    z = zipl(sm0[40:], sm1[:33])
    interleave(a, v_reads(), z[:48], ratio=2)
    a('s_waitcnt lgkmcnt(0)')
    a('s_barrier')
    em(a, z[48:])
    z = zipl(sm1[33:], sm2[:40])
    interleave(a, pv_mfma(0), z, ratio=2)
    a('s_cmp_eq_u32 s57, 1')
    a('s_cbranch_scc1 GIVER')
    hist = list(a.hist)
    for giver in (0, 1):
        if giver:
            a.label('GIVER'); a.hist = list(hist)
        z = zipl(sm2[40:], o_pack(0, giver))
        interleave(a, pv_mfma(1), z, ratio=2)
        interleave(a, pv_mfma(2), o_pack(1, giver), ratio=1.25)
        em(a, o_pack(2, giver))
        if giver: em(a, o_give())
        else:
            a('s_waitcnt lgkmcnt(0)')
            a('s_branch ATT_END')
    a.label('ATT_END')
    st_()
    a('s_barrier')
    if fine: st_.on = True
    st_()
    AFR = 8; AD = 5; LA = 4
    ACC = 28
    BF = 160
    def bf(k, mt): return BF + (k*3+mt)*4
    def acc(r, mt): return ACC + (r*3+mt)*4
    NK = 144
    def a_reads(n):
        k = n % 8
        d = AFR + (n % AD)*4
        return [f'ds_read_b64_tr_b16 {vr(d+2*half,2)}, v{AR} offset:{k*4096+half*2048}' for half in range(2)]
    def b_reads(k):
        return [f'ds_read_b128 {vr(bf(k,mt),4)}, v{OX0} offset:{(k>>2)*12288+(mt*4+(k&3))*1024}' for mt in range(3)]
    def o_mfmas(n):
        u, k = n // 8, n % 8
        it = []
        for mt in range(3):
            d = vr(acc(u % 9, mt), 4)
            c = '0' if (k == 0 and u < 9) else d
            it.append(f'v_mfma_f32_16x16x32_bf16 {d}, {vr(AFR+(n%AD)*4,4)}, {vr(bf(k,mt),4)}, {c}')
        return it
    def p_pack(r):
        it = []
        for mt in range(3):
            d = acc(r, mt)
            if r < 8: q = acc(r & ~1, mt) + 2*(r & 1)
            else: q = acc(8, 0) + 2*mt
            it.append(f'v_cvt_pk_bf16_f32 v{q}, v{d}, v{d+1}')
            it.append(f'v_cvt_pk_bf16_f32 v{q+1}, v{d+2}, v{d+3}')
        return it
    def p_store(pp):
        it = []
        if pp < 4:
            for mt in range(3):
                it.append(f's_add_u32 s26, s24, {(pp*12+mt)*8192}')
                it.append((f'buffer_store_dwordx4 {vr(acc(2*pp,mt),4)}, v{PO}, s[4:7], s26 offen{CO}', ('P', pp)))
        else:
            it.append('s_add_u32 s26, s25, 8192')
            it.append((f'buffer_store_dwordx4 {vr(acc(8,0),4)}, v{PO}, s[4:7], s25 offen{CO}', ('P', pp)))
            it.append((f'buffer_store_dwordx4 {vr(acc(8,0)+4,4)}, v{PO}, s[4:7], s26 offen{CO}', ('P', pp)))
        return it
    def flag(ph, upto):
        def f():
            a.wait_vm(lambda t: t[0] == 'P' and t[1] <= upto)
            a(f'buffer_store_dword v{ONE}, v{FL}, s[4:7], 0 offen offset:{ph*512}{CO}', ('F', ph))
        return f
    def gflag():
        a('s_waitcnt vmcnt(0)'); a.vm = []
        a(f'buffer_store_dword v{ONE}, v{GF}, s[4:7], 0 offen{CO}', ('F', 9))
    lq = []
    def ds(x, tag):
        a(x); lq.append(tag)
    def need(tags):
        idx = max((i for i, t in enumerate(lq) if t in tags), default=-1)
        if idx < 0: return
        n = len(lq) - 1 - idx
        a(f's_waitcnt lgkmcnt({min(n, 15)})')
        del lq[:idx+1]
    for n in range(LA):
        for x in a_reads(n): ds(x, ('A', n))
        for x in b_reads(n): ds(x, ('B', n))
    LASTB = int(o.get('lastb', 15))
    ER = int(o.get('er', 1))
    GU = int(o.get('gu', 1))
    SA_, SB_ = int(o.get('sa', 13)), int(o.get('sb', 15))
    FA_, FB_ = int(o.get('fa', 15)), int(o.get('fb', 17))
    for u in range(18):
        a.comment(f'--- half-round {u}')
        oth = {g: [] for g in range(24)}
        g = 3
        if u >= 10:
            for x in p_pack(u-10):
                oth[g].append(x); g += 1
        if u == FA_ and FA_ > LASTB: oth[1].append(flag(0, 1))
        if u == FB_: oth[1].append(flag(1, 2))
        st = []
        if u == SA_: st += p_store(0) + p_store(1)
        if u == SB_: st += p_store(2)
        for x in st:
            oth[g].append(x)
            if not isinstance(x, str): g += 1
        for k in range(8):
            n = u*8 + k
            need({('A', n), ('B', n)} | ({('A', n+3)} if (k == 4 and u <= LASTB and ER) else set()))
            if k == 4 and u < 17:
                if u <= LASTB:
                    if u == GU: a('s_waitcnt vmcnt(0)'); a.vm = []
                    if u == FA_: a.wait_vm(lambda t: t[0] == 'P' and t[1] <= 1)
                    a('s_barrier')
                    if (u in (3, 9) and not fine) or (fine and u >= 2): st_()
                dlt = HS[(u+1) % 4] - HS[u % 4]
                a(f'v_add_u32 v{AR}, {dlt & 0xffffffff:#x}, v{AR}')
            rd = []
            if n + LA < NK: rd += [(x, ('A', n+LA)) for x in a_reads(n+LA)]
            if n + LA < 8: rd += [(x, ('B', n+LA)) for x in b_reads(n+LA)]
            if 65 <= n <= 72: rd += [(x, ('B', n+7)) for x in b_reads(n-65)]
            for i, m in enumerate(o_mfmas(n)):
                a(m)
                take = rd[:2] if len(rd) > 3 - i else rd[:1]
                rd = rd[len(take):]
                for x, tg in take: ds(x, tg)
                em(a, oth[k*3+i])
            assert not rd
    em(a, p_store(3))
    em(a, p_pack(8))
    em(a, p_store(4))
    st_()
    flag(2, 4)()
    st_()
    a('s_lshl_b32 s61, s46, 3')
    a('s_lshr_b32 s47, s43, 1')
    a('s_add_u32 s61, s61, s47')
    a('s_cmp_ge_u32 s61, 20')
    a('s_cbranch_scc1 C_DONE')
    lane_ids(a)
    reduce_block(a, 'CR', 2, 36, 61, 4, 8, o, st_ if (ts and not fine) else None)
    a.label('C_DONE')
    st_.dump(40, 41, 0, 3)
    a('s_endpgm')

    h = Asm()
    sh = Stamps(h, ts, tsmode); sh.n = 1
    h.label('HELPER')
    WO = 8; XO = 12; KO = 16; VO = 20; OW = 24; AT = 30; PV_ = 32; CV = 33; PA = 34; PD = 35; ZA = 36
    h('s_lshl_b32 s47, s3, 1')
    h('s_add_u32 s47, s47, s44')
    modn(h, 47, 48, 9)
    h('s_mov_b32 s60, s47')
    h('s_and_b32 s48, s46, 1')
    h('s_lshl_b32 s48, s48, 17')
    h('s_lshl_b32 s49, s43, 1')
    h('s_lshr_b32 s50, s46, 1')
    h('s_add_u32 s49, s49, s50')
    h('s_lshl_b32 s49, s49, 8')
    h('s_add_u32 s48, s48, s49')
    h(f'v_lshlrev_b32 v{T0}, 13, v{G}')
    h(f'v_add_u32 v{T0}, s48, v{T0}')
    h(f'v_lshlrev_b32 v{T1}, 1, v{G}')
    h(f'v_xor_b32 v{T1}, v{T1}, v{I}')
    h(f'v_lshlrev_b32 v{T1}, 4, v{T1}')
    h(f'v_xor_b32 v{T2}, 128, v{T1}')
    h(f'v_add_u32 v{T1}, v{T0}, v{T1}')
    h(f'v_add_u32 v{T2}, v{T0}, v{T2}')
    for q in range(4):
        h(f'v_add_u32 v{WO+q}, {4*q*8192 - q*1024}, v{T1 if (q >> 1) == 0 else T2}')
    h('s_mul_i32 s48, s44, 96')
    h('s_mul_i32 s49, s46, 24')
    h('s_add_u32 s48, s48, s49')
    h('s_mul_i32 s48, s48, 1152')
    h(f'v_lshrrev_b32 v{T0}, 3, v{L}')
    h(f'v_mul_u32_u24 v{T0}, 1152, v{T0}')
    h(f'v_add_u32 v7, s48, v{T0}')
    h(f'v_and_b32 v{T1}, 7, v{L}')
    h(f'v_xor_b32 v{T1}, v{T1}, v{G}')
    h('s_and_b32 s49, s46, 1')
    h('s_lshl_b32 s49, s49, 2')
    h(f'v_xor_b32 v{T1}, s49, v{T1}')
    h(f'v_lshlrev_b32 v{T1}, 4, v{T1}')
    h(f'v_xor_b32 v{T2}, 64, v{T1}')
    h(f'v_add_u32 v{T1}, v7, v{T1}')
    h(f'v_add_u32 v{T2}, v7, v{T2}')
    for pp in range(3):
        h(f'v_add_u32 v{XO+pp}, {pp*9216 - pp*1024}, v{T1 if pp % 2 == 0 else T2}')
    h('s_lshl_b32 s56, s46, 12')
    h('s_lshl_b32 s57, s46, 13')
    h('s_mul_i32 s58, s46, 3072')
    h('s_waitcnt lgkmcnt(0)')
    h('s_cmp_eq_u32 s42, 0')
    h('s_cselect_b64 s[24:25], s[24:25], s[32:33]')
    h('s_cselect_b64 s[26:27], s[26:27], s[34:35]')
    h('s_cselect_b64 s[28:29], s[28:29], s[36:37]')
    h('s_cselect_b64 s[30:31], s[30:31], s[38:39]')
    h('s_cselect_b64 s[32:33], s[20:21], s[22:23]')
    h(f's_mov_b32 s59, {KV_B}')
    h(f's_cselect_b32 s59, {KV_A}, s59')
    srd(h, 4, 24, 25, X_BYTES)
    srd(h, 8, 30, 31, W_BYTES)
    sh()
    def x_chunk(c):
        it = []
        it.append('s_lshl_b32 s48, s60, 7')
        it.append(f's_add_u32 m0, s58, {XREG + (c % 3)*12288}')
        for pp in range(3):
            it.append((f'buffer_load_dwordx4 v{XO+pp}, s[4:7], s48 offen offset:{pp*1024}{M("x")} lds', ('X', c)))
        it.append('s_add_u32 s60, s60, 1')
        it.append('s_cmp_eq_u32 s60, 9')
        it.append('s_cselect_b32 s60, 0, s60')
        return it
    def dma_stage(n):
        it = []
        it.append('s_lshl_b32 s49, s47, 19')
        if n & 1: it.append(f's_add_u32 s49, s49, {32*8192}')
        it.append(f's_add_u32 m0, s56, {QS + (n % 4)*16384}')
        for q in range(4):
            it.append((f'buffer_load_dwordx4 v{WO+q}, s[8:11], s49 offen offset:{q*1024}{M("wq")} lds', ('S', n)))
        if n & 1:
            it.append('s_add_u32 s47, s47, 1')
            it.append('s_cmp_eq_u32 s47, 9')
            it.append('s_cselect_b32 s47, 0, s47')
        return it
    em(h, x_chunk(0)); em(h, dma_stage(0)); em(h, dma_stage(1))
    srd(h, 12, 26, 27, 's59')
    srd(h, 16, 28, 29, 's59')
    srd(h, 20, 32, 33, W_BYTES)
    srd(h, 36, 54, 55, 256)
    srd(h, 28, 40, 41, WS_BYTES)
    h('s_lshl_b32 s51, s44, 1')
    h('s_lshr_b32 s50, s46, 1')
    h('s_add_u32 s51, s51, s50')
    h('s_lshl_b32 s50, s43, 1')
    h('s_and_b32 s59, s46, 1')
    h('s_add_u32 s50, s50, s59')
    h('s_cmp_eq_u32 s42, 0')
    h('s_cselect_b32 s59, 4, 5')
    h('s_cselect_b32 s50, s43, s50')
    h('s_lshl_b32 s51, s51, s59')
    h('s_add_u32 s51, s51, s50')
    h('s_mul_i32 s51, s51, 12288')
    h(f'v_lshlrev_b32 v7, 8, v{G}')
    h(f'v_add_u32 v7, s51, v7')
    h(f'v_xor_b32 v{T1}, v{I}, v{G}')
    h(f'v_lshlrev_b32 v{T1}, 4, v{T1}')
    for q in range(4):
        h(f'v_xor_b32 v{T2}, {q*64}, v{T1}')
        h(f'v_add_u32 v{KO+q}, v7, v{T2}')
    h(f'v_lshlrev_b32 v{T1}, 1, v{G}')
    h(f'v_xor_b32 v{T1}, v{I}, v{T1}')
    h(f'v_lshlrev_b32 v{T1}, 4, v{T1}')
    h(f'v_add_u32 v{VO}, v7, v{T1}')
    h(f'v_xor_b32 v{T1}, 128, v{T1}')
    h(f'v_add_u32 v{VO+1}, v7, v{T1}')
    h(f'v_cmp_eq_u32 vcc, 256, v0')
    h('s_lshr_b32 s50, s63, 4')
    h('s_lshl_b32 s50, s50, 4')
    h(f'v_mov_b32 v{ZA}, s50')
    h(f'v_mov_b32 v{T2}, {OOB:#x}')
    h(f'v_cndmask_b32 v{AT}, v{T2}, v{ZA}, vcc')
    h(f'v_mov_b32 v{AT+1}, 1')
    h('s_xor_b32 s50, s63, 1')
    h('s_lshl_b32 s51, s50, 7')
    h(f's_add_u32 s51, s51, {GOFF}')
    h(f'v_and_b32 v{T1}, 1, v{L}')
    h(f'v_lshlrev_b32 v{T1}, 2, v{T1}')
    h(f'v_add_u32 v{PA}, s51, v{T1}')
    h('s_mul_i32 s50, s50, 24576')
    h('s_mul_i32 s51, s46, 6144')
    h('s_add_u32 s50, s50, s51')
    h(f's_add_u32 s50, s50, {OSOFF}')
    h(f'v_lshlrev_b32 v{T1}, 4, v{L}')
    h(f'v_add_u32 v{PD}, s50, v{T1}')
    h('s_movk_i32 s34, 4096')
    h('s_movk_i32 s35, 8192')
    def kv_tile(which, tile):
        it = []
        base = KREG + tile*16384 if which == 0 else VT[tile]
        sr = 12 if which == 0 else 16
        so = ['0', 's34', 's35'][tile]
        it.append(f's_add_u32 m0, s56, {base}')
        for q in range(4):
            vo = KO + q if which == 0 else VO + (q & 1)
            it.append((f'buffer_load_dwordx4 v{vo}, s[{sr}:{sr+3}], {so} offen offset:{q*1024}{M("kv")} lds', ('K' if which == 0 else 'V', tile)))
        return it
    h('s_lshl_b32 s51, s46, 6')
    h('s_mul_i32 s51, s51, 1152')
    h(f'v_add_u32 v{T0}, s51, v{T0}')
    h(f'v_and_b32 v{T1}, 7, v{L}')
    h(f'v_lshlrev_b32 v{T2}, 1, v{G}')
    h(f'v_xor_b32 v{T1}, v{T1}, v{T2}')
    h(f'v_lshl_add_u32 v{T0}, v{T1}, 4, v{T0}')
    for q in range(4):
        h(f'v_add_u32 v{OW+q}, {q*8192}, v{T0}')
    h('s_mov_b32 s61, s44')
    h(f's_mul_i32 s32, s43, {256*1152}')
    h('s_xor_b32 s33, s43, 1')
    h(f's_mul_i32 s33, s33, {256*1152}')
    def wo_half(u):
        slot = HS[u % 4]
        it = []
        it.append('s_lshl_b32 s48, s61, 7')
        it.append(f's_add_u32 s48, s48, s{32 if u < 9 else 33}')
        it.append(f's_add_u32 s49, s48, {32*1152}')
        it.append(f's_add_u32 m0, s57, {slot}')
        for q in range(4):
            it.append((f'buffer_load_dwordx4 v{OW+q}, s[20:23], s48 offen offset:{q*1024}{M("wo")} lds', ('W', u)))
        it.append(f's_add_u32 m0, s57, {slot+4096}')
        for q in range(4):
            it.append((f'buffer_load_dwordx4 v{OW+q}, s[20:23], s49 offen offset:{q*1024}{M("wo")} lds', ('W', u)))
        it.append('s_add_u32 s61, s61, 1')
        it.append('s_cmp_eq_u32 s61, 9')
        it.append('s_cselect_b32 s61, 0, s61')
        return it
    spf = str(o.get('spf', ''))
    pf = []
    if 'w' in spf:
        h('s_lshl_b32 s50, s46, 6')
        h('s_mul_i32 s50, s50, 1152')
        h('s_add_u32 s50, s50, s32')
        h('s_lshl_b32 s51, s44, 7')
        h('s_add_u32 s50, s50, s51')
        h('s_add_u32 s24, s20, s50'); h('s_addc_u32 s25, s21, 0')
        h('s_lshl_b32 s50, s44, 2')
        h('s_add_u32 s50, s50, s46')
        h(f's_mul_i32 s50, s50, {8*1152}')
        h('s_add_u32 s50, s50, s32')
        h('s_add_u32 s26, s20, s50'); h('s_addc_u32 s27, s21, 0')
        pf += [f's_load_dword s{96 + (i % 4)}, s[26:27], {(i >> 1)*1152 + 1024 + (i & 1)*64}' for i in range(16)]
        pf += [f's_load_dword s{96 + (i % 4)}, s[24:25], {(i >> 1)*1152 + (i & 1)*64}' for i in range(128)]
    npf = int(o.get('npf', 5)); pf0 = int(o.get('pf0', 0))
    em(h, x_chunk(1)); em(h, dma_stage(2))
    sh()
    h.wait_vm(lambda t: t == ('S', 0))
    h('s_barrier')
    h('s_cmp_lg_u32 s46, 0')
    h('s_cbranch_scc1 H_NOCNT')
    h('s_lshr_b32 s50, s63, 4')
    h('s_lshl_b32 s50, s50, 4')
    h('s_mov_b32 s100, 1')
    h('s_atomic_add s100, s[54:55], s50')
    h.label('H_NOCNT')
    em(h, dma_stage(3)); em(h, x_chunk(2))
    kats = [int(x) for x in str(o.get('kat', '8')).split(',')]
    vm0 = list(h.vm)
    if len(kats) > 1:
        h(f's_and_b32 s59, s44, {len(kats)-1}')
        for vi in range(1, len(kats)):
            h(f's_cmp_eq_u32 s59, {vi}')
            h(f's_cbranch_scc1 HQ{vi}')
    n0 = sh.n
    for vi, kat in enumerate(kats):
        h.vm = list(vm0); sh.n = n0
        if vi: h.label(f'HQ{vi}')
        for n in range(17):
            h.wait_vm(lambda t: t == ('S', n+1) or t == ('X', (n+1) >> 1))
            h('s_barrier')
            if n in (3, 8, 13): sh()
            if n + 4 <= 17: em(h, dma_stage(n+4))
            if (n & 1) and (n >> 1) + 3 <= 8: em(h, x_chunk((n >> 1) + 3))
            if o.get('kall'):
                if n == kat:
                    for tile in range(3): em(h, kv_tile(0, tile))
            elif kat <= n < kat + 3: em(h, kv_tile(0, n - kat))
            if n >= 14: em(h, kv_tile(1, n - 14))
            if pf0 <= n <= int(o.get('pf1', 16)): em(h, pf[(n-pf0)*npf:(n-pf0+1)*npf])
        h.wait_vm(lambda t: t[0] == 'K')
        assert all(t[0] == 'V' for t in h.vm), h.vm
        h.vm = [('V', 0)]*12
        if vi + 1 < len(kats): h('s_branch HQ_END')
    h.label('HQ_END')
    sh()
    h('s_barrier')
    cload = f'buffer_load_dword v{CV}, v{ZA}, s[36:39], 0 offen{CO}'
    h(cload, ('C', 0))
    em(h, wo_half(0))
    h.wait_vm(lambda t: t[0] == 'V')
    sh()
    h('s_barrier')
    h('s_barrier')
    em(h, wo_half(1)); em(h, wo_half(2))
    h.wait_vm(lambda t: t == ('W', 0))
    if int(o.get('w3early', 0)): em(h, wo_half(3))
    sh()
    h('s_barrier')
    check_or_poll(h, 'HC', cload, CV, 16)
    if not int(o.get('w3early', 0)): em(h, wo_half(3))
    PI, PC = int(o.get('pi', 3)), int(o.get('pc', 5))
    h('s_lshl_b32 s24, s63, 7')
    h(f's_add_u32 s24, s24, {GOFF}')
    h('s_xor_b32 s25, s24, 128')
    h('s_lshl_b32 s26, s42, 4')
    h('s_add_u32 s26, s26, s62')
    h(f's_mul_i32 s26, s26, {NP*4}')
    h('s_add_u32 s26, s26, s46')
    h('s_lshl_b32 s26, s26, 7')
    h('s_lshr_b32 s27, s43, 1')
    h('s_lshl_b32 s27, s27, 2')
    h('s_add_u32 s26, s26, s27')
    h(f's_add_u32 s26, s26, {FOFF}')
    h('s_mov_b32 s100, 1')
    assert GOFF % 256 == 0
    nxt = 4
    for u in range(LASTB+1):
        if u < LASTB:
            assert nxt > u+1
            h.wait_vm(lambda t: t == ('W', u+1) or (u == 7 and t[0] == 'O'))
        else:
            assert nxt == 18
            h.wait_vm(lambda t: t[0] == 'W')
        h('s_barrier')
        if u == GU:
            h('s_cmp_lg_u32 s46, 0')
            h('s_cbranch_scc1 H_NOG')
            h('s_atomic_add s100, s[40:41], s24')
            h.label('H_NOG')
        if u == FA_: h('s_atomic_add s100, s[40:41], s26')
        if u == PC:
            h('s_mov_b32 s59, 0')
            h.label('HP_POLL')
            h('s_waitcnt lgkmcnt(0)')
            h('s_cmp_ge_u32 s101, 1')
            h('s_cbranch_scc1 HP_GO')
            h('s_load_dword s101, s[40:41], s25 glc')
            h('s_add_u32 s59, s59, 1')
            h('s_cmp_lt_u32 s59, 0x40000')
            h('s_cbranch_scc1 HP_POLL')
            h.label('HP_GO')
            h('s_mul_i32 s48, s46, 6144')
            h('s_mov_b32 m0, s48')
            for q in range(4): h(f'buffer_load_dwordx4 v{PD}, s[28:31], 0 offen offset:{q*1024}{CO} lds', ('O', q))
            h('s_add_u32 m0, s48, 4096')
            for q in range(2): h(f'buffer_load_dwordx4 v{PD}, s[28:31], s34 offen offset:{q*1024}{CO} lds', ('O', q))
        if u == PI: h('s_load_dword s101, s[40:41], s25 glc')
        if nxt <= 17 and nxt - 4 <= u - 1 + ER:
            em(h, wo_half(nxt)); nxt += 1
    assert nxt == 18, nxt
    sh()
    srd(h, 8, 52, 53, OUT_BYTES)
    h('s_lshl_b32 s61, s46, 3')
    h('s_lshr_b32 s47, s43, 1')
    h('s_add_u32 s61, s61, s47')
    h('s_cmp_ge_u32 s61, 24')
    h('s_cbranch_scc1 HA_DONE')
    reduce_block(h, 'HA', 0, 0, 61, 28, 8, o, sh if ts else None)
    h.label('HA_DONE')
    sh()
    h('s_sub_u32 s61, 31, s61')
    h('s_cmp_ge_u32 s61, 12')
    h('s_cbranch_scc1 HB_DONE')
    h('s_nop 1')
    reduce_block(h, 'HB', 1, 24, 61, 28, 8, o, sh if ts else None)
    h.label('HB_DONE')
    sh.dump(40, 41, 0, 3)
    h.label('M_END')
    h('s_endpgm')
    h.label('CODE_END')
    print('main: compute inst', a.ninst, 'nops', a.nops_inserted, 'helper', h.ninst, 'stamps', st_.n, sh.n)
    return p.text() + a.text() + h.text()

if __name__ == '__main__':
    out = sys.argv[1]
    o = dict(x.split('=') if '=' in x else (x, 1) for x in sys.argv[2:])
    SLEEP = int(o.get('sleep', 1))
    txt = build_file([dict(name=NAME + '_kernel', grid=256, block=512, lds=163840, body=gen_main(o), vgpr=256, sgpr=102, accum=256)])
    open(out, 'w').write(txt)
```

```python
import sys, struct, math
sys.path.insert(0, 'gen')
from asmgen import Asm, interleave
from common import *
from v2 import Stamps, srd, em, f32bits, vr

X_BYTES = 16*48*576*2
W_BYTES = 576*4096*2
KV_A = 16*16*48*128*2
KV_B = 16*32*48*128*2
OUT_BYTES = 16*48*1152*2
NBLK = 57
P_BYTES = 32*NBLK*8*1024
OSOFF = P_BYTES
FOFF = OSOFF + 256*24576
NP = 3
GOFF = FOFF + 32*NP*4*128
WS_BYTES = GOFF + 256*128
OOB = 0x7ffffff0

KREG = 0; XREG = 49152; QS = 98304
VT = [131072, 147456, 98304]
HS = [65536, 32768, 98304, 131072]
L, I, G, T0, T1, T2 = 1, 2, 3, 4, 5, 6
CO = ' sc0 sc1'
SLEEP = 1
SP0 = 64

def lane_ids(a):
    a(f'v_and_b32 v{L}, 63, v0')
    a(f'v_and_b32 v{I}, 15, v0')
    a(f'v_lshrrev_b32 v{G}, 4, v{L}')

def modn(a, d, t, n):
    a(f's_cmp_ge_u32 s{d}, {n}')
    a(f's_cselect_b32 s{t}, {n}, 0')
    a(f's_sub_u32 s{d}, s{d}, s{t}')

def poll(a, lbl, load, vreg, expect, keep_vm=False):
    vm = list(a.vm)
    a('s_mov_b32 s59, 0')
    a.label(f'{lbl}_POLL')
    a(load)
    a('s_waitcnt vmcnt(0)')
    a(f'v_cmp_gt_u32 vcc, {expect}, v{vreg}')
    a('s_add_u32 s59, s59, 1')
    a('s_nop 0')
    a(f's_cbranch_vccz {lbl}_GO')
    a(f's_sleep {SLEEP}')
    a('s_cmp_lt_u32 s59, 0x40000')
    a(f's_cbranch_scc1 {lbl}_POLL')
    a.label(f'{lbl}_GO')
    a.vm = vm if keep_vm else []

def check_or_poll(a, lbl, load, vreg, expect):
    a(f'v_cmp_gt_u32 vcc, {expect}, v{vreg}')
    a('s_nop 1')
    a(f's_cbranch_vccz {lbl}_GO')
    poll(a, lbl, load, vreg, expect, keep_vm=True)

def reduce_block(a, lbl, phase, blk0, sidx, srd_ws, srd_out, o, st=None):
    M = lambda k: (' ' + o[k].replace('+', ' ')) if k in o else ''
    if phase is not None: a(f's_add_u32 s47, s{sidx}, {blk0}')
    a('s_mul_i32 s48, s47, 171')
    a('s_lshr_b32 s48, s48, 11')
    a('s_mul_i32 s49, s48, 12')
    a('s_sub_u32 s49, s47, s49')
    a('s_mul_i32 s50, s49, 43')
    a('s_lshr_b32 s50, s50, 7')
    a('s_mul_i32 s51, s50, 3')
    a('s_sub_u32 s51, s49, s51')
    a('s_lshr_b32 s56, s49, 1')
    a('s_and_b32 s57, s49, 1')
    a('s_lshl_b32 s57, s57, 1')
    a('s_cmp_eq_u32 s48, 4')
    a('s_cselect_b32 s50, s56, s50')
    a('s_cselect_b32 s51, s57, s51')
    a('s_cselect_b32 s56, 1, 0')
    a('s_cselect_b32 s57, 0, 1')
    a('s_add_u32 s56, s56, s51')
    a('s_lshl_b32 s48, s48, 1')
    a('s_add_u32 s48, s48, s44')
    a('s_add_u32 s57, s57, s48')
    modn(a, 48, 58, 9); modn(a, 57, 58, 9)
    a('s_mul_i32 s58, s62, 110592')
    a('s_mul_i32 s59, s42, 1152')
    a('s_add_u32 s58, s58, s59')
    a('s_lshl_b32 s59, s50, 5')
    a('s_add_u32 s58, s58, s59')
    a(f'v_mul_u32_u24 v7, 2304, v{I}')
    a(f'v_lshl_add_u32 v7, v{G}, 3, v7')
    a(f'v_add_u32 v7, s58, v7')
    a('s_mul_i32 s51, s51, 36864')
    a('s_lshl_b32 s48, s48, 7')
    a('s_add_u32 s48, s48, s51')
    a('s_cmp_eq_u32 s56, 3')
    a('s_mul_i32 s56, s56, 36864')
    a(f's_cselect_b32 s56, {OOB:#x}, s56')
    a('s_lshl_b32 s57, s57, 7')
    a('s_add_u32 s57, s57, s56')
    a('s_lshl_b32 s51, s42, 4')
    a('s_add_u32 s51, s51, s62')
    a(f's_mul_i32 s56, s51, {NP*4}')
    a('s_add_u32 s56, s56, s50')
    a('s_lshl_b32 s56, s56, 7')
    if phase is not None: a(f's_add_u32 s56, s56, {FOFF + phase*512}')
    else: a('s_add_u32 s56, s56, s99')
    a(f's_mul_i32 s51, s51, {NBLK*8}')
    a('s_add_u32 s51, s51, s47')
    a('s_lshl_b32 s51, s51, 10')
    a(f'v_lshlrev_b32 v{T1}, 4, v{L}')
    a(f'v_add_u32 v{T1}, s51, v{T1}')
    D = 16; ACC = 8
    r0 = SP0
    a(f's_load_dwordx8 s[{r0}:{r0+7}], s[40:41], s56 glc')
    a('s_mov_b32 s59, 0xffff0000')
    a('s_mov_b32 s58, 0')
    if o.get('dot'):
        a('v_mov_b32 v48, 0x3f80'); a('v_mov_b32 v49, 0x3f800000')
    a.label(f'{lbl}_BODY')
    a('s_cmp_eq_u32 s58, 0')
    a(f's_cbranch_scc1 {lbl}_SUM')
    a.vm = []
    for hq in range(8):
        if hq: a(f's_mov_b32 s47, {hq*NBLK*1024}')
        a(f'buffer_load_dwordx4 {vr(D+4*hq,4)}, v{T1}, s[{srd_ws}:{srd_ws+3}], {"s47" if hq else "0"} offen{CO}', ('R', hq))
    a.label(f'{lbl}_SUM')
    for hq in range(8):
        a.wait_vm(lambda t: t == ('R', hq))
        for j in range(4):
            r = D + 4*hq + j
            if hq == 0:
                a(f'v_lshlrev_b32 v{ACC+2*j}, 16, v{r}')
                a(f'v_and_b32 v{ACC+2*j+1}, s59, v{r}')
            elif o.get('dot'):
                a(f'v_dot2c_f32_bf16 v{ACC+2*j}, v{r}, v48')
                a(f'v_dot2c_f32_bf16 v{ACC+2*j+1}, v{r}, v49')
            else:
                a(f'v_lshlrev_b32 v{T2}, 16, v{r}')
                a(f'v_and_b32 v{r}, s59, v{r}')
                a(f'v_add_f32 v{ACC+2*j}, v{ACC+2*j}, v{T2}')
                a(f'v_add_f32 v{ACC+2*j+1}, v{ACC+2*j+1}, v{r}')
    if o.get('dot'): a('s_nop 2')
    for j in range(4):
        a(f'v_cvt_pk_bf16_f32 v{D+j}, v{ACC+2*j}, v{ACC+2*j+1}')
    a('s_cmp_lg_u32 s58, 0')
    a(f's_cbranch_scc1 {lbl}_OUT')
    a.label(f'{lbl}_POLL')
    a('s_waitcnt lgkmcnt(0)')
    a('s_add_u32 s58, s58, 1')
    a(f's_and_b64 s[16:17], s[{r0}:{r0+1}], s[{r0+2}:{r0+3}]')
    a(f's_and_b64 s[18:19], s[{r0+4}:{r0+5}], s[{r0+6}:{r0+7}]')
    a('s_and_b64 s[16:17], s[16:17], s[18:19]')
    a('s_and_b32 s16, s16, s17')
    a(f's_cbranch_scc1 {lbl}_GO')
    a(f's_load_dwordx8 s[{r0}:{r0+7}], s[40:41], s56 glc')
    a('s_cmp_lt_u32 s58, 0x40000')
    a(f's_cbranch_scc1 {lbl}_POLL')
    a('s_waitcnt lgkmcnt(0)')
    a.label(f'{lbl}_GO')
    if st: st()
    a(f's_branch {lbl}_BODY')
    a.label(f'{lbl}_OUT')
    a(f'buffer_store_dwordx2 {vr(D,2)}, v7, s[{srd_out}:{srd_out+3}], s48 offen{M("out")}')
    a(f'buffer_store_dwordx2 {vr(D+2,2)}, v7, s[{srd_out}:{srd_out+3}], s57 offen{M("out")}')

def gen_main(o):
    ts = o.get('ts'); tsmode = o.get('tsmode', 's_memrealtime')
    M = lambda k: (' ' + o[k].replace('+', ' ')) if k in o else ''
    p = Asm()
    p.label('KSTART')
    p('s_cmp_ge_u32 s2, 256')
    p('s_cbranch_scc1 M_END')
    if ts: p(f'{tsmode} s[64:65]')
    p('s_load_dwordx8 s[24:31], s[0:1], 0')
    p('s_load_dwordx8 s[32:39], s[0:1], 40')
    p('s_load_dwordx2 s[40:41], s[0:1], 96')
    p('s_load_dwordx2 s[20:21], s[0:1], 32')
    p('s_load_dwordx2 s[22:23], s[0:1], 72')
    p('s_load_dwordx4 s[52:55], s[0:1], 80')
    if o.get('cpf') == 'e':
        p(f'v_lshrrev_b32 v{T0}, 6, v0')
        p('s_getpc_b64 s[16:17]')
        p.label('PCREF')
        p(f'v_readfirstlane_b32 s45, v{T0}')
        p('s_cmp_lt_u32 s45, 4')
        p('s_cbranch_scc1 NOCPF')
        p('s_lshr_b32 s18, s2, 3')
        p('s_lshl_b32 s18, s18, 2')
        p('s_add_u32 s18, s18, s45')
        p('s_lshl_b32 s18, s18, 8')
        p('s_sub_u32 s18, s18, 1024')
        p('s_min_u32 s18, s18, CODE_END - PCREF - 196')
        p('s_add_u32 s16, s16, s18'); p('s_addc_u32 s17, s17, 0')
        for i in range(4): p(f's_load_dword s{96+i}, s[16:17], {i*64}')
        p.label('NOCPF')
    p('s_and_b32 s47, s2, 7')
    p('s_lshr_b32 s48, s2, 3')
    p('s_lshr_b32 s42, s47, 2')
    p('s_and_b32 s49, s47, 3')
    p('s_lshl_b32 s49, s49, 2')
    p('s_and_b32 s3, s48, 3')
    p('s_add_u32 s43, s49, s3')
    p('s_lshr_b32 s44, s48, 2')
    p('s_and_b32 s49, s43, 1')
    p('s_lshl_b32 s62, s44, 1')
    p('s_add_u32 s62, s62, s49')
    p('s_lshl_b32 s63, s42, 3')
    p('s_add_u32 s63, s63, s44')
    p('s_lshl_b32 s63, s63, 4')
    p('s_add_u32 s63, s63, s43')
    p(f'v_lshrrev_b32 v{T0}, 6, v0')
    lane_ids(p)
    p(f'v_readfirstlane_b32 s45, v{T0}')
    p('s_and_b32 s46, s45, 3')
    p('s_xor_b32 s45, s45, 4')
    p('s_cmp_lt_u32 s45, 4')
    p('s_cbranch_scc1 COMPUTE')

    a = Asm()
    st_ = Stamps(a, ts, tsmode); st_.n = 1
    fine = o.get('fine')
    if fine: st_.on = False
    a.label('COMPUTE')
    WQ = 8; XR = 24; KR = 26; VRD = 27; OXW = 28
    QA = 40; F0 = 136; SP = 224
    a('s_lshr_b32 s48, s46, 1')
    a('s_and_b32 s49, s46, 1')
    a('s_and_b32 s50, s43, 1')
    a('s_xor_b32 s57, s48, s50')
    a('s_lshl_b32 s50, s42, 4')
    a('s_add_u32 s50, s50, s62')
    a(f's_mul_i32 s51, s50, {NP*4}')
    a('s_add_u32 s51, s51, s46')
    a('s_lshl_b32 s51, s51, 7')
    a('s_lshr_b32 s56, s43, 1')
    a('s_lshl_b32 s58, s56, 2')
    a('s_add_u32 s51, s51, s58')
    a(f's_add_u32 s61, s51, {FOFF}')
    a('s_lshl_b32 s51, s63, 7')
    a(f's_add_u32 s51, s51, {GOFF}')
    a('s_cmp_eq_u32 s46, 0')
    a(f's_cselect_b32 s51, s51, {OOB:#x}')
    a(f'v_lshlrev_b32 v{T0}, 9, v{L}')
    a(f'v_add_u32 v{T0}, s61, v{T0}')
    a(f'v_mov_b32 v{T1}, {OOB:#x}')
    a(f'v_cmp_gt_u32 vcc, {NP}, v{L}')
    a(f'v_cndmask_b32 v{T2}, v{T1}, v{T0}, vcc')
    a(f'v_mov_b32 v{T0}, s51')
    a(f'v_cmp_eq_u32 vcc, {NP}, v{L}')
    a(f'v_cndmask_b32 v{T2}, v{T2}, v{T0}, vcc')
    a(f'v_cmp_eq_u32 vcc, 0, v{L}')
    a(f'v_mov_b32 v{T0}, s61')
    a(f'v_cndmask_b32 v31, v{T1}, v{T0}, vcc')
    a(f'v_mov_b32 v7, 0')
    a('s_waitcnt lgkmcnt(0)')
    srd(a, 4, 40, 41, WS_BYTES)
    a(f'buffer_store_dword v7, v{T2}, s[4:7], 0 offen{CO}')
    cpf = o.get('cpf')
    if cpf == 's':
        a('s_getpc_b64 s[16:17]')
        a.label('PCREF')
        a('s_sub_u32 s16, s16, PCREF - KSTART'); a('s_subb_u32 s17, s17, 0')
        if cpf == 's':
            a('s_lshr_b32 s18, s2, 3')
            a('s_lshl_b32 s18, s18, 2')
            a('s_add_u32 s18, s18, s46')
            a('s_mul_i32 s18, s18, 256')
            a('s_min_u32 s18, s18, CODE_END - KSTART - 196')
            a('s_add_u32 s16, s16, s18'); a('s_addc_u32 s17, s17, 0')
            for i in range(4): a(f's_load_dword s{96+i}, s[16:17], {i*64}')
        else:
            pass
    srd(a, 8, 52, 53, OUT_BYTES)
    a('s_lshl_b32 s50, s50, 3')
    a('s_add_u32 s50, s50, s56')
    a(f's_mul_i32 s58, s50, {NBLK*1024}')
    a(f'v_lshlrev_b32 v{T0}, 4, v{L}')
    a(f'v_add_u32 v30, s58, v{T0}')
    a('s_mul_i32 s50, s49, 12288')
    a('s_mul_i32 s51, s63, 24576')
    a(f's_add_u32 s51, s51, {OSOFF}')
    a('s_add_u32 s51, s51, s50')
    a('s_cmp_eq_u32 s57, 1')
    a(f's_cselect_b32 s51, s51, {OOB - 4096:#x}')
    a(f'v_add_u32 v{OXW}, s50, v{T0}')
    a(f'v_add_u32 v32, s51, v{T0}')
    a(f'v_mov_b32 v33, v{T0}')
    a('s_lshl_b32 s50, s49, 13')
    a(f's_add_u32 s50, s50, {QS}')
    a(f'v_lshlrev_b32 v{T0}, 11, v{G}')
    a(f'v_add_u32 v{T0}, s50, v{T0}')
    a(f'v_lshrrev_b32 v{T2}, 2, v{I}')
    a(f'v_lshl_add_u32 v{T0}, v{T2}, 8, v{T0}')
    a(f'v_and_b32 v{T1}, 1, v{G}')
    a(f'v_lshl_add_u32 v{T1}, v{T1}, 2, v{T2}')
    a(f'v_and_b32 v{T2}, 3, v{I}')
    a(f'v_lshl_add_u32 v{T0}, v{T2}, 3, v{T0}')
    for t in range(8):
        a(f'v_xor_b32 v{T2}, {t}, v{T1}')
        a(f'v_lshl_add_u32 v{WQ+t}, v{T2}, 5, v{T0}')
    a('s_mul_i32 s50, s48, 6144')
    a(f's_add_u32 s50, s50, {XREG}')
    a(f'v_lshrrev_b32 v{T0}, 1, v{I}')
    a(f'v_xor_b32 v{T0}, v{T0}, v{G}')
    a(f'v_lshlrev_b32 v{T0}, 4, v{T0}')
    a(f'v_lshlrev_b32 v{T1}, 7, v{I}')
    a(f'v_add_u32 v{T1}, s50, v{T1}')
    a(f'v_add_u32 v{XR}, v{T1}, v{T0}')
    a(f'v_xor_b32 v{T0}, 64, v{T0}')
    a(f'v_add_u32 v{XR+1}, v{T1}, v{T0}')
    a('s_lshl_b32 s50, s46, 12')
    a(f'v_lshrrev_b32 v{T0}, 1, v{G}')
    a(f'v_xor_b32 v{T0}, v{T0}, v{I}')
    a(f'v_lshlrev_b32 v{T0}, 4, v{T0}')
    a(f'v_lshl_add_u32 v{T0}, v{I}, 8, v{T0}')
    a(f'v_and_b32 v{T1}, 1, v{G}')
    a(f'v_lshl_add_u32 v{T0}, v{T1}, 3, v{T0}')
    a(f'v_add_u32 v{KR}, s50, v{T0}')
    for j in range(8): a(f'v_xor_b32 v{WQ+8+j}, {j*32}, v{KR}')
    a(f's_add_u32 s50, s50, {QS}')
    a(f'v_lshrrev_b32 v{T0}, 2, v{L}')
    a(f'v_and_b32 v{T1}, 7, v{T0}')
    a(f'v_lshlrev_b32 v{T1}, 5, v{T1}')
    a(f'v_lshl_add_u32 v{T0}, v{T0}, 8, v{T1}')
    a(f'v_and_b32 v{T1}, 3, v{I}')
    a(f'v_lshl_add_u32 v{T0}, v{T1}, 3, v{T0}')
    a(f'v_add_u32 v{VRD}, s50, v{T0}')
    AR, PO, FL, ONE, OX0, GF = 4, 5, 6, 7, 2, 3
    a(f'v_lshrrev_b32 v{T0}, 2, v{L}')
    a(f'v_lshlrev_b32 v{T1}, 7, v{T0}')
    a(f'v_and_b32 v{T2}, 3, v{I}')
    a(f'v_lshl_add_u32 v{T1}, v{T2}, 3, v{T1}')
    a(f'v_lshrrev_b32 v{T0}, 1, v{T0}')
    a(f'v_and_b32 v{T0}, 3, v{T0}')
    a(f'v_xor_b32 v{T0}, s46, v{T0}')
    a(f'v_lshl_add_u32 v{T0}, v{T0}, 5, v{T1}')
    a(f'v_add_u32 v{AR}, {HS[0]}, v{T0}')
    a(f'v_mov_b32 v{PO}, v30'); a(f'v_mov_b32 v{FL}, v31'); a(f'v_mov_b32 v{GF}, v32'); a(f'v_mov_b32 v{OX0}, v33'); a(f'v_mov_b32 v{ONE}, 1')
    if o.get('tlb'):
        a('s_cmp_eq_u32 s42, 0')
        a('s_cselect_b64 s[26:27], s[26:27], s[34:35]')
        a('s_cselect_b64 s[28:29], s[28:29], s[36:37]')
        a('s_cselect_b64 s[32:33], s[20:21], s[22:23]')
        a(f's_mov_b32 s59, {KV_B}')
        a(f's_cselect_b32 s59, {KV_A}, s59')
        a('s_cselect_b32 s58, 4, 5')
        a('s_lshl_b32 s50, s43, 1')
        a('s_add_u32 s50, s50, s49')
        a('s_cmp_eq_u32 s42, 0')
        a('s_cselect_b32 s50, s43, s50')
        a('s_lshl_b32 s51, s44, 1')
        a('s_add_u32 s51, s51, s48')
        a('s_lshl_b32 s51, s51, s58')
        a('s_add_u32 s51, s51, s50')
        a('s_mul_i32 s51, s51, 12288')
        a('v_mov_b32 v34, 0')
        srd(a, 12, 26, 27, 's59')
        a('buffer_load_dword v35, v34, s[12:15], s51 offen')
        srd(a, 16, 28, 29, 's59')
        a('buffer_load_dword v36, v34, s[16:19], s51 offen')
        srd(a, 20, 32, 33, W_BYTES)
        a('s_and_b32 s50, s43, 14')
        a('s_lshl_b32 s50, s50, 1')
        a('s_add_u32 s50, s50, s46')
        a(f's_mul_i32 s50, s50, {128*1152}')
        a('buffer_load_dword v37, v34, s[20:23], s50 offen')
        a('v_readfirstlane_b32 s50, v30')
        a(f's_mul_i32 s51, s46, {14*8192}')
        a('s_add_u32 s50, s50, s51')
        a('buffer_load_dword v38, v34, s[4:7], s50 offen')
        a('s_mul_i32 s50, s63, 24576')
        a(f's_add_u32 s50, s50, {OSOFF}')
        a('buffer_load_dword v39, v34, s[4:7], s50 offen')
        a('s_mul_i32 s50, s62, 110592')
        a('buffer_load_dword v29, v34, s[8:11], s50 offen')
    a(f's_mul_i32 s24, s46, {3*1024}')
    a(f's_lshl_b32 s25, s46, 11')
    a(f's_add_u32 s25, s25, {48*1024}')
    a('s_movk_i32 s27, 4096'); a('s_movk_i32 s28, 8192')
    cscale = math.log2(math.e) / math.sqrt(128.0)
    a(f's_mov_b32 s60, {f32bits(cscale):#x}')

    def FA(s, t): return F0 + s*44 + 12 + t*4
    def FB(s, mt): return F0 + s*44 + mt*4
    def frag_reads(n):
        s = n % 2
        it = []
        for mt in range(3):
            it.append(f'ds_read_b128 {vr(FB(s,mt),4)}, v{XR+(n&1)} offset:{((n>>1)%3)*12288+mt*2048}')
        for t in range(8):
            for half in range(2):
                it.append(f'ds_read_b64_tr_b16 {vr(FA(s,t)+2*half,2)}, v{WQ+t} offset:{(n%4)*16384+half*1024}')
        return it
    def mfmas(n):
        s = n % 2; it = []
        for t in range(8):
            for mt in range(3):
                d = vr(QA+(t*3+mt)*4, 4)
                c = '0' if n == 0 else d
                it.append(f'v_mfma_f32_16x16x32_bf16 {d}, {vr(FA(s,t),4)}, {vr(FB(s,mt),4)}, {c}')
        return it
    set0 = [F0 + 4*i for i in range(11)]
    set1 = [F0 + 44 + 4*i for i in range(11)]
    def tile(t, mt): return QA + (t*3+mt)*4
    KFt = set0 + [SP]
    PB = SP + 8; TM = SP + 26
    odd = [tile(t, mt) for t in (1, 3, 5, 7) for mt in range(3)]
    VF32t = odd[:8]; VF16t = [odd[8 + (t >> 1)] + 2*(t & 1) for t in range(8)]
    SA = F0 + 44
    QX = [F0 + 80]
    def kf(kt, s): return KFt[kt*4+s]
    def v_addrs(): return [f'v_xor_b32 v{WQ+t}, {t*32}, v{VRD}' for t in range(8)]
    def k_reads():
        it = []
        for s in range(4):
            for kt in range(3):
                r = kf(kt, s)
                it.append(f'ds_read_b64 {vr(r,2)}, v{WQ+8+2*s} offset:{kt*16384}')
                it.append(f'ds_read_b64 {vr(r+2,2)}, v{WQ+8+2*s+1} offset:{kt*16384}')
        return it
    def v_reads():
        it = []
        for t in range(8):
            it.append(f'ds_read_b64_tr_b16 {vr(VF32t[t],2)}, v{WQ+t} offset:{VT[0]-QS}')
            it.append(f'ds_read_b64_tr_b16 {vr(VF32t[t]+2,2)}, v{WQ+t} offset:{VT[1]-QS}')
        for t in range(8):
            it.append(f'ds_read_b64_tr_b16 {vr(VF16t[t],2)}, v{WQ+t} offset:{VT[2]-QS}')
        return it
    a(f's_setprio {o.get("cprio", 2)}')
    a('s_barrier')
    st_()
    em(a, frag_reads(0))
    for n in range(17):
        a.comment(f'--- kstep {n}')
        a('s_waitcnt lgkmcnt(0)' if n != 3 else 's_waitcnt vmcnt(0) lgkmcnt(0)')
        if n == 3: a.vm = []
        a('s_barrier')
        if n in (3, 8, 13): st_()
        interleave(a, mfmas(n), frag_reads(n+1), ratio=1.0)
    def qb(s, qt): return tile(2*s, qt)
    def cvt_q(qt):
        it = []
        for s in range(4):
            for hh in range(2):
                d = QA + ((2*s+hh)*3+qt)*4
                it.append(f'v_cvt_pk_bf16_f32 v{qb(s,qt)+2*hh}, v{d}, v{d+1}')
                it.append(f'v_cvt_pk_bf16_f32 v{qb(s,qt)+2*hh+1}, v{d+2}, v{d+3}')
        return it
    def sa(kt, qt): return SA + (qt*3+kt)*4
    def s_mfma(qt):
        it = []
        for s in range(4):
            for kt in range(3):
                d = vr(sa(kt,qt), 4)
                c = '0' if s == 0 else d
                it.append(f'v_mfma_f32_16x16x32_bf16 {d}, {vr(kf(kt,s),4)}, {vr(qb(s,qt),4)}, {c}')
        return it
    def softmax(qt):
        b = sa(0, qt); m = TM + 2*qt; t = m + 1
        it = []
        it.append(f'v_max3_f32 v{m}, v{b}, v{b+1}, v{b+2}')
        it.append(f'v_max3_f32 v{t}, v{b+3}, v{b+4}, v{b+5}')
        it.append(f'v_max3_f32 v{m}, v{m}, v{b+6}, v{b+7}')
        it.append(f'v_max3_f32 v{t}, v{t}, v{b+8}, v{b+9}')
        it.append(f'v_max3_f32 v{m}, v{m}, v{b+10}, v{b+11}')
        it.append(f'v_max_f32 v{m}, v{m}, v{t}')
        for sw in ('v_permlane32_swap_b32', 'v_permlane16_swap_b32'):
            it.append(f'v_mov_b32 v{t}, v{m}')
            it.append(f'{sw} v{m}, v{t}')
            it.append(f'v_max_f32 v{m}, v{m}, v{t}')
        it.append(f'v_mul_f32 v{m}, s60, v{m}')
        for j in range(12): it.append(f'v_fma_f32 v{b+j}, v{b+j}, s60, -v{m}')
        for j in range(12): it.append(f'v_exp_f32 v{b+j}, v{b+j}')
        it.append(f'v_add_f32 v{m}, v{b}, v{b+1}')
        it.append(f'v_add_f32 v{t}, v{b+2}, v{b+3}')
        for j in range(4, 12, 2):
            it.append(f'v_add_f32 v{m}, v{m}, v{b+j}')
            it.append(f'v_add_f32 v{t}, v{t}, v{b+j+1}')
        it.append(f'v_add_f32 v{m}, v{m}, v{t}')
        for sw in ('v_permlane32_swap_b32', 'v_permlane16_swap_b32'):
            it.append(f'v_mov_b32 v{t}, v{m}')
            it.append(f'{sw} v{m}, v{t}')
            it.append(f'v_add_f32 v{m}, v{m}, v{t}')
        it.append(f'v_rcp_f32 v{m}, v{m}')
        for j in range(12): it.append(f'v_mul_f32 v{b+j}, v{b+j}, v{m}')
        for j in range(6): it.append(f'v_cvt_pk_bf16_f32 v{PB+qt*6+j}, v{b+2*j}, v{b+2*j+1}')
        return it
    X0 = KFt[:8]
    X1 = KFt[8:12] + [sa(0,0), sa(1,0), sa(2,0)] + QX[:1]
    def oa(t, qt): return (X0, X1, X0)[qt][t]
    def pv_mfma(qt):
        it = []; pp = PB + qt*6
        for t in range(8):
            d = vr(oa(t,qt), 4)
            it.append(f'v_mfma_f32_16x16x32_bf16 {d}, {vr(VF32t[t],4)}, {vr(pp,4)}, 0')
        for t in range(8):
            d = vr(oa(t,qt), 4)
            it.append(f'v_mfma_f32_16x16x16_bf16 {d}, {vr(VF16t[t],2)}, {vr(pp+4,2)}, {d}')
        return it
    def o_pack(qt, giver):
        it = []
        for s in range(4):
            r = qb(s, qt)
            for hh in range(2):
                d = oa(2*s+hh, qt)
                it.append(f'v_cvt_pk_bf16_f32 v{r+2*hh}, v{d}, v{d+1}')
                it.append(f'v_cvt_pk_bf16_f32 v{r+2*hh+1}, v{d+2}, v{d+3}')
            if not giver: it.append(f'ds_write_b128 v{OXW}, {vr(r,4)} offset:{(qt*4+s)*1024}')
        return it
    def o_give():
        return [(f'buffer_store_dwordx4 {vr(qb(s,qt),4)}, v{GF}, s[4:7], {["0","s27","s28"][qt]} offen offset:{s*1024}{CO}', ('G', 0)) for qt in range(3) for s in range(4)]
    def zipl(*ls):
        out = []; n = max(len(x) for x in ls)
        for i in range(n):
            for x in ls:
                if i < len(x): out.append(x[i])
        return out
    a('s_waitcnt lgkmcnt(0)')
    a('s_barrier')
    st_()
    m17 = mfmas(17)
    m17 = [m17[t*3+mt] for mt in range(3) for t in range(8)]
    kr = k_reads()
    interleave(a, m17[:12], zipl(kr[:12], v_addrs()), ratio=2)
    interleave(a, m17[12:24], zipl(kr[12:], cvt_q(0)[:12]), ratio=2)
    em(a, cvt_q(0)[12:])
    sm0, sm1, sm2 = softmax(0), softmax(1), softmax(2)
    a('s_waitcnt lgkmcnt(6)')
    s0 = s_mfma(0)
    interleave(a, s0[:9], cvt_q(1), ratio=2)
    a('s_waitcnt lgkmcnt(0)')
    interleave(a, s0[9:] + s_mfma(1)[:5], cvt_q(2), ratio=2)
    NB = int(o.get('smb', 40))
    seq = sm0[:40] + zipl(sm0[40:], sm1[:33]) + zipl(sm1[33:], sm2[:40])
    interleave(a, s_mfma(1)[5:] + s_mfma(2), seq[:NB], ratio=2)
    st_()
    a('s_barrier')
    st_()
    rest = seq[NB:]
    n1 = max(106 - NB, min(48, len(rest) - 32))
    interleave(a, v_reads(), rest[:min(48, n1)], ratio=2)
    a('s_waitcnt lgkmcnt(0)')
    a('s_barrier')
    em(a, rest[min(48, n1):n1])
    interleave(a, pv_mfma(0), rest[n1:], ratio=2)
    a('s_cmp_eq_u32 s57, 1')
    a('s_cbranch_scc1 GIVER')
    hist = list(a.hist)
    for giver in (0, 1):
        if giver:
            a.label('GIVER'); a.hist = list(hist)
        z = zipl(sm2[40:], o_pack(0, giver))
        interleave(a, pv_mfma(1), z, ratio=2)
        interleave(a, pv_mfma(2), o_pack(1, giver), ratio=1.25)
        em(a, o_pack(2, giver))
        if not giver:
            a('s_waitcnt lgkmcnt(0)')
            a('s_branch ATT_END')
    a.label('ATT_END')
    st_()
    a('s_barrier')
    if fine: st_.on = True
    st_()
    AFR = 8; AD = 5; LA = 4
    ACCG = [28, 52, 76, 100, 124, 136, 148, 40, 64]
    BF = 160
    def bf(k, mt): return BF + (k*3+mt)*4
    def acc(r, mt): return ACCG[r] + mt*4
    NK = 144
    def a_reads(n):
        k = n % 8
        d = AFR + (n % AD)*4
        return [f'ds_read_b64_tr_b16 {vr(d+2*half,2)}, v{AR} offset:{k*4096+half*2048}' for half in range(2)]
    def b_reads(k):
        return [f'ds_read_b128 {vr(bf(k,mt),4)}, v{OX0} offset:{(k>>2)*12288+(mt*4+(k&3))*1024}' for mt in range(3)]
    def o_mfmas(n):
        u, k = n // 8, n % 8
        it = []
        for mt in range(3):
            d = vr(acc(u % 9, mt), 4)
            c = '0' if (k == 0 and u < 9) else d
            it.append(f'v_mfma_f32_16x16x32_bf16 {d}, {vr(AFR+(n%AD)*4,4)}, {vr(bf(k,mt),4)}, {c}')
        return it
    def p_pack(r):
        it = []
        for mt in range(3):
            d = acc(r, mt)
            if r < 8: q = acc(r & ~1, mt) + 2*(r & 1)
            else: q = acc(8, 0) + 2*mt
            it.append(f'v_cvt_pk_bf16_f32 v{q}, v{d}, v{d+1}')
            it.append(f'v_cvt_pk_bf16_f32 v{q+1}, v{d+2}, v{d+3}')
        return it
    def p_store(pp):
        it = []
        if pp < 4:
            it.append(f's_add_u32 s26, s24, {pp*12*1024}')
            for mt in range(3):
                it.append((f'buffer_store_dwordx4 {vr(acc(2*pp,mt),4)}, v{PO}, s[4:7], s26 offen offset:{mt*1024}{CO}', ('P', pp)))
        else:
            it.append((f'buffer_store_dwordx4 {vr(acc(8,0),4)}, v{PO}, s[4:7], s25 offen{CO}', ('P', pp)))
            it.append((f'buffer_store_dwordx4 {vr(acc(8,0)+4,4)}, v{PO}, s[4:7], s25 offen offset:1024{CO}', ('P', pp)))
        return it
    def flag(ph, upto):
        def f():
            a.wait_vm(lambda t: t[0] == 'P' and t[1] <= upto)
            if o.get('sflag') and ph == 2:
                a('s_mov_b32 s100, 1')
                a(f's_add_u32 s101, s61, {ph*512}')
                a('s_atomic_add s100, s[40:41], s101')
            else:
                a(f'buffer_store_dword v{ONE}, v{FL}, s[4:7], 0 offen offset:{ph*512}{CO}', ('F', ph))
        return f
    def gflag():
        a('s_waitcnt vmcnt(0)'); a.vm = []
        a(f'buffer_store_dword v{ONE}, v{GF}, s[4:7], 0 offen{CO}', ('F', 9))
    lq = []
    def ds(x, tag):
        a(x); lq.append(tag)
    def need(tags):
        idx = max((i for i, t in enumerate(lq) if t in tags), default=-1)
        if idx < 0: return
        n = len(lq) - 1 - idx
        a(f's_waitcnt lgkmcnt({min(n, 15)})')
        del lq[:idx+1]
    for n in range(LA):
        for x in a_reads(n): ds(x, ('A', n))
        for x in b_reads(n): ds(x, ('B', n))
    LASTB = int(o.get('lastb', 15))
    ER = int(o.get('er', 1))
    GU = int(o.get('gu', 2))
    SA_, SB_ = int(o.get('sa', 13)), int(o.get('sb', 15))
    FA_, FB_ = int(o.get('fa', 15)), int(o.get('fb', 17))
    for u in range(18):
        a.comment(f'--- half-round {u}')
        oth = {g: [] for g in range(24)}
        g = 3
        if u >= 10:
            for x in p_pack(u-10):
                oth[g].append(x); g += 1
        if u == FA_ and FA_ > LASTB: oth[1].append(flag(0, 1))
        if u == FB_: oth[1].append(flag(1, 2))
        if u == 0:
            for j, x in enumerate(o_give()): oth[j].append(x)
        st = []
        if u == SA_: st += p_store(0) + p_store(1)
        if u == SB_: st += p_store(2)
        for x in st:
            oth[g].append(x)
            if not isinstance(x, str): g += 1
        for k in range(8):
            n = u*8 + k
            need({('A', n), ('B', n)} | ({('A', n+3)} if (k == 4 and u <= LASTB and ER) else set()))
            if k == 4 and u < 17:
                if u <= LASTB:
                    if u == GU: a('s_waitcnt vmcnt(0)'); a.vm = []
                    if u == FA_: a.wait_vm(lambda t: t[0] == 'P' and t[1] <= 1)
                    a('s_barrier')
                    if (u in (3, 9) and not fine) or (fine and u >= 2): st_()
                dlt = HS[(u+1) % 4] - HS[u % 4]
                a(f'v_add_u32 v{AR}, {dlt & 0xffffffff:#x}, v{AR}')
            rd = []
            if n + LA < NK: rd += [(x, ('A', n+LA)) for x in a_reads(n+LA)]
            if n + LA < 8: rd += [(x, ('B', n+LA)) for x in b_reads(n+LA)]
            if 65 <= n <= 72: rd += [(x, ('B', n+7)) for x in b_reads(n-65)]
            for i, m in enumerate(o_mfmas(n)):
                a(m)
                take = rd[:2] if len(rd) > 3 - i else rd[:1]
                rd = rd[len(take):]
                for x, tg in take: ds(x, tg)
                em(a, oth[k*3+i])
            assert not rd
    if SA_ > 17: em(a, p_store(0) + p_store(1))
    if SB_ > 17: em(a, p_store(2))
    em(a, p_store(3))
    em(a, p_pack(8))
    em(a, p_store(4))
    st_()
    if FA_ > 17: flag(0, 1)()
    if FB_ > 17: flag(1, 2)()
    flag(2, 4)()
    st_()
    a('s_lshl_b32 s61, s46, 3')
    a('s_lshr_b32 s47, s43, 1')
    a('s_add_u32 s61, s61, s47')
    a('s_cmp_ge_u32 s61, 20')
    a('s_cbranch_scc1 C_DONE')
    lane_ids(a)
    if ts: reduce_block(a, 'CR', 2, 36, 61, 4, 8, o, st_ if (ts and not fine) else None)
    else:
        a('s_add_u32 s47, s61, 36'); a(f's_mov_b32 s99, {FOFF + 1024}'); a('s_mov_b32 s98, 0')
        a('s_branch REDUCE')
    a.label('C_DONE')
    st_.dump(40, 41, 0, 3)
    a('s_endpgm')

    h = Asm()
    sh = Stamps(h, ts, tsmode); sh.n = 1
    h.label('HELPER')
    WO = 8; XO = 12; KO = 16; VO = 20; OW = 24; AT = 30; PV_ = 32; CV = 33; PA = 34; PD = 35; ZA = 36
    h('s_lshl_b32 s47, s3, 1')
    h('s_add_u32 s47, s47, s44')
    modn(h, 47, 48, 9)
    h('s_mov_b32 s60, s47')
    h('s_and_b32 s48, s46, 1')
    h('s_lshl_b32 s48, s48, 17')
    h('s_lshl_b32 s49, s43, 1')
    h('s_lshr_b32 s50, s46, 1')
    h('s_add_u32 s49, s49, s50')
    h('s_lshl_b32 s49, s49, 8')
    h('s_add_u32 s48, s48, s49')
    h(f'v_lshlrev_b32 v{T0}, 13, v{G}')
    h(f'v_add_u32 v{T0}, s48, v{T0}')
    h(f'v_lshlrev_b32 v{T1}, 1, v{G}')
    h(f'v_xor_b32 v{T1}, v{T1}, v{I}')
    h(f'v_lshlrev_b32 v{T1}, 4, v{T1}')
    h(f'v_xor_b32 v{T2}, 128, v{T1}')
    h(f'v_add_u32 v{T1}, v{T0}, v{T1}')
    h(f'v_add_u32 v{T2}, v{T0}, v{T2}')
    for q in range(4):
        h(f'v_add_u32 v{WO+q}, {4*q*8192 - q*1024}, v{T1 if (q >> 1) == 0 else T2}')
    h('s_mul_i32 s48, s44, 96')
    h('s_mul_i32 s49, s46, 24')
    h('s_add_u32 s48, s48, s49')
    h('s_mul_i32 s48, s48, 1152')
    h(f'v_lshrrev_b32 v{T0}, 3, v{L}')
    h(f'v_mul_u32_u24 v{T0}, 1152, v{T0}')
    h(f'v_add_u32 v7, s48, v{T0}')
    h(f'v_and_b32 v{T1}, 7, v{L}')
    h(f'v_xor_b32 v{T1}, v{T1}, v{G}')
    h('s_and_b32 s49, s46, 1')
    h('s_lshl_b32 s49, s49, 2')
    h(f'v_xor_b32 v{T1}, s49, v{T1}')
    h(f'v_lshlrev_b32 v{T1}, 4, v{T1}')
    h(f'v_xor_b32 v{T2}, 64, v{T1}')
    h(f'v_add_u32 v{T1}, v7, v{T1}')
    h(f'v_add_u32 v{T2}, v7, v{T2}')
    for pp in range(3):
        h(f'v_add_u32 v{XO+pp}, {pp*9216 - pp*1024}, v{T1 if pp % 2 == 0 else T2}')
    h('s_lshl_b32 s56, s46, 12')
    h('s_lshl_b32 s57, s46, 13')
    h('s_mul_i32 s58, s46, 3072')
    h('s_waitcnt lgkmcnt(0)')
    h('s_cmp_eq_u32 s42, 0')
    h('s_cselect_b64 s[24:25], s[24:25], s[32:33]')
    h('s_cselect_b64 s[26:27], s[26:27], s[34:35]')
    h('s_cselect_b64 s[28:29], s[28:29], s[36:37]')
    h('s_cselect_b64 s[30:31], s[30:31], s[38:39]')
    h('s_cselect_b64 s[32:33], s[20:21], s[22:23]')
    h(f's_mov_b32 s59, {KV_B}')
    h(f's_cselect_b32 s59, {KV_A}, s59')
    srd(h, 4, 24, 25, X_BYTES)
    srd(h, 8, 30, 31, W_BYTES)
    sh()
    def x_chunk(c):
        it = []
        it.append('s_lshl_b32 s48, s60, 7')
        it.append(f's_add_u32 m0, s58, {XREG + (c % 3)*12288}')
        for pp in range(3):
            it.append((f'buffer_load_dwordx4 v{XO+pp}, s[4:7], s48 offen offset:{pp*1024}{M("x")} lds', ('X', c)))
        it.append('s_add_u32 s60, s60, 1')
        it.append('s_cmp_eq_u32 s60, 9')
        it.append('s_cselect_b32 s60, 0, s60')
        return it
    def dma_stage(n):
        it = []
        it.append('s_lshl_b32 s49, s47, 19')
        if n & 1: it.append(f's_add_u32 s49, s49, {32*8192}')
        it.append(f's_add_u32 m0, s56, {QS + (n % 4)*16384}')
        for q in range(4):
            it.append((f'buffer_load_dwordx4 v{WO+q}, s[8:11], s49 offen offset:{q*1024}{M("wq")} lds', ('S', n)))
        if n & 1:
            it.append('s_add_u32 s47, s47, 1')
            it.append('s_cmp_eq_u32 s47, 9')
            it.append('s_cselect_b32 s47, 0, s47')
        return it
    em(h, x_chunk(0)); em(h, dma_stage(0)); em(h, dma_stage(1))
    srd(h, 12, 26, 27, 's59')
    srd(h, 16, 28, 29, 's59')
    srd(h, 20, 32, 33, W_BYTES)
    srd(h, 36, 54, 55, 256)
    srd(h, 28, 40, 41, WS_BYTES)
    h('s_lshl_b32 s51, s44, 1')
    h('s_lshr_b32 s50, s46, 1')
    h('s_add_u32 s51, s51, s50')
    h('s_lshl_b32 s50, s43, 1')
    h('s_and_b32 s59, s46, 1')
    h('s_add_u32 s50, s50, s59')
    h('s_cmp_eq_u32 s42, 0')
    h('s_cselect_b32 s59, 4, 5')
    h('s_cselect_b32 s50, s43, s50')
    h('s_lshl_b32 s51, s51, s59')
    h('s_add_u32 s51, s51, s50')
    h('s_mul_i32 s51, s51, 12288')
    h(f'v_lshlrev_b32 v7, 8, v{G}')
    h(f'v_add_u32 v7, s51, v7')
    h(f'v_xor_b32 v{T1}, v{I}, v{G}')
    h(f'v_lshlrev_b32 v{T1}, 4, v{T1}')
    for q in range(4):
        h(f'v_xor_b32 v{T2}, {q*64}, v{T1}')
        h(f'v_add_u32 v{KO+q}, v7, v{T2}')
    h(f'v_lshlrev_b32 v{T1}, 1, v{G}')
    h(f'v_xor_b32 v{T1}, v{I}, v{T1}')
    h(f'v_lshlrev_b32 v{T1}, 4, v{T1}')
    h(f'v_add_u32 v{VO}, v7, v{T1}')
    h(f'v_xor_b32 v{T1}, 128, v{T1}')
    h(f'v_add_u32 v{VO+1}, v7, v{T1}')
    h(f'v_cmp_eq_u32 vcc, 256, v0')
    h('s_lshr_b32 s50, s63, 4')
    h('s_lshl_b32 s50, s50, 4')
    h(f'v_mov_b32 v{ZA}, s50')
    h(f'v_mov_b32 v{T2}, {OOB:#x}')
    h(f'v_cndmask_b32 v{AT}, v{T2}, v{ZA}, vcc')
    h(f'v_mov_b32 v{AT+1}, 1')
    h('s_xor_b32 s50, s63, 1')
    h('s_lshl_b32 s51, s50, 7')
    h(f's_add_u32 s51, s51, {GOFF}')
    h(f'v_and_b32 v{T1}, 1, v{L}')
    h(f'v_lshlrev_b32 v{T1}, 2, v{T1}')
    h(f'v_add_u32 v{PA}, s51, v{T1}')
    h('s_mul_i32 s50, s50, 24576')
    h('s_mul_i32 s51, s46, 6144')
    h('s_add_u32 s50, s50, s51')
    h(f's_add_u32 s50, s50, {OSOFF}')
    h(f'v_lshlrev_b32 v{T1}, 4, v{L}')
    h(f'v_add_u32 v{PD}, s50, v{T1}')
    h('s_movk_i32 s34, 4096')
    h('s_movk_i32 s35, 8192')
    def kv_tile(which, tile):
        it = []
        base = KREG + tile*16384 if which == 0 else VT[tile]
        sr = 12 if which == 0 else 16
        so = ['0', 's34', 's35'][tile]
        it.append(f's_add_u32 m0, s56, {base}')
        for q in range(4):
            vo = KO + q if which == 0 else VO + (q & 1)
            it.append((f'buffer_load_dwordx4 v{vo}, s[{sr}:{sr+3}], {so} offen offset:{q*1024}{M("kv")} lds', ('K' if which == 0 else 'V', tile)))
        return it
    h('s_lshl_b32 s51, s46, 6')
    h('s_mul_i32 s51, s51, 1152')
    h(f'v_add_u32 v{T0}, s51, v{T0}')
    h(f'v_and_b32 v{T1}, 7, v{L}')
    h(f'v_lshlrev_b32 v{T2}, 1, v{G}')
    h(f'v_xor_b32 v{T1}, v{T1}, v{T2}')
    h(f'v_lshl_add_u32 v{T0}, v{T1}, 4, v{T0}')
    for q in range(4):
        h(f'v_add_u32 v{OW+q}, {q*8192}, v{T0}')
    h('s_mov_b32 s61, s44')
    h(f's_mul_i32 s32, s43, {256*1152}')
    h('s_xor_b32 s33, s43, 1')
    h(f's_mul_i32 s33, s33, {256*1152}')
    def wo_half(u):
        slot = HS[u % 4]
        it = []
        it.append('s_lshl_b32 s48, s61, 7')
        it.append(f's_add_u32 s48, s48, s{32 if u < 9 else 33}')
        it.append(f's_add_u32 s49, s48, {32*1152}')
        it.append(f's_add_u32 m0, s57, {slot}')
        for q in range(4):
            it.append((f'buffer_load_dwordx4 v{OW+q}, s[20:23], s48 offen offset:{q*1024}{M("wo")} lds', ('W', u)))
        it.append(f's_add_u32 m0, s57, {slot+4096}')
        for q in range(4):
            it.append((f'buffer_load_dwordx4 v{OW+q}, s[20:23], s49 offen offset:{q*1024}{M("wo")} lds', ('W', u)))
        it.append('s_add_u32 s61, s61, 1')
        it.append('s_cmp_eq_u32 s61, 9')
        it.append('s_cselect_b32 s61, 0, s61')
        return it
    spf = str(o.get('spf', ''))
    pf = []
    if 'w' in spf:
        h('s_lshl_b32 s50, s46, 6')
        h('s_mul_i32 s50, s50, 1152')
        h('s_add_u32 s50, s50, s32')
        h('s_lshl_b32 s51, s44, 7')
        h('s_add_u32 s50, s50, s51')
        h('s_add_u32 s24, s20, s50'); h('s_addc_u32 s25, s21, 0')
        h('s_lshl_b32 s50, s44, 2')
        h('s_add_u32 s50, s50, s46')
        h(f's_mul_i32 s50, s50, {8*1152}')
        h('s_add_u32 s50, s50, s32')
        h('s_add_u32 s26, s20, s50'); h('s_addc_u32 s27, s21, 0')
        pf += [f's_load_dword s{96 + (i % 4)}, s[26:27], {(i >> 1)*1152 + 1024 + (i & 1)*64}' for i in range(16)]
        pf += [f's_load_dword s{96 + (i % 4)}, s[24:25], {(i >> 1)*1152 + (i & 1)*64}' for i in range(128)]
    npf = int(o.get('npf', 5)); pf0 = int(o.get('pf0', 0))
    em(h, x_chunk(1)); em(h, dma_stage(2))
    sh()
    h.wait_vm(lambda t: t == ('S', 0))
    h('s_barrier')
    em(h, dma_stage(3)); em(h, x_chunk(2))
    kats = [int(x) for x in str(o.get('kat', '8')).split(',')]
    vm0 = list(h.vm)
    if len(kats) > 1:
        h(f's_and_b32 s59, s44, {len(kats)-1}')
        for vi in range(1, len(kats)):
            h(f's_cmp_eq_u32 s59, {vi}')
            h(f's_cbranch_scc1 HQ{vi}')
    n0 = sh.n
    for vi, kat in enumerate(kats):
        h.vm = list(vm0); sh.n = n0
        if vi: h.label(f'HQ{vi}')
        for n in range(17):
            h.wait_vm(lambda t: t == ('S', n+1) or t == ('X', (n+1) >> 1))
            h('s_barrier')
            if n in (3, 8, 13): sh()
            if n == 3:
                h('s_cmp_lg_u32 s46, 0')
                h(f's_cbranch_scc1 H_NOCNT{vi}')
                h('s_lshr_b32 s50, s63, 4')
                h('s_lshl_b32 s50, s50, 4')
                h('s_mov_b32 s100, 1')
                h('s_atomic_add s100, s[54:55], s50')
                h.label(f'H_NOCNT{vi}')
            if n + 4 <= 17: em(h, dma_stage(n+4))
            if (n & 1) and (n >> 1) + 3 <= 8: em(h, x_chunk((n >> 1) + 3))
            if o.get('kall'):
                if n == kat:
                    for tile in range(3): em(h, kv_tile(0, tile))
            elif kat <= n < kat + 3: em(h, kv_tile(0, n - kat))
            if n >= 14: em(h, kv_tile(1, n - 14))
            if pf0 <= n <= int(o.get('pf1', 16)): em(h, pf[(n-pf0)*npf:(n-pf0+1)*npf])
        h.wait_vm(lambda t: t[0] == 'K')
        assert all(t[0] == 'V' for t in h.vm), h.vm
        h.vm = [('V', 0)]*12
        if vi + 1 < len(kats): h('s_branch HQ_END')
    h.label('HQ_END')
    sh()
    h('s_barrier')
    cload = f'buffer_load_dword v{CV}, v{ZA}, s[36:39], 0 offen{CO}'
    h(cload, ('C', 0))
    em(h, wo_half(0))
    h.wait_vm(lambda t: t[0] == 'V')
    sh()
    h('s_barrier')
    h('s_barrier')
    em(h, wo_half(1)); em(h, wo_half(2))
    h.wait_vm(lambda t: t == ('W', 0))
    if int(o.get('w3early', 0)): em(h, wo_half(3))
    sh()
    h('s_barrier')
    check_or_poll(h, 'HC', cload, CV, 16)
    if not int(o.get('w3early', 0)): em(h, wo_half(3))
    PI, PC = int(o.get('pi', 4)), int(o.get('pc', 5))
    h('s_lshl_b32 s24, s63, 7')
    h(f's_add_u32 s24, s24, {GOFF}')
    h('s_xor_b32 s25, s24, 128')
    h('s_lshl_b32 s26, s42, 4')
    h('s_add_u32 s26, s26, s62')
    h(f's_mul_i32 s26, s26, {NP*4}')
    h('s_add_u32 s26, s26, s46')
    h('s_lshl_b32 s26, s26, 7')
    h('s_lshr_b32 s27, s43, 1')
    h('s_lshl_b32 s27, s27, 2')
    h('s_add_u32 s26, s26, s27')
    h(f's_add_u32 s26, s26, {FOFF}')
    h('s_mov_b32 s100, 1')
    assert GOFF % 256 == 0
    nxt = 4
    for u in range(LASTB+1):
        if u < LASTB:
            assert nxt > u+1
            h.wait_vm(lambda t: t == ('W', u+1) or (u == 7 and t[0] == 'O'))
        else:
            assert nxt == 18
            h.wait_vm(lambda t: t[0] == 'W')
        h('s_barrier')
        if u == GU:
            h('s_cmp_lg_u32 s46, 0')
            h('s_cbranch_scc1 H_NOG')
            h('s_atomic_add s100, s[40:41], s24')
            h.label('H_NOG')
        if u == FA_: h('s_atomic_add s100, s[40:41], s26')
        if u == PC:
            h('s_mov_b32 s59, 0')
            h.label('HP_POLL')
            h('s_waitcnt lgkmcnt(0)')
            h('s_cmp_ge_u32 s101, 1')
            h('s_cbranch_scc1 HP_GO')
            h('s_load_dword s101, s[40:41], s25 glc')
            h('s_add_u32 s59, s59, 1')
            h('s_cmp_lt_u32 s59, 0x40000')
            h('s_cbranch_scc1 HP_POLL')
            h.label('HP_GO')
            h('s_mul_i32 s48, s46, 6144')
            h('s_mov_b32 m0, s48')
            for q in range(4): h(f'buffer_load_dwordx4 v{PD}, s[28:31], 0 offen offset:{q*1024}{CO} lds', ('O', q))
            h('s_add_u32 m0, s48, 4096')
            for q in range(2): h(f'buffer_load_dwordx4 v{PD}, s[28:31], s34 offen offset:{q*1024}{CO} lds', ('O', q))
        if u == PI: h('s_load_dword s101, s[40:41], s25 glc')
        if nxt <= 17 and nxt - 4 <= u - 1 + ER:
            em(h, wo_half(nxt)); nxt += 1
    assert nxt == 18, nxt
    sh()
    srd(h, 4, 40, 41, WS_BYTES)
    srd(h, 8, 52, 53, OUT_BYTES)
    h('s_lshl_b32 s61, s46, 3')
    h('s_lshr_b32 s47, s43, 1')
    h('s_add_u32 s61, s61, s47')
    h('s_cmp_ge_u32 s61, 24')
    h('s_cbranch_scc1 HA_DONE')
    if ts: reduce_block(h, 'HA', 0, 0, 61, 4, 8, o, sh)
    else:
        h('s_mov_b32 s47, s61'); h(f's_mov_b32 s99, {FOFF}'); h('s_mov_b32 s98, 1')
        h.label('REDUCE')
        reduce_block(h, 'RD', None, 0, 61, 4, 8, o)
        h('s_cmp_eq_u32 s98, 0')
        h('s_cbranch_scc1 M_END')
    h.label('HA_DONE')
    sh()
    h('s_sub_u32 s61, 31, s61')
    h('s_cmp_ge_u32 s61, 12')
    h('s_cbranch_scc1 HB_DONE')
    if ts: reduce_block(h, 'HB', 1, 24, 61, 4, 8, o, sh)
    else:
        h('s_add_u32 s47, s61, 24'); h(f's_mov_b32 s99, {FOFF + 512}'); h('s_mov_b32 s98, 0')
        h('s_branch REDUCE')
    h.label('HB_DONE')
    sh.dump(40, 41, 0, 3)
    h.label('M_END')
    h('s_endpgm')
    a.label('CODE_END')
    print('main: compute inst', a.ninst, 'nops', a.nops_inserted, 'helper', h.ninst, 'stamps', st_.n, sh.n)
    return p.text() + h.text() + a.text()

if __name__ == '__main__':
    out = sys.argv[1]
    o = dict(x.split('=') if '=' in x else (x, 1) for x in sys.argv[2:])
    SLEEP = int(o.get('sleep', 1))
    SP0 = 32
    txt = build_file([dict(name=NAME + '_kernel', grid=256, block=512, lds=163840, body=gen_main(o), vgpr=256, sgpr=102, accum=256)])
    open(out, 'w').write(txt)
```

```python
import sys, struct, math
sys.path.insert(0, 'gen')
from asmgen import Asm, interleave
from common import *
from v2 import Stamps, srd, em, f32bits, vr

X_BYTES = 16*48*576*2
W_BYTES = 576*4096*2
KV_A = 16*16*48*128*2
KV_B = 16*32*48*128*2
OUT_BYTES = 16*48*1152*2
NBLK = 57
P_BYTES = 32*NBLK*8*1024
OSOFF = P_BYTES
FOFF = OSOFF + 256*24576
NP = 3
GOFF = FOFF + 32*NP*4*128
WS_BYTES = GOFF + 256*128
OOB = 0x7ffffff0

KREG = 0; XREG = 49152; QS = 98304
VT = [131072, 147456, 98304]
HS = [65536, 32768, 98304, 131072]
L, I, G, T0, T1, T2 = 1, 2, 3, 4, 5, 6
CO = ' sc0 sc1'
SLEEP = 1
SP0 = 64

def lane_ids(a):
    a(f'v_and_b32 v{L}, 63, v0')
    a(f'v_and_b32 v{I}, 15, v0')
    a(f'v_lshrrev_b32 v{G}, 4, v{L}')

def modn(a, d, t, n):
    a(f's_cmp_ge_u32 s{d}, {n}')
    a(f's_cselect_b32 s{t}, {n}, 0')
    a(f's_sub_u32 s{d}, s{d}, s{t}')

def poll(a, lbl, load, vreg, expect, keep_vm=False):
    vm = list(a.vm)
    a('s_mov_b32 s59, 0')
    a.label(f'{lbl}_POLL')
    a(load)
    a('s_waitcnt vmcnt(0)')
    a(f'v_cmp_gt_u32 vcc, {expect}, v{vreg}')
    a('s_add_u32 s59, s59, 1')
    a('s_nop 0')
    a(f's_cbranch_vccz {lbl}_GO')
    a(f's_sleep {SLEEP}')
    a('s_cmp_lt_u32 s59, 0x40000')
    a(f's_cbranch_scc1 {lbl}_POLL')
    a.label(f'{lbl}_GO')
    a.vm = vm if keep_vm else []

def check_or_poll(a, lbl, load, vreg, expect):
    a(f'v_cmp_gt_u32 vcc, {expect}, v{vreg}')
    a('s_nop 1')
    a(f's_cbranch_vccz {lbl}_GO')
    poll(a, lbl, load, vreg, expect, keep_vm=True)

def reduce_block(a, lbl, phase, blk0, sidx, srd_ws, srd_out, o, st=None):
    M = lambda k: (' ' + o[k].replace('+', ' ')) if k in o else ''
    if phase is not None: a(f's_add_u32 s47, s{sidx}, {blk0}')
    a('s_mul_i32 s48, s47, 171')
    a('s_lshr_b32 s48, s48, 11')
    a('s_mul_i32 s49, s48, 12')
    a('s_sub_u32 s49, s47, s49')
    a('s_mul_i32 s50, s49, 43')
    a('s_lshr_b32 s50, s50, 7')
    a('s_mul_i32 s51, s50, 3')
    a('s_sub_u32 s51, s49, s51')
    a('s_lshr_b32 s56, s49, 1')
    a('s_and_b32 s57, s49, 1')
    a('s_lshl_b32 s57, s57, 1')
    a('s_cmp_eq_u32 s48, 4')
    a('s_cselect_b32 s50, s56, s50')
    a('s_cselect_b32 s51, s57, s51')
    a('s_cselect_b32 s56, 1, 0')
    a('s_cselect_b32 s57, 0, 1')
    a('s_add_u32 s56, s56, s51')
    a('s_lshl_b32 s48, s48, 1')
    a('s_add_u32 s48, s48, s44')
    a('s_add_u32 s57, s57, s48')
    modn(a, 48, 58, 9); modn(a, 57, 58, 9)
    a('s_mul_i32 s58, s62, 110592')
    a('s_mul_i32 s59, s42, 1152')
    a('s_add_u32 s58, s58, s59')
    a('s_lshl_b32 s59, s50, 5')
    a('s_add_u32 s58, s58, s59')
    a(f'v_mul_u32_u24 v7, 2304, v{I}')
    a(f'v_lshl_add_u32 v7, v{G}, 3, v7')
    a(f'v_add_u32 v7, s58, v7')
    a('s_mul_i32 s51, s51, 36864')
    a('s_lshl_b32 s48, s48, 7')
    a('s_add_u32 s48, s48, s51')
    a('s_cmp_eq_u32 s56, 3')
    a('s_mul_i32 s56, s56, 36864')
    a(f's_cselect_b32 s56, {OOB:#x}, s56')
    a('s_lshl_b32 s57, s57, 7')
    a('s_add_u32 s57, s57, s56')
    a('s_lshl_b32 s51, s42, 4')
    a('s_add_u32 s51, s51, s62')
    a(f's_mul_i32 s56, s51, {NP*4}')
    a('s_add_u32 s56, s56, s50')
    a('s_lshl_b32 s56, s56, 7')
    if phase is not None: a(f's_add_u32 s56, s56, {FOFF + phase*512}')
    else: a('s_add_u32 s56, s56, s99')
    a(f's_mul_i32 s51, s51, {NBLK*8}')
    a('s_add_u32 s51, s51, s47')
    a('s_lshl_b32 s51, s51, 10')
    a(f'v_lshlrev_b32 v{T1}, 4, v{L}')
    a(f'v_add_u32 v{T1}, s51, v{T1}')
    D = 16; ACC = 8
    r0 = SP0
    a(f's_load_dwordx8 s[{r0}:{r0+7}], s[40:41], s56 glc')
    a('s_mov_b32 s59, 0xffff0000')
    a('s_mov_b32 s58, 0')
    if o.get('dot'):
        a('v_mov_b32 v48, 0x3f80'); a('v_mov_b32 v49, 0x3f800000')
    if o.get('nodry'): a(f's_branch {lbl}_POLL')
    a.label(f'{lbl}_BODY')
    a('s_cmp_eq_u32 s58, 0')
    a(f's_cbranch_scc1 {lbl}_SUM')
    a.vm = []
    for hq in range(8):
        if hq: a(f's_mov_b32 s47, {hq*NBLK*1024}')
        a(f'buffer_load_dwordx4 {vr(D+4*hq,4)}, v{T1}, s[{srd_ws}:{srd_ws+3}], {"s47" if hq else "0"} offen{CO}', ('R', hq))
    a.label(f'{lbl}_SUM')
    for hq in range(8):
        a.wait_vm(lambda t: t == ('R', hq))
        for j in range(4):
            r = D + 4*hq + j
            if hq == 0:
                a(f'v_lshlrev_b32 v{ACC+2*j}, 16, v{r}')
                a(f'v_and_b32 v{ACC+2*j+1}, s59, v{r}')
            elif o.get('dot'):
                a(f'v_dot2c_f32_bf16 v{ACC+2*j}, v{r}, v48')
                a(f'v_dot2c_f32_bf16 v{ACC+2*j+1}, v{r}, v49')
            else:
                a(f'v_lshlrev_b32 v{T2}, 16, v{r}')
                a(f'v_and_b32 v{r}, s59, v{r}')
                a(f'v_add_f32 v{ACC+2*j}, v{ACC+2*j}, v{T2}')
                a(f'v_add_f32 v{ACC+2*j+1}, v{ACC+2*j+1}, v{r}')
    if o.get('dot'): a('s_nop 2')
    for j in range(4):
        a(f'v_cvt_pk_bf16_f32 v{D+j}, v{ACC+2*j}, v{ACC+2*j+1}')
    a('s_cmp_lg_u32 s58, 0')
    a(f's_cbranch_scc1 {lbl}_OUT')
    a.label(f'{lbl}_POLL')
    a('s_waitcnt lgkmcnt(0)')
    a('s_add_u32 s58, s58, 1')
    a(f's_and_b64 s[16:17], s[{r0}:{r0+1}], s[{r0+2}:{r0+3}]')
    a(f's_and_b64 s[18:19], s[{r0+4}:{r0+5}], s[{r0+6}:{r0+7}]')
    a('s_and_b64 s[16:17], s[16:17], s[18:19]')
    a('s_and_b32 s16, s16, s17')
    a(f's_cbranch_scc1 {lbl}_GO')
    a(f's_load_dwordx8 s[{r0}:{r0+7}], s[40:41], s56 glc')
    a('s_cmp_lt_u32 s58, 0x40000')
    a(f's_cbranch_scc1 {lbl}_POLL')
    a('s_waitcnt lgkmcnt(0)')
    a.label(f'{lbl}_GO')
    if st: st()
    a(f's_branch {lbl}_BODY')
    a.label(f'{lbl}_OUT')
    a(f'buffer_store_dwordx2 {vr(D,2)}, v7, s[{srd_out}:{srd_out+3}], s48 offen{M("out")}')
    a(f'buffer_store_dwordx2 {vr(D+2,2)}, v7, s[{srd_out}:{srd_out+3}], s57 offen{M("out")}')

def gen_main(o):
    ts = o.get('ts'); tsmode = o.get('tsmode', 's_memrealtime')
    M = lambda k: (' ' + o[k].replace('+', ' ')) if k in o else ''
    p = Asm()
    p.label('KSTART')
    p('s_cmp_ge_u32 s2, 256')
    p('s_cbranch_scc1 M_END')
    if ts: p(f'{tsmode} s[64:65]')
    p('s_load_dwordx8 s[24:31], s[0:1], 0')
    p('s_load_dwordx8 s[32:39], s[0:1], 40')
    p('s_load_dwordx2 s[40:41], s[0:1], 96')
    p('s_load_dwordx2 s[20:21], s[0:1], 32')
    p('s_load_dwordx2 s[22:23], s[0:1], 72')
    p('s_load_dwordx4 s[52:55], s[0:1], 80')
    if o.get('cpf') == 'e':
        p(f'v_lshrrev_b32 v{T0}, 6, v0')
        p('s_getpc_b64 s[16:17]')
        p.label('PCREF')
        p(f'v_readfirstlane_b32 s45, v{T0}')
        p('s_cmp_lt_u32 s45, 4')
        p('s_cbranch_scc1 NOCPF')
        p('s_lshr_b32 s18, s2, 3')
        p('s_lshl_b32 s18, s18, 2')
        p('s_add_u32 s18, s18, s45')
        p('s_lshl_b32 s18, s18, 8')
        p('s_sub_u32 s18, s18, 1024')
        p('s_min_u32 s18, s18, CODE_END - PCREF - 196')
        p('s_add_u32 s16, s16, s18'); p('s_addc_u32 s17, s17, 0')
        for i in range(4): p(f's_load_dword s{96+i}, s[16:17], {i*64}')
        p.label('NOCPF')
    p('s_and_b32 s47, s2, 7')
    p('s_lshr_b32 s48, s2, 3')
    p('s_lshr_b32 s42, s47, 2')
    p('s_and_b32 s49, s47, 3')
    p('s_lshl_b32 s49, s49, 2')
    p('s_and_b32 s3, s48, 3')
    p('s_add_u32 s43, s49, s3')
    p('s_lshr_b32 s44, s48, 2')
    p('s_and_b32 s49, s43, 1')
    p('s_lshl_b32 s62, s44, 1')
    p('s_add_u32 s62, s62, s49')
    p('s_lshl_b32 s63, s42, 3')
    p('s_add_u32 s63, s63, s44')
    p('s_lshl_b32 s63, s63, 4')
    p('s_add_u32 s63, s63, s43')
    p(f'v_lshrrev_b32 v{T0}, 6, v0')
    lane_ids(p)
    p(f'v_readfirstlane_b32 s45, v{T0}')
    p('s_and_b32 s46, s45, 3')
    p('s_xor_b32 s45, s45, 4')
    p('s_cmp_lt_u32 s45, 4')
    p('s_cbranch_scc1 COMPUTE')

    a = Asm()
    st_ = Stamps(a, ts, tsmode); st_.n = 1
    fine = o.get('fine')
    if fine: st_.on = False
    a.label('COMPUTE')
    WQ = 8; XR = 24; KR = 26; VRD = 27; OXW = 28
    QA = 40; F0 = 136; SP = 224
    a('s_lshr_b32 s48, s46, 1')
    a('s_and_b32 s49, s46, 1')
    a('s_and_b32 s50, s43, 1')
    a('s_xor_b32 s57, s48, s50')
    a('s_lshl_b32 s50, s42, 4')
    a('s_add_u32 s50, s50, s62')
    a(f's_mul_i32 s51, s50, {NP*4}')
    a('s_add_u32 s51, s51, s46')
    a('s_lshl_b32 s51, s51, 7')
    a('s_lshr_b32 s56, s43, 1')
    a('s_lshl_b32 s58, s56, 2')
    a('s_add_u32 s51, s51, s58')
    a(f's_add_u32 s61, s51, {FOFF}')
    a('s_lshl_b32 s51, s63, 7')
    a(f's_add_u32 s51, s51, {GOFF}')
    a('s_cmp_eq_u32 s46, 0')
    a(f's_cselect_b32 s51, s51, {OOB:#x}')
    a(f'v_lshlrev_b32 v{T0}, 9, v{L}')
    a(f'v_add_u32 v{T0}, s61, v{T0}')
    a(f'v_mov_b32 v{T1}, {OOB:#x}')
    a(f'v_cmp_gt_u32 vcc, {NP}, v{L}')
    a(f'v_cndmask_b32 v{T2}, v{T1}, v{T0}, vcc')
    a(f'v_mov_b32 v{T0}, s51')
    a(f'v_cmp_eq_u32 vcc, {NP}, v{L}')
    a(f'v_cndmask_b32 v{T2}, v{T2}, v{T0}, vcc')
    a(f'v_cmp_eq_u32 vcc, 0, v{L}')
    a(f'v_mov_b32 v{T0}, s61')
    a(f'v_cndmask_b32 v31, v{T1}, v{T0}, vcc')
    a(f'v_mov_b32 v7, 0')
    a('s_waitcnt lgkmcnt(0)')
    srd(a, 4, 40, 41, WS_BYTES)
    a(f'buffer_store_dword v7, v{T2}, s[4:7], 0 offen{CO}')
    cpf = o.get('cpf')
    if cpf == 's':
        a('s_getpc_b64 s[16:17]')
        a.label('PCREF')
        a('s_sub_u32 s16, s16, PCREF - KSTART'); a('s_subb_u32 s17, s17, 0')
        if cpf == 's':
            a('s_lshr_b32 s18, s2, 3')
            a('s_lshl_b32 s18, s18, 2')
            a('s_add_u32 s18, s18, s46')
            a('s_mul_i32 s18, s18, 256')
            a('s_min_u32 s18, s18, CODE_END - KSTART - 196')
            a('s_add_u32 s16, s16, s18'); a('s_addc_u32 s17, s17, 0')
            for i in range(4): a(f's_load_dword s{96+i}, s[16:17], {i*64}')
        else:
            pass
    srd(a, 8, 52, 53, OUT_BYTES)
    a('s_lshl_b32 s50, s50, 3')
    a('s_add_u32 s50, s50, s56')
    a(f's_mul_i32 s58, s50, {NBLK*1024}')
    a(f'v_lshlrev_b32 v{T0}, 4, v{L}')
    a(f'v_add_u32 v30, s58, v{T0}')
    a('s_mul_i32 s50, s49, 12288')
    if o.get('loc'):
        a('s_lshl_b32 s51, s42, 4')
        a('s_add_u32 s51, s51, s62')
        a('s_xor_b32 s51, s51, 1')
        a('s_lshl_b32 s51, s51, 3')
        a('s_add_u32 s51, s51, s56')
        a(f's_mul_i32 s51, s51, {NBLK*1024}')
    else:
        a('s_mul_i32 s51, s63, 24576')
        a(f's_add_u32 s51, s51, {OSOFF}')
    a('s_add_u32 s51, s51, s50')
    a('s_cmp_eq_u32 s57, 1')
    a(f's_cselect_b32 s51, s51, {OOB - 4096:#x}')
    a(f'v_add_u32 v{OXW}, s50, v{T0}')
    a(f'v_add_u32 v32, s51, v{T0}')
    a(f'v_mov_b32 v33, v{T0}')
    a('s_lshl_b32 s50, s49, 13')
    a(f's_add_u32 s50, s50, {QS}')
    a(f'v_lshlrev_b32 v{T0}, 11, v{G}')
    a(f'v_add_u32 v{T0}, s50, v{T0}')
    a(f'v_lshrrev_b32 v{T2}, 2, v{I}')
    a(f'v_lshl_add_u32 v{T0}, v{T2}, 8, v{T0}')
    a(f'v_and_b32 v{T1}, 1, v{G}')
    a(f'v_lshl_add_u32 v{T1}, v{T1}, 2, v{T2}')
    a(f'v_and_b32 v{T2}, 3, v{I}')
    a(f'v_lshl_add_u32 v{T0}, v{T2}, 3, v{T0}')
    for t in range(8):
        a(f'v_xor_b32 v{T2}, {t}, v{T1}')
        a(f'v_lshl_add_u32 v{WQ+t}, v{T2}, 5, v{T0}')
    a('s_mul_i32 s50, s48, 6144')
    a(f's_add_u32 s50, s50, {XREG}')
    a(f'v_lshrrev_b32 v{T0}, 1, v{I}')
    a(f'v_xor_b32 v{T0}, v{T0}, v{G}')
    a(f'v_lshlrev_b32 v{T0}, 4, v{T0}')
    a(f'v_lshlrev_b32 v{T1}, 7, v{I}')
    a(f'v_add_u32 v{T1}, s50, v{T1}')
    a(f'v_add_u32 v{XR}, v{T1}, v{T0}')
    a(f'v_xor_b32 v{T0}, 64, v{T0}')
    a(f'v_add_u32 v{XR+1}, v{T1}, v{T0}')
    a('s_lshl_b32 s50, s46, 12')
    a(f'v_lshrrev_b32 v{T0}, 1, v{G}')
    a(f'v_xor_b32 v{T0}, v{T0}, v{I}')
    a(f'v_lshlrev_b32 v{T0}, 4, v{T0}')
    a(f'v_lshl_add_u32 v{T0}, v{I}, 8, v{T0}')
    a(f'v_and_b32 v{T1}, 1, v{G}')
    a(f'v_lshl_add_u32 v{T0}, v{T1}, 3, v{T0}')
    a(f'v_add_u32 v{KR}, s50, v{T0}')
    for j in range(8): a(f'v_xor_b32 v{WQ+8+j}, {j*32}, v{KR}')
    a(f's_add_u32 s50, s50, {QS}')
    a(f'v_lshrrev_b32 v{T0}, 2, v{L}')
    a(f'v_and_b32 v{T1}, 7, v{T0}')
    a(f'v_lshlrev_b32 v{T1}, 5, v{T1}')
    a(f'v_lshl_add_u32 v{T0}, v{T0}, 8, v{T1}')
    a(f'v_and_b32 v{T1}, 3, v{I}')
    a(f'v_lshl_add_u32 v{T0}, v{T1}, 3, v{T0}')
    a(f'v_add_u32 v{VRD}, s50, v{T0}')
    AR, PO, FL, ONE, OX0, GF = 4, 5, 6, 7, 2, 3
    a(f'v_lshrrev_b32 v{T0}, 2, v{L}')
    a(f'v_lshlrev_b32 v{T1}, 7, v{T0}')
    a(f'v_and_b32 v{T2}, 3, v{I}')
    a(f'v_lshl_add_u32 v{T1}, v{T2}, 3, v{T1}')
    a(f'v_lshrrev_b32 v{T0}, 1, v{T0}')
    a(f'v_and_b32 v{T0}, 3, v{T0}')
    a(f'v_xor_b32 v{T0}, s46, v{T0}')
    a(f'v_lshl_add_u32 v{T0}, v{T0}, 5, v{T1}')
    a(f'v_add_u32 v{AR}, {HS[0]}, v{T0}')
    a(f'v_mov_b32 v{PO}, v30'); a(f'v_mov_b32 v{FL}, v31'); a(f'v_mov_b32 v{GF}, v32'); a(f'v_mov_b32 v{OX0}, v33'); a(f'v_mov_b32 v{ONE}, 1')
    if o.get('tlb'):
        a('s_cmp_eq_u32 s42, 0')
        a('s_cselect_b64 s[26:27], s[26:27], s[34:35]')
        a('s_cselect_b64 s[28:29], s[28:29], s[36:37]')
        a('s_cselect_b64 s[32:33], s[20:21], s[22:23]')
        a(f's_mov_b32 s59, {KV_B}')
        a(f's_cselect_b32 s59, {KV_A}, s59')
        a('s_cselect_b32 s58, 4, 5')
        a('s_lshl_b32 s50, s43, 1')
        a('s_add_u32 s50, s50, s49')
        a('s_cmp_eq_u32 s42, 0')
        a('s_cselect_b32 s50, s43, s50')
        a('s_lshl_b32 s51, s44, 1')
        a('s_add_u32 s51, s51, s48')
        a('s_lshl_b32 s51, s51, s58')
        a('s_add_u32 s51, s51, s50')
        a('s_mul_i32 s51, s51, 12288')
        a('v_mov_b32 v34, 0')
        srd(a, 12, 26, 27, 's59')
        a('buffer_load_dword v35, v34, s[12:15], s51 offen')
        srd(a, 16, 28, 29, 's59')
        a('buffer_load_dword v36, v34, s[16:19], s51 offen')
        srd(a, 20, 32, 33, W_BYTES)
        a('s_and_b32 s50, s43, 14')
        a('s_lshl_b32 s50, s50, 1')
        a('s_add_u32 s50, s50, s46')
        a(f's_mul_i32 s50, s50, {128*1152}')
        a('buffer_load_dword v37, v34, s[20:23], s50 offen')
        a('v_readfirstlane_b32 s50, v30')
        a(f's_mul_i32 s51, s46, {14*8192}')
        a('s_add_u32 s50, s50, s51')
        a('buffer_load_dword v38, v34, s[4:7], s50 offen')
        a('s_mul_i32 s50, s63, 24576')
        a(f's_add_u32 s50, s50, {OSOFF}')
        a('buffer_load_dword v39, v34, s[4:7], s50 offen')
        a('s_mul_i32 s50, s62, 110592')
        a('buffer_load_dword v29, v34, s[8:11], s50 offen')
    a(f's_mul_i32 s24, s46, {3*1024}')
    a(f's_lshl_b32 s25, s46, 11')
    a(f's_add_u32 s25, s25, {48*1024}')
    a('s_movk_i32 s27, 4096'); a('s_movk_i32 s28, 8192')
    cscale = math.log2(math.e) / math.sqrt(128.0)
    a(f's_mov_b32 s60, {f32bits(cscale):#x}')

    def FA(s, t): return F0 + s*44 + 12 + t*4
    def FB(s, mt): return F0 + s*44 + mt*4
    def frag_reads(n):
        s = n % 2
        it = []
        for mt in range(3):
            it.append(f'ds_read_b128 {vr(FB(s,mt),4)}, v{XR+(n&1)} offset:{((n>>1)%3)*12288+mt*2048}')
        for t in range(8):
            for half in range(2):
                it.append(f'ds_read_b64_tr_b16 {vr(FA(s,t)+2*half,2)}, v{WQ+t} offset:{(n%4)*16384+half*1024}')
        return it
    def mfmas(n):
        s = n % 2; it = []
        for t in range(8):
            for mt in range(3):
                d = vr(QA+(t*3+mt)*4, 4)
                c = '0' if n == 0 else d
                it.append(f'v_mfma_f32_16x16x32_bf16 {d}, {vr(FA(s,t),4)}, {vr(FB(s,mt),4)}, {c}')
        return it
    set0 = [F0 + 4*i for i in range(11)]
    set1 = [F0 + 44 + 4*i for i in range(11)]
    def tile(t, mt): return QA + (t*3+mt)*4
    KFt = set0 + [SP]
    PB = SP + 8; TM = SP + 26
    odd = [tile(t, mt) for t in (1, 3, 5, 7) for mt in range(3)]
    VF32t = odd[:8]; VF16t = [odd[8 + (t >> 1)] + 2*(t & 1) for t in range(8)]
    SA = F0 + 44
    QX = [F0 + 80]
    def kf(kt, s): return KFt[kt*4+s]
    def v_addrs(): return [f'v_xor_b32 v{WQ+t}, {t*32}, v{VRD}' for t in range(8)]
    def k_reads():
        it = []
        for s in range(4):
            for kt in range(3):
                r = kf(kt, s)
                it.append(f'ds_read_b64 {vr(r,2)}, v{WQ+8+2*s} offset:{kt*16384}')
                it.append(f'ds_read_b64 {vr(r+2,2)}, v{WQ+8+2*s+1} offset:{kt*16384}')
        return it
    def v_reads():
        it = []
        for t in range(8):
            it.append(f'ds_read_b64_tr_b16 {vr(VF32t[t],2)}, v{WQ+t} offset:{VT[0]-QS}')
            it.append(f'ds_read_b64_tr_b16 {vr(VF32t[t]+2,2)}, v{WQ+t} offset:{VT[1]-QS}')
        for t in range(8):
            it.append(f'ds_read_b64_tr_b16 {vr(VF16t[t],2)}, v{WQ+t} offset:{VT[2]-QS}')
        return it
    a(f's_setprio {o.get("cprio", 2)}')
    a('s_barrier')
    st_()
    em(a, frag_reads(0))
    for n in range(17):
        a.comment(f'--- kstep {n}')
        a('s_waitcnt lgkmcnt(0)' if n != 3 else 's_waitcnt vmcnt(0) lgkmcnt(0)')
        if n == 3: a.vm = []
        a('s_barrier')
        if n in (3, 8, 13): st_()
        interleave(a, mfmas(n), frag_reads(n+1), ratio=1.0)
    def qb(s, qt): return tile(2*s, qt)
    def cvt_q(qt):
        it = []
        for s in range(4):
            for hh in range(2):
                d = QA + ((2*s+hh)*3+qt)*4
                it.append(f'v_cvt_pk_bf16_f32 v{qb(s,qt)+2*hh}, v{d}, v{d+1}')
                it.append(f'v_cvt_pk_bf16_f32 v{qb(s,qt)+2*hh+1}, v{d+2}, v{d+3}')
        return it
    def sa(kt, qt): return SA + (qt*3+kt)*4
    def s_mfma(qt):
        it = []
        for s in range(4):
            for kt in range(3):
                d = vr(sa(kt,qt), 4)
                c = '0' if s == 0 else d
                it.append(f'v_mfma_f32_16x16x32_bf16 {d}, {vr(kf(kt,s),4)}, {vr(qb(s,qt),4)}, {c}')
        return it
    def softmax(qt):
        b = sa(0, qt); m = TM + 2*qt; t = m + 1
        it = []
        it.append(f'v_max3_f32 v{m}, v{b}, v{b+1}, v{b+2}')
        it.append(f'v_max3_f32 v{t}, v{b+3}, v{b+4}, v{b+5}')
        it.append(f'v_max3_f32 v{m}, v{m}, v{b+6}, v{b+7}')
        it.append(f'v_max3_f32 v{t}, v{t}, v{b+8}, v{b+9}')
        it.append(f'v_max3_f32 v{m}, v{m}, v{b+10}, v{b+11}')
        it.append(f'v_max_f32 v{m}, v{m}, v{t}')
        for sw in ('v_permlane32_swap_b32', 'v_permlane16_swap_b32'):
            it.append(f'v_mov_b32 v{t}, v{m}')
            it.append(f'{sw} v{m}, v{t}')
            it.append(f'v_max_f32 v{m}, v{m}, v{t}')
        it.append(f'v_mul_f32 v{m}, s60, v{m}')
        for j in range(12): it.append(f'v_fma_f32 v{b+j}, v{b+j}, s60, -v{m}')
        for j in range(12): it.append(f'v_exp_f32 v{b+j}, v{b+j}')
        it.append(f'v_add_f32 v{m}, v{b}, v{b+1}')
        it.append(f'v_add_f32 v{t}, v{b+2}, v{b+3}')
        for j in range(4, 12, 2):
            it.append(f'v_add_f32 v{m}, v{m}, v{b+j}')
            it.append(f'v_add_f32 v{t}, v{t}, v{b+j+1}')
        it.append(f'v_add_f32 v{m}, v{m}, v{t}')
        for sw in ('v_permlane32_swap_b32', 'v_permlane16_swap_b32'):
            it.append(f'v_mov_b32 v{t}, v{m}')
            it.append(f'{sw} v{m}, v{t}')
            it.append(f'v_add_f32 v{m}, v{m}, v{t}')
        it.append(f'v_rcp_f32 v{m}, v{m}')
        for j in range(12): it.append(f'v_mul_f32 v{b+j}, v{b+j}, v{m}')
        for j in range(6): it.append(f'v_cvt_pk_bf16_f32 v{PB+qt*6+j}, v{b+2*j}, v{b+2*j+1}')
        return it
    X0 = KFt[:8]
    X1 = KFt[8:12] + [sa(0,0), sa(1,0), sa(2,0)] + QX[:1]
    def oa(t, qt): return (X0, X1, X0)[qt][t]
    def pv_mfma(qt):
        it = []; pp = PB + qt*6
        for t in range(8):
            d = vr(oa(t,qt), 4)
            it.append(f'v_mfma_f32_16x16x32_bf16 {d}, {vr(VF32t[t],4)}, {vr(pp,4)}, 0')
        for t in range(8):
            d = vr(oa(t,qt), 4)
            it.append(f'v_mfma_f32_16x16x16_bf16 {d}, {vr(VF16t[t],2)}, {vr(pp+4,2)}, {d}')
        return it
    def o_pack(qt, giver):
        it = []
        for s in range(4):
            r = qb(s, qt)
            for hh in range(2):
                d = oa(2*s+hh, qt)
                it.append(f'v_cvt_pk_bf16_f32 v{r+2*hh}, v{d}, v{d+1}')
                it.append(f'v_cvt_pk_bf16_f32 v{r+2*hh+1}, v{d+2}, v{d+3}')
            if not giver: it.append(f'ds_write_b128 v{OXW}, {vr(r,4)} offset:{(qt*4+s)*1024}')
        return it
    def o_give():
        return [(f'buffer_store_dwordx4 {vr(qb(s,qt),4)}, v{GF}, s[4:7], {["0","s27","s28"][qt]} offen offset:{s*1024}{"" if o.get("loc") == "2" else CO}', ('G', 0)) for qt in range(3) for s in range(4)]
    def zipl(*ls):
        out = []; n = max(len(x) for x in ls)
        for i in range(n):
            for x in ls:
                if i < len(x): out.append(x[i])
        return out
    a('s_waitcnt lgkmcnt(0)')
    a('s_barrier')
    st_()
    m17 = mfmas(17)
    m17 = [m17[t*3+mt] for mt in range(3) for t in range(8)]
    kr = k_reads()
    interleave(a, m17[:12], zipl(kr[:12], v_addrs()), ratio=2)
    interleave(a, m17[12:24], zipl(kr[12:], cvt_q(0)[:12]), ratio=2)
    em(a, cvt_q(0)[12:])
    sm0, sm1, sm2 = softmax(0), softmax(1), softmax(2)
    a('s_waitcnt lgkmcnt(6)')
    s0 = s_mfma(0)
    interleave(a, s0[:9], cvt_q(1), ratio=2)
    a('s_waitcnt lgkmcnt(0)')
    interleave(a, s0[9:] + s_mfma(1)[:5], cvt_q(2), ratio=2)
    NB = int(o.get('smb', 40))
    seq = sm0[:40] + zipl(sm0[40:], sm1[:33]) + zipl(sm1[33:], sm2[:40])
    interleave(a, s_mfma(1)[5:] + s_mfma(2), seq[:NB], ratio=2)
    st_()
    a('s_barrier')
    st_()
    rest = seq[NB:]
    n1 = max(106 - NB, min(48, len(rest) - 32))
    interleave(a, v_reads(), rest[:min(48, n1)], ratio=2)
    a('s_waitcnt lgkmcnt(0)')
    a('s_barrier')
    em(a, rest[min(48, n1):n1])
    interleave(a, pv_mfma(0), rest[n1:], ratio=2)
    a('s_cmp_eq_u32 s57, 1')
    a('s_cbranch_scc1 GIVER')
    hist = list(a.hist)
    for giver in (0, 1):
        if giver:
            a.label('GIVER'); a.hist = list(hist)
        z = zipl(sm2[40:], o_pack(0, giver))
        interleave(a, pv_mfma(1), z, ratio=2)
        GS = int(o.get('gs', 0))
        og = o_give()
        interleave(a, pv_mfma(2), (og[:min(GS,4)] if giver else []) + o_pack(1, giver), ratio=1.25)
        if giver: em(a, og[4:GS])
        em(a, o_pack(2, giver))
        if not giver:
            a('s_waitcnt lgkmcnt(0)')
            a('s_branch ATT_END')
    a.label('ATT_END')
    st_()
    a('s_barrier')
    if fine: st_.on = True
    st_()
    AFR = 8; AD = 5; LA = 4
    ACCG = [28, 52, 76, 100, 124, 136, 148, 40, 64]
    BF = 160
    def bf(k, mt): return BF + (k*3+mt)*4
    def acc(r, mt): return ACCG[r] + mt*4
    NK = 144
    def a_reads(n):
        k = n % 8
        d = AFR + (n % AD)*4
        return [f'ds_read_b64_tr_b16 {vr(d+2*half,2)}, v{AR} offset:{k*4096+half*2048}' for half in range(2)]
    def b_reads(k):
        return [f'ds_read_b128 {vr(bf(k,mt),4)}, v{OX0} offset:{(k>>2)*12288+(mt*4+(k&3))*1024}' for mt in range(3)]
    def o_mfmas(n):
        u, k = n // 8, n % 8
        it = []
        for mt in range(3):
            d = vr(acc(u % 9, mt), 4)
            c = '0' if (k == 0 and u < 9) else d
            it.append(f'v_mfma_f32_16x16x32_bf16 {d}, {vr(AFR+(n%AD)*4,4)}, {vr(bf(k,mt),4)}, {c}')
        return it
    def p_pack(r):
        it = []
        for mt in range(3):
            d = acc(r, mt)
            if r < 8: q = acc(r & ~1, mt) + 2*(r & 1)
            else: q = acc(8, 0) + 2*mt
            it.append(f'v_cvt_pk_bf16_f32 v{q}, v{d}, v{d+1}')
            it.append(f'v_cvt_pk_bf16_f32 v{q+1}, v{d+2}, v{d+3}')
        return it
    def p_store(pp):
        it = []
        if pp < 4:
            it.append(f's_add_u32 s26, s24, {pp*12*1024}')
            for mt in range(3):
                it.append((f'buffer_store_dwordx4 {vr(acc(2*pp,mt),4)}, v{PO}, s[4:7], s26 offen offset:{mt*1024}{CO}', ('P', pp)))
        else:
            it.append((f'buffer_store_dwordx4 {vr(acc(8,0),4)}, v{PO}, s[4:7], s25 offen{CO}', ('P', pp)))
            it.append((f'buffer_store_dwordx4 {vr(acc(8,0)+4,4)}, v{PO}, s[4:7], s25 offen offset:1024{CO}', ('P', pp)))
        return it
    def flag(ph, upto):
        def f():
            a.wait_vm(lambda t: t[0] == 'P' and t[1] <= upto)
            if o.get('sflag') and ph == 2:
                a('s_mov_b32 s100, 1')
                a(f's_add_u32 s101, s61, {ph*512}')
                a('s_atomic_add s100, s[40:41], s101')
            else:
                a(f'buffer_store_dword v{ONE}, v{FL}, s[4:7], 0 offen offset:{ph*512}{CO}', ('F', ph))
        return f
    def gflag():
        a('s_waitcnt vmcnt(0)'); a.vm = []
        a(f'buffer_store_dword v{ONE}, v{GF}, s[4:7], 0 offen{CO}', ('F', 9))
    lq = []
    def ds(x, tag):
        a(x); lq.append(tag)
    def need(tags):
        idx = max((i for i, t in enumerate(lq) if t in tags), default=-1)
        if idx < 0: return
        n = len(lq) - 1 - idx
        a(f's_waitcnt lgkmcnt({min(n, 15)})')
        del lq[:idx+1]
    for n in range(LA):
        for x in a_reads(n): ds(x, ('A', n))
        for x in b_reads(n): ds(x, ('B', n))
    LASTB = int(o.get('lastb', 15))
    ER = int(o.get('er', 1))
    GU = int(o.get('gu', 2))
    SA_, SB_ = int(o.get('sa', 13)), int(o.get('sb', 15))
    FA_, FB_ = int(o.get('fa', 15)), int(o.get('fb', 17))
    for u in range(18):
        a.comment(f'--- half-round {u}')
        oth = {g: [] for g in range(24)}
        g = 3
        if u >= 10:
            for x in p_pack(u-10):
                oth[g].append(x); g += 1
        if u == FA_ and FA_ > LASTB: oth[1].append(flag(0, 1))
        if u == FB_: oth[1].append(flag(1, 2))
        if u == 0:
            for j, x in enumerate(o_give()[GS:]): oth[j].append(x)
        st = []
        if u == SA_: st += p_store(0) + p_store(1)
        if u == SB_: st += p_store(2)
        if u == 17 and o.get('p3e'): st += p_store(3)
        for x in st:
            oth[g].append(x)
            if not isinstance(x, str): g += 1
        for k in range(8):
            n = u*8 + k
            need({('A', n), ('B', n)} | ({('A', n+3)} if (k == 4 and u <= LASTB and ER) else set()))
            if k == 4 and u < 17:
                if u <= LASTB:
                    if u == GU: a('s_waitcnt vmcnt(0)'); a.vm = []
                    if u == FA_: a.wait_vm(lambda t: t[0] == 'P' and t[1] <= 1)
                    a('s_barrier')
                    if (u in (3, 9) and not fine) or (fine and u >= 2): st_()
                dlt = HS[(u+1) % 4] - HS[u % 4]
                a(f'v_add_u32 v{AR}, {dlt & 0xffffffff:#x}, v{AR}')
            rd = []
            if n + LA < NK: rd += [(x, ('A', n+LA)) for x in a_reads(n+LA)]
            if n + LA < 8: rd += [(x, ('B', n+LA)) for x in b_reads(n+LA)]
            if 65 <= n <= 72: rd += [(x, ('B', n+7)) for x in b_reads(n-65)]
            for i, m in enumerate(o_mfmas(n)):
                a(m)
                take = rd[:2] if len(rd) > 3 - i else rd[:1]
                rd = rd[len(take):]
                for x, tg in take: ds(x, tg)
                em(a, oth[k*3+i])
            assert not rd
    if SA_ > 17: em(a, p_store(0) + p_store(1))
    if SB_ > 17: em(a, p_store(2))
    if not o.get('p3e'): em(a, p_store(3))
    em(a, p_pack(8))
    em(a, p_store(4))
    st_()
    if FA_ > 17: flag(0, 1)()
    if FB_ > 17: flag(1, 2)()
    flag(2, 4)()
    st_()
    a('s_lshl_b32 s61, s46, 3')
    a('s_lshr_b32 s47, s43, 1')
    a('s_add_u32 s61, s61, s47')
    if ts or not o.get('one'):
        a('s_cmp_ge_u32 s61, 20')
        a('s_cbranch_scc1 C_DONE')
        lane_ids(a)
        if ts: reduce_block(a, 'CR', 2, 36, 61, 4, 8, o, st_ if (ts and not fine) else None)
        else:
            a('s_add_u32 s47, s61, 36'); a(f's_mov_b32 s99, {FOFF + 1024}'); a('s_mov_b32 s98, 0')
            a('s_branch REDUCE')
    else:
        a('s_cmp_ge_u32 s61, 24')
        a('s_cbranch_scc1 C_DONE')
        lane_ids(a)
        a('s_cmp_ge_u32 s61, 20')
        a('s_cselect_b32 s47, 12, 36')
        a(f's_mov_b32 s99, {FOFF + 1024}')
        a(f's_cselect_b32 s99, {FOFF + 512}, s99')
        a('s_add_u32 s47, s47, s61')
        a('s_branch REDUCE')
    a.label('C_DONE')
    st_.dump(40, 41, 0, 3)
    a('s_endpgm')

    h = Asm()
    sh = Stamps(h, ts, tsmode); sh.n = 1
    h.label('HELPER')
    WO = 8; XO = 12; KO = 16; VO = 20; OW = 24; AT = 30; PV_ = 32; CV = 33; PA = 34; PD = 35; ZA = 36
    h('s_lshl_b32 s47, s3, 1')
    h('s_add_u32 s47, s47, s44')
    modn(h, 47, 48, 9)
    h('s_mov_b32 s60, s47')
    h('s_and_b32 s48, s46, 1')
    h('s_lshl_b32 s48, s48, 17')
    h('s_lshl_b32 s49, s43, 1')
    h('s_lshr_b32 s50, s46, 1')
    h('s_add_u32 s49, s49, s50')
    h('s_lshl_b32 s49, s49, 8')
    h('s_add_u32 s48, s48, s49')
    h(f'v_lshlrev_b32 v{T0}, 13, v{G}')
    h(f'v_add_u32 v{T0}, s48, v{T0}')
    h(f'v_lshlrev_b32 v{T1}, 1, v{G}')
    h(f'v_xor_b32 v{T1}, v{T1}, v{I}')
    h(f'v_lshlrev_b32 v{T1}, 4, v{T1}')
    h(f'v_xor_b32 v{T2}, 128, v{T1}')
    h(f'v_add_u32 v{T1}, v{T0}, v{T1}')
    h(f'v_add_u32 v{T2}, v{T0}, v{T2}')
    for q in range(4):
        h(f'v_add_u32 v{WO+q}, {4*q*8192 - q*1024}, v{T1 if (q >> 1) == 0 else T2}')
    h('s_mul_i32 s48, s44, 96')
    h('s_mul_i32 s49, s46, 24')
    h('s_add_u32 s48, s48, s49')
    h('s_mul_i32 s48, s48, 1152')
    h(f'v_lshrrev_b32 v{T0}, 3, v{L}')
    h(f'v_mul_u32_u24 v{T0}, 1152, v{T0}')
    h(f'v_add_u32 v7, s48, v{T0}')
    h(f'v_and_b32 v{T1}, 7, v{L}')
    h(f'v_xor_b32 v{T1}, v{T1}, v{G}')
    h('s_and_b32 s49, s46, 1')
    h('s_lshl_b32 s49, s49, 2')
    h(f'v_xor_b32 v{T1}, s49, v{T1}')
    h(f'v_lshlrev_b32 v{T1}, 4, v{T1}')
    h(f'v_xor_b32 v{T2}, 64, v{T1}')
    h(f'v_add_u32 v{T1}, v7, v{T1}')
    h(f'v_add_u32 v{T2}, v7, v{T2}')
    for pp in range(3):
        h(f'v_add_u32 v{XO+pp}, {pp*9216 - pp*1024}, v{T1 if pp % 2 == 0 else T2}')
    h('s_lshl_b32 s56, s46, 12')
    h('s_lshl_b32 s57, s46, 13')
    h('s_mul_i32 s58, s46, 3072')
    h('s_waitcnt lgkmcnt(0)')
    h('s_cmp_eq_u32 s42, 0')
    h('s_cselect_b64 s[24:25], s[24:25], s[32:33]')
    h('s_cselect_b64 s[26:27], s[26:27], s[34:35]')
    h('s_cselect_b64 s[28:29], s[28:29], s[36:37]')
    h('s_cselect_b64 s[30:31], s[30:31], s[38:39]')
    h('s_cselect_b64 s[32:33], s[20:21], s[22:23]')
    h(f's_mov_b32 s59, {KV_B}')
    h(f's_cselect_b32 s59, {KV_A}, s59')
    srd(h, 4, 24, 25, X_BYTES)
    srd(h, 8, 30, 31, W_BYTES)
    sh()
    def x_chunk(c):
        it = []
        it.append('s_lshl_b32 s48, s60, 7')
        it.append(f's_add_u32 m0, s58, {XREG + (c % 3)*12288}')
        for pp in range(3):
            it.append((f'buffer_load_dwordx4 v{XO+pp}, s[4:7], s48 offen offset:{pp*1024}{M("x")} lds', ('X', c)))
        it.append('s_add_u32 s60, s60, 1')
        it.append('s_cmp_eq_u32 s60, 9')
        it.append('s_cselect_b32 s60, 0, s60')
        return it
    def dma_stage(n):
        it = []
        it.append('s_lshl_b32 s49, s47, 19')
        if n & 1: it.append(f's_add_u32 s49, s49, {32*8192}')
        it.append(f's_add_u32 m0, s56, {QS + (n % 4)*16384}')
        for q in range(4):
            it.append((f'buffer_load_dwordx4 v{WO+q}, s[8:11], s49 offen offset:{q*1024}{M("wq")} lds', ('S', n)))
        if n & 1:
            it.append('s_add_u32 s47, s47, 1')
            it.append('s_cmp_eq_u32 s47, 9')
            it.append('s_cselect_b32 s47, 0, s47')
        return it
    em(h, x_chunk(0)); em(h, dma_stage(0)); em(h, dma_stage(1))
    srd(h, 12, 26, 27, 's59')
    srd(h, 16, 28, 29, 's59')
    srd(h, 20, 32, 33, W_BYTES)
    srd(h, 36, 54, 55, 256)
    srd(h, 28, 40, 41, WS_BYTES)
    h('s_lshl_b32 s51, s44, 1')
    h('s_lshr_b32 s50, s46, 1')
    h('s_add_u32 s51, s51, s50')
    h('s_lshl_b32 s50, s43, 1')
    h('s_and_b32 s59, s46, 1')
    h('s_add_u32 s50, s50, s59')
    h('s_cmp_eq_u32 s42, 0')
    h('s_cselect_b32 s59, 4, 5')
    h('s_cselect_b32 s50, s43, s50')
    h('s_lshl_b32 s51, s51, s59')
    h('s_add_u32 s51, s51, s50')
    h('s_mul_i32 s51, s51, 12288')
    h(f'v_lshlrev_b32 v7, 8, v{G}')
    h(f'v_add_u32 v7, s51, v7')
    h(f'v_xor_b32 v{T1}, v{I}, v{G}')
    h(f'v_lshlrev_b32 v{T1}, 4, v{T1}')
    for q in range(4):
        h(f'v_xor_b32 v{T2}, {q*64}, v{T1}')
        h(f'v_add_u32 v{KO+q}, v7, v{T2}')
    h(f'v_lshlrev_b32 v{T1}, 1, v{G}')
    h(f'v_xor_b32 v{T1}, v{I}, v{T1}')
    h(f'v_lshlrev_b32 v{T1}, 4, v{T1}')
    h(f'v_add_u32 v{VO}, v7, v{T1}')
    h(f'v_xor_b32 v{T1}, 128, v{T1}')
    h(f'v_add_u32 v{VO+1}, v7, v{T1}')
    h(f'v_cmp_eq_u32 vcc, 256, v0')
    h('s_lshr_b32 s50, s63, 4')
    h('s_lshl_b32 s50, s50, 4')
    h(f'v_mov_b32 v{ZA}, s50')
    h(f'v_mov_b32 v{T2}, {OOB:#x}')
    h(f'v_cndmask_b32 v{AT}, v{T2}, v{ZA}, vcc')
    h(f'v_mov_b32 v{AT+1}, 1')
    h('s_xor_b32 s50, s63, 1')
    h('s_lshl_b32 s51, s50, 7')
    h(f's_add_u32 s51, s51, {GOFF}')
    h(f'v_and_b32 v{T1}, 1, v{L}')
    h(f'v_lshlrev_b32 v{T1}, 2, v{T1}')
    h(f'v_add_u32 v{PA}, s51, v{T1}')
    if o.get('loc'):
        h('s_lshl_b32 s50, s42, 4')
        h('s_add_u32 s50, s50, s62')
        h('s_lshl_b32 s50, s50, 3')
        h('s_lshr_b32 s51, s43, 1')
        h('s_add_u32 s50, s50, s51')
        h(f's_mul_i32 s50, s50, {NBLK*1024}')
        h('s_mul_i32 s51, s46, 6144')
        h('s_add_u32 s50, s50, s51')
    else:
        h('s_mul_i32 s50, s50, 24576')
        h('s_mul_i32 s51, s46, 6144')
        h('s_add_u32 s50, s50, s51')
        h(f's_add_u32 s50, s50, {OSOFF}')
    h(f'v_lshlrev_b32 v{T1}, 4, v{L}')
    h(f'v_add_u32 v{PD}, s50, v{T1}')
    h('s_movk_i32 s34, 4096')
    h('s_movk_i32 s35, 8192')
    def kv_tile(which, tile):
        it = []
        base = KREG + tile*16384 if which == 0 else VT[tile]
        sr = 12 if which == 0 else 16
        so = ['0', 's34', 's35'][tile]
        it.append(f's_add_u32 m0, s56, {base}')
        for q in range(4):
            vo = KO + q if which == 0 else VO + (q & 1)
            it.append((f'buffer_load_dwordx4 v{vo}, s[{sr}:{sr+3}], {so} offen offset:{q*1024}{M("kv")} lds', ('K' if which == 0 else 'V', tile)))
        return it
    h('s_lshl_b32 s51, s46, 6')
    h('s_mul_i32 s51, s51, 1152')
    h(f'v_add_u32 v{T0}, s51, v{T0}')
    h(f'v_and_b32 v{T1}, 7, v{L}')
    h(f'v_lshlrev_b32 v{T2}, 1, v{G}')
    h(f'v_xor_b32 v{T1}, v{T1}, v{T2}')
    h(f'v_lshl_add_u32 v{T0}, v{T1}, 4, v{T0}')
    for q in range(4):
        h(f'v_add_u32 v{OW+q}, {q*8192}, v{T0}')
    h('s_mov_b32 s61, s44')
    h(f's_mul_i32 s32, s43, {256*1152}')
    h('s_xor_b32 s33, s43, 1')
    h(f's_mul_i32 s33, s33, {256*1152}')
    def wo_half(u):
        slot = HS[u % 4]
        it = []
        it.append('s_lshl_b32 s48, s61, 7')
        it.append(f's_add_u32 s48, s48, s{32 if u < 9 else 33}')
        it.append(f's_add_u32 s49, s48, {32*1152}')
        it.append(f's_add_u32 m0, s57, {slot}')
        for q in range(4):
            it.append((f'buffer_load_dwordx4 v{OW+q}, s[20:23], s48 offen offset:{q*1024}{M("wo")} lds', ('W', u)))
        it.append(f's_add_u32 m0, s57, {slot+4096}')
        for q in range(4):
            it.append((f'buffer_load_dwordx4 v{OW+q}, s[20:23], s49 offen offset:{q*1024}{M("wo")} lds', ('W', u)))
        it.append('s_add_u32 s61, s61, 1')
        it.append('s_cmp_eq_u32 s61, 9')
        it.append('s_cselect_b32 s61, 0, s61')
        return it
    spf = str(o.get('spf', ''))
    pf = []
    if 'w' in spf:
        h('s_lshl_b32 s50, s46, 6')
        h('s_mul_i32 s50, s50, 1152')
        h('s_add_u32 s50, s50, s32')
        h('s_lshl_b32 s51, s44, 7')
        h('s_add_u32 s50, s50, s51')
        h('s_add_u32 s24, s20, s50'); h('s_addc_u32 s25, s21, 0')
        h('s_lshl_b32 s50, s44, 2')
        h('s_add_u32 s50, s50, s46')
        h(f's_mul_i32 s50, s50, {8*1152}')
        h('s_add_u32 s50, s50, s32')
        h('s_add_u32 s26, s20, s50'); h('s_addc_u32 s27, s21, 0')
        pf += [f's_load_dword s{96 + (i % 4)}, s[26:27], {(i >> 1)*1152 + 1024 + (i & 1)*64}' for i in range(16)]
        pf += [f's_load_dword s{96 + (i % 4)}, s[24:25], {(i >> 1)*1152 + (i & 1)*64}' for i in range(128)]
    npf = int(o.get('npf', 5)); pf0 = int(o.get('pf0', 0))
    em(h, x_chunk(1)); em(h, dma_stage(2))
    n9 = []
    if o.get('c9'):
        h('s_lshl_b32 s50, s3, 1')
        h('s_add_u32 s50, s50, 8')
        modn(h, 50, 51, 9)
        h('s_lshl_b32 s50, s50, 6')
        h('s_lshl_b32 s51, s44, 3')
        h('s_add_u32 s50, s50, s51')
        h('s_lshl_b32 s51, s46, 1')
        h('s_add_u32 s50, s50, s51')
        h('s_lshl_b32 s50, s50, 13')
        h('s_lshl_b32 s51, s43, 9')
        h('s_add_u32 s50, s50, s51')
        h('s_add_u32 s92, s8, s50'); h('s_addc_u32 s93, s9, 0')
        for i in range(14): h(f's_load_dword s{96 + (i % 4)}, s[92:93], {(i >> 3)*8192 + (i & 7)*64}')
        n9 += [f's_load_dword s{96 + (i % 4)}, s[92:93], {(i >> 3)*8192 + (i & 7)*64}' for i in range(14, 16)]
        h('s_add_u32 s50, s44, 8')
        modn(h, 50, 51, 9)
        h('s_lshl_b32 s50, s50, 7')
        h('s_mul_i32 s51, s44, 96')
        h('s_mul_i32 s59, s3, 24')
        h('s_add_u32 s51, s51, s59')
        h('s_mul_i32 s59, s46, 6')
        h('s_add_u32 s51, s51, s59')
        h('s_mul_i32 s51, s51, 1152')
        h('s_add_u32 s50, s50, s51')
        h('s_add_u32 s94, s4, s50'); h('s_addc_u32 s95, s5, 0')
        n9 += [f's_load_dword s{96 + (i % 4)}, s[94:95], {(i >> 1)*1152 + (i & 1)*64}' for i in range(12)]
    sh()
    h.wait_vm(lambda t: t == ('S', 0))
    h('s_barrier')
    em(h, n9)
    em(h, dma_stage(3)); em(h, x_chunk(2))
    kats = [int(x) for x in str(o.get('kat', '8')).split(',')]
    vm0 = list(h.vm)
    if len(kats) > 1:
        h(f's_and_b32 s59, s44, {len(kats)-1}')
        for vi in range(1, len(kats)):
            h(f's_cmp_eq_u32 s59, {vi}')
            h(f's_cbranch_scc1 HQ{vi}')
    n0 = sh.n
    for vi, kat in enumerate(kats):
        h.vm = list(vm0); sh.n = n0
        if vi: h.label(f'HQ{vi}')
        for n in range(17):
            h.wait_vm(lambda t: t == ('S', n+1) or t == ('X', (n+1) >> 1))
            h('s_barrier')
            if n in (3, 8, 13): sh()
            if n == 3:
                h('s_cmp_lg_u32 s46, 0')
                h(f's_cbranch_scc1 H_NOCNT{vi}')
                h('s_lshr_b32 s50, s63, 4')
                h('s_lshl_b32 s50, s50, 4')
                h('s_mov_b32 s100, 1')
                h('s_atomic_add s100, s[54:55], s50')
                h.label(f'H_NOCNT{vi}')
            if n + 4 <= 17: em(h, dma_stage(n+4))
            if (n & 1) and (n >> 1) + 3 <= 8: em(h, x_chunk((n >> 1) + 3))
            if o.get('kall'):
                if n == kat:
                    for tile in range(3): em(h, kv_tile(0, tile))
            elif kat <= n < kat + 3: em(h, kv_tile(0, n - kat))
            if n >= 14: em(h, kv_tile(1, n - 14))
            if pf0 <= n <= int(o.get('pf1', 16)): em(h, pf[(n-pf0)*npf:(n-pf0+1)*npf])
        h.wait_vm(lambda t: t[0] == 'K')
        assert all(t[0] == 'V' for t in h.vm), h.vm
        h.vm = [('V', 0)]*12
        if vi + 1 < len(kats): h('s_branch HQ_END')
    h.label('HQ_END')
    sh()
    h('s_barrier')
    cload = f'buffer_load_dword v{CV}, v{ZA}, s[36:39], 0 offen{CO}'
    h(cload, ('C', 0))
    em(h, wo_half(0))
    h.wait_vm(lambda t: t[0] == 'V')
    sh()
    h('s_barrier')
    h('s_barrier')
    em(h, wo_half(1)); em(h, wo_half(2))
    h.wait_vm(lambda t: t == ('W', 0))
    if int(o.get('w3early', 0)): em(h, wo_half(3))
    sh()
    h('s_barrier')
    check_or_poll(h, 'HC', cload, CV, 16)
    if not int(o.get('w3early', 0)): em(h, wo_half(3))
    PI, PC = int(o.get('pi', 4)), int(o.get('pc', 5))
    h('s_lshl_b32 s24, s63, 7')
    h(f's_add_u32 s24, s24, {GOFF}')
    h('s_xor_b32 s25, s24, 128')
    h('s_lshl_b32 s26, s42, 4')
    h('s_add_u32 s26, s26, s62')
    h(f's_mul_i32 s26, s26, {NP*4}')
    h('s_add_u32 s26, s26, s46')
    h('s_lshl_b32 s26, s26, 7')
    h('s_lshr_b32 s27, s43, 1')
    h('s_lshl_b32 s27, s27, 2')
    h('s_add_u32 s26, s26, s27')
    h(f's_add_u32 s26, s26, {FOFF}')
    h('s_mov_b32 s100, 1')
    assert GOFF % 256 == 0
    nxt = 4
    for u in range(LASTB+1):
        if u < LASTB:
            assert nxt > u+1
            h.wait_vm(lambda t: t == ('W', u+1) or (u == 7 and t[0] == 'O'))
        else:
            assert nxt == 18
            h.wait_vm(lambda t: t[0] == 'W')
        h('s_barrier')
        if u == GU:
            h('s_cmp_lg_u32 s46, 0')
            h('s_cbranch_scc1 H_NOG')
            h('s_atomic_add s100, s[40:41], s24')
            h.label('H_NOG')
        if u == FA_: h('s_atomic_add s100, s[40:41], s26')
        if u == PC:
            h('s_mov_b32 s59, 0')
            h.label('HP_POLL')
            h('s_waitcnt lgkmcnt(0)')
            h('s_cmp_ge_u32 s101, 1')
            h('s_cbranch_scc1 HP_GO')
            h('s_load_dword s101, s[40:41], s25 glc')
            h('s_add_u32 s59, s59, 1')
            h('s_cmp_lt_u32 s59, 0x40000')
            h('s_cbranch_scc1 HP_POLL')
            h.label('HP_GO')
            h('s_mul_i32 s48, s46, 6144')
            h('s_mov_b32 m0, s48')
            for q in range(4): h(f'buffer_load_dwordx4 v{PD}, s[28:31], 0 offen offset:{q*1024}{CO} lds', ('O', q))
            h('s_add_u32 m0, s48, 4096')
            for q in range(2): h(f'buffer_load_dwordx4 v{PD}, s[28:31], s34 offen offset:{q*1024}{CO} lds', ('O', q))
        if u == PI: h('s_load_dword s101, s[40:41], s25 glc')
        if nxt <= 17 and nxt - 4 <= u - 1 + ER:
            em(h, wo_half(nxt)); nxt += 1
    assert nxt == 18, nxt
    sh()
    if o.get('rprio'): h(f's_setprio {o["rprio"]}')
    srd(h, 4, 40, 41, WS_BYTES)
    srd(h, 8, 52, 53, OUT_BYTES)
    h('s_lshl_b32 s61, s46, 3')
    h('s_lshr_b32 s47, s43, 1')
    h('s_add_u32 s61, s61, s47')
    if ts or not o.get('one'):
        h('s_cmp_ge_u32 s61, 24')
        h('s_cbranch_scc1 HA_DONE')
        if ts: reduce_block(h, 'HA', 0, 0, 61, 4, 8, o, sh)
        else:
            h('s_mov_b32 s47, s61'); h(f's_mov_b32 s99, {FOFF}'); h('s_mov_b32 s98, 1')
            h.label('REDUCE')
            reduce_block(h, 'RD', None, 0, 61, 4, 8, o)
            h('s_cmp_eq_u32 s98, 0')
            h('s_cbranch_scc1 M_END')
        h.label('HA_DONE')
        sh()
        h('s_sub_u32 s61, 31, s61')
        h('s_cmp_ge_u32 s61, 12')
        h('s_cbranch_scc1 HB_DONE')
        if ts: reduce_block(h, 'HB', 1, 24, 61, 4, 8, o, sh)
        else:
            h('s_add_u32 s47, s61, 24'); h(f's_mov_b32 s99, {FOFF + 512}'); h('s_mov_b32 s98, 0')
            h('s_branch REDUCE')
        h.label('HB_DONE')
    else:
        h('s_cmp_ge_u32 s61, 24')
        h(f's_mov_b32 s99, {FOFF}')
        h(f's_cselect_b32 s99, {FOFF + 512}, s99')
        h('s_mov_b32 s47, s61')
        h.label('REDUCE')
        reduce_block(h, 'RD', None, 0, 61, 4, 8, o)
    sh.dump(40, 41, 0, 3)
    h.label('M_END')
    h('s_endpgm')
    a.label('CODE_END')
    print('main: compute inst', a.ninst, 'nops', a.nops_inserted, 'helper', h.ninst, 'stamps', st_.n, sh.n)
    return p.text() + h.text() + a.text()

if __name__ == '__main__':
    out = sys.argv[1]
    o = dict(x.split('=') if '=' in x else (x, 1) for x in sys.argv[2:])
    SLEEP = int(o.get('sleep', 1))
    SP0 = 32
    txt = build_file([dict(name=NAME + '_kernel', grid=256, block=512, lds=163840, body=gen_main(o), vgpr=256, sgpr=102, accum=256)])
    open(out, 'w').write(txt)
```

```python
import sys, struct, math
sys.path.insert(0, 'gen')
from asmgen import Asm, interleave
from common import *
from v2 import Stamps, srd, em, f32bits, vr

X_BYTES = 16*48*576*2
W_BYTES = 576*4096*2
KV_A = 16*16*48*128*2
KV_B = 16*32*48*128*2
OUT_BYTES = 16*48*1152*2
PSTR = 50176
P_BYTES = 256*PSTR
OSOFF = P_BYTES
FOFF = OSOFF + 256*24576
GOFF = FOFF + 32*36*128
WS_BYTES = GOFF + 256*128
LFLAG = 24576
OOB = 0x7ffffff0

KREG = 0; XREG = 49152; QS = 98304
VT = [131072, 147456, 98304]
HS = [65536, 32768, 98304, 131072]
L, I, G, T0, T1, T2 = 1, 2, 3, 4, 5, 6
CO = ' sc0 sc1'
SLEEP = 1
CB0 = 84
SP0 = 64

def lane_ids(a):
    a(f'v_and_b32 v{L}, 63, v0')
    a(f'v_and_b32 v{I}, 15, v0')
    a(f'v_lshrrev_b32 v{G}, 4, v{L}')

def modn(a, d, t, n):
    a(f's_cmp_ge_u32 s{d}, {n}')
    a(f's_cselect_b32 s{t}, {n}, 0')
    a(f's_sub_u32 s{d}, s{d}, s{t}')

def poll(a, lbl, load, vreg, expect, keep_vm=False):
    vm = list(a.vm)
    a('s_mov_b32 s59, 0')
    a.label(f'{lbl}_POLL')
    a(load)
    a('s_waitcnt vmcnt(0)')
    a(f'v_cmp_gt_u32 vcc, {expect}, v{vreg}')
    a('s_add_u32 s59, s59, 1')
    a('s_nop 0')
    a(f's_cbranch_vccz {lbl}_GO')
    a(f's_sleep {SLEEP}')
    a('s_cmp_lt_u32 s59, 0x40000')
    a(f's_cbranch_scc1 {lbl}_POLL')
    a.label(f'{lbl}_GO')
    a.vm = vm if keep_vm else []

def check_or_poll(a, lbl, load, vreg, expect):
    a(f'v_cmp_gt_u32 vcc, {expect}, v{vreg}')
    a('s_nop 1')
    a(f's_cbranch_vccz {lbl}_GO')
    poll(a, lbl, load, vreg, expect, keep_vm=True)

def sum6(a, acc, r, first=False):
    for j in range(6):
        if first:
            a(f'v_lshlrev_b32 v{acc+2*j}, 16, v{r+j}')
            a(f'v_and_b32 v{acc+2*j+1}, 0xffff0000, v{r+j}')
        else:
            a(f'v_dot2c_f32_bf16 v{acc+2*j}, v{r+j}, v14')
            a(f'v_dot2c_f32_bf16 v{acc+2*j+1}, v{r+j}, v15')

def red_setup(a, c_sreg):
    a(f's_add_u32 s48, s{c_sreg}, s44')
    modn(a, 48, 58, 9)
    a('s_lshl_b32 s48, s48, 7')
    a('s_mul_i32 s58, s62, 110592')
    a('s_add_u32 s48, s48, s58')
    a('s_mul_i32 s58, s42, 1152')
    a('s_add_u32 s48, s48, s58')
    a('s_lshl_b32 s58, s46, 5')
    a('s_add_u32 s48, s48, s58')
    a(f'v_mul_u32_u24 v7, 2304, v{I}')
    a(f'v_lshl_add_u32 v7, v{G}, 3, v7')
    a('v_add_u32 v7, s48, v7')
    a(f'v_lshlrev_b32 v12, 4, v{L}')
    a(f'v_lshlrev_b32 v13, 3, v{L}')
    a('v_mov_b32 v14, 0x3f80'); a('v_mov_b32 v15, 0x3f800000')
    a('s_lshl_b32 s51, s42, 4')
    a('s_add_u32 s51, s51, s62')
    a(f's_mul_i32 s56, s51, {8*PSTR}')
    a('s_mul_i32 s58, s46, 1536')
    a('s_add_u32 s56, s56, s58')
    a('s_movk_i32 s49, 0x4800'); a('s_lshl_b32 s49, s49, 1'); a('s_lshl_b32 s50, s49, 1')

def ld6(a, r, so, tag):
    a(f'buffer_load_dwordx4 {vr(r,4)}, v12, s[4:7], {so} offen{CO}', tag)
    a(f'buffer_load_dwordx2 {vr(r+4,2)}, v13, s[4:7], {so} offen offset:1024{CO}', tag)

def red_out(a, acc, o):
    M = lambda k: (' ' + o[k].replace('+', ' ')) if k in o else ''
    a('s_nop 2')
    for j in range(6): a(f'v_cvt_pk_bf16_f32 v{acc+j}, v{acc+2*j}, v{acc+2*j+1}')
    for mt in range(3): a(f'buffer_store_dwordx2 {vr(acc+2*mt,2)}, v7, s[8:11], {["0","s49","s50"][mt]} offen{M("out")}')

def spoll(a, lbl, test):
    a('s_mov_b32 s59, 0')
    a.label(f'{lbl}_P')
    a('s_waitcnt lgkmcnt(0)')
    test()
    a(f's_cbranch_scc1 {lbl}_G')
    a('s_load_dwordx8 s[32:39], s[40:41], s57 glc')
    a('s_add_u32 s59, s59, 1')
    a('s_cmp_lt_u32 s59, 0x40000')
    a(f's_cbranch_scc1 {lbl}_P')
    a('s_waitcnt lgkmcnt(0)')
    a.label(f'{lbl}_G')

def gen_main(o):
    ts = o.get('ts'); tsmode = o.get('tsmode', 's_memrealtime')
    M = lambda k: (' ' + o[k].replace('+', ' ')) if k in o else ''
    p = Asm()
    p.label('KSTART')
    p('s_cmp_ge_u32 s2, 256')
    p('s_cbranch_scc1 M_END')
    if ts: p(f'{tsmode} s[64:65]')
    p('s_load_dwordx8 s[24:31], s[0:1], 0')
    p('s_load_dwordx8 s[32:39], s[0:1], 40')
    p('s_load_dwordx2 s[40:41], s[0:1], 96')
    p('s_load_dwordx2 s[20:21], s[0:1], 32')
    p('s_load_dwordx2 s[22:23], s[0:1], 72')
    p('s_load_dwordx4 s[52:55], s[0:1], 80')
    if o.get('cpf') == 'e':
        p(f'v_lshrrev_b32 v{T0}, 6, v0')
        p('s_getpc_b64 s[16:17]')
        p.label('PCREF')
        p(f'v_readfirstlane_b32 s45, v{T0}')
        p('s_cmp_lt_u32 s45, 4')
        p('s_cbranch_scc1 NOCPF')
        p('s_lshr_b32 s18, s2, 3')
        p('s_lshl_b32 s18, s18, 2')
        p('s_add_u32 s18, s18, s45')
        p('s_lshl_b32 s18, s18, 8')
        p('s_sub_u32 s18, s18, 1024')
        p('s_min_u32 s18, s18, CODE_END - PCREF - 196')
        p('s_add_u32 s16, s16, s18'); p('s_addc_u32 s17, s17, 0')
        for i in range(4): p(f's_load_dword s{96+i}, s[16:17], {i*64}')
        p.label('NOCPF')
    p('s_and_b32 s47, s2, 7')
    p('s_lshr_b32 s48, s2, 3')
    p('s_lshr_b32 s42, s47, 2')
    if o.get('bsw') == '1': p('s_xor_b32 s42, s42, 1')
    if o.get('bsw') == '2':
        p('s_and_b32 s42, s47, 1'); p('s_lshr_b32 s47, s47, 1')
    p('s_and_b32 s49, s47, 3')
    p('s_lshl_b32 s49, s49, 2')
    p('s_and_b32 s3, s48, 3')
    p('s_add_u32 s43, s49, s3')
    p('s_lshr_b32 s44, s48, 2')
    p('s_and_b32 s49, s43, 1')
    p('s_lshl_b32 s62, s44, 1')
    p('s_add_u32 s62, s62, s49')
    p('s_lshl_b32 s63, s42, 3')
    p('s_add_u32 s63, s63, s44')
    p('s_lshl_b32 s63, s63, 4')
    p('s_add_u32 s63, s63, s43')
    p(f'v_lshrrev_b32 v{T0}, 6, v0')
    lane_ids(p)
    p(f'v_readfirstlane_b32 s45, v{T0}')
    p('s_and_b32 s46, s45, 3')
    p('s_xor_b32 s45, s45, 4')
    p('s_cmp_lt_u32 s45, 4')
    p('s_cbranch_scc1 COMPUTE')

    a = Asm()
    st_ = Stamps(a, ts, tsmode); st_.n = 1
    fine = o.get('fine')
    if fine: st_.on = False
    a.label('COMPUTE')
    WQ = 8; XR = 24; KR = 26; VRD = 27; OXW = 28
    QA = 40; F0 = 136; SP = 224
    a('s_lshr_b32 s48, s46, 1')
    a('s_and_b32 s49, s46, 1')
    a('s_and_b32 s50, s43, 1')
    a('s_xor_b32 s57, s48, s50')
    a('s_lshl_b32 s50, s42, 4')
    a('s_add_u32 s50, s50, s62')
    a('s_lshr_b32 s56, s43, 1')
    a(f's_mul_i32 s51, s50, {36*128}')
    a('s_lshl_b32 s58, s46, 7')
    a('s_add_u32 s51, s51, s58')
    a(f's_add_u32 s61, s51, {FOFF}')
    a(f'v_add_u32 v{T0}, s56, v{L}')
    a(f'v_and_b32 v{T0}, 7, v{T0}')
    a(f'v_lshlrev_b32 v{T0}, 9, v{T0}')
    a(f'v_lshl_add_u32 v{T0}, v{L}, 2, v{T0}')
    a('s_lshl_b32 s58, s56, 2')
    a('s_add_u32 s58, s58, 4096')
    a(f'v_mov_b32 v{T1}, s58')
    a(f'v_cmp_eq_u32 vcc, 0, v{L}')
    a(f'v_cndmask_b32 v{T0}, v{T0}, v{T1}, vcc')
    a(f'v_add_u32 v{T0}, s61, v{T0}')
    a(f'v_mov_b32 v{T1}, {OOB:#x}')
    a(f'v_cmp_gt_u32 vcc, 8, v{L}')
    a(f'v_cndmask_b32 v31, v{T1}, v{T0}, vcc')
    a('s_lshl_b32 s51, s63, 7')
    a(f's_add_u32 s51, s51, {GOFF}')
    a('s_cmp_eq_u32 s46, 0')
    a(f's_cselect_b32 s51, s51, {OOB:#x}')
    a(f'v_mov_b32 v{T0}, s51')
    a(f'v_cmp_eq_u32 vcc, 8, v{L}')
    a(f'v_cndmask_b32 v{T2}, v31, v{T0}, vcc')
    a(f'v_mov_b32 v7, 0')
    a('s_waitcnt lgkmcnt(0)')
    srd(a, 4, 40, 41, WS_BYTES)
    a(f'buffer_store_dword v7, v{T2}, s[4:7], 0 offen{CO}')
    cpf = o.get('cpf')
    if cpf == 's':
        a('s_getpc_b64 s[16:17]')
        a.label('PCREF')
        a('s_sub_u32 s16, s16, PCREF - KSTART'); a('s_subb_u32 s17, s17, 0')
        if cpf == 's':
            a('s_lshr_b32 s18, s2, 3')
            a('s_lshl_b32 s18, s18, 2')
            a('s_add_u32 s18, s18, s46')
            a('s_mul_i32 s18, s18, 256')
            a('s_min_u32 s18, s18, CODE_END - KSTART - 196')
            a('s_add_u32 s16, s16, s18'); a('s_addc_u32 s17, s17, 0')
            for i in range(4): a(f's_load_dword s{96+i}, s[16:17], {i*64}')
        else:
            pass
    srd(a, 8, 52, 53, OUT_BYTES)
    a('s_lshl_b32 s50, s50, 3')
    a('s_add_u32 s50, s50, s56')
    a(f's_mul_i32 s58, s50, {PSTR}')
    a('s_mul_i32 s50, s46, 1536')
    a('s_add_u32 s58, s58, s50')
    a(f'v_lshlrev_b32 v{T0}, 3, v{L}')
    a(f'v_add_u32 v29, s58, v{T0}')
    a(f'v_lshlrev_b32 v{T0}, 4, v{L}')
    a(f'v_add_u32 v30, s58, v{T0}')
    a('s_mul_i32 s50, s49, 12288')
    if o.get('loc'):
        a('s_lshl_b32 s51, s42, 4')
        a('s_add_u32 s51, s51, s62')
        a('s_xor_b32 s51, s51, 1')
        a('s_lshl_b32 s51, s51, 3')
        a('s_add_u32 s51, s51, s56')
        a(f's_mul_i32 s51, s51, {NBLK*1024}')
    else:
        a('s_mul_i32 s51, s63, 24576')
        a(f's_add_u32 s51, s51, {OSOFF}')
    a('s_add_u32 s51, s51, s50')
    a('s_cmp_eq_u32 s57, 1')
    a(f's_cselect_b32 s51, s51, {OOB - 4096:#x}')
    a(f'v_add_u32 v{OXW}, s50, v{T0}')
    a(f'v_add_u32 v32, s51, v{T0}')
    a(f'v_mov_b32 v33, v{T0}')
    a('s_lshl_b32 s50, s49, 13')
    a(f's_add_u32 s50, s50, {QS}')
    a(f'v_lshlrev_b32 v{T0}, 11, v{G}')
    a(f'v_add_u32 v{T0}, s50, v{T0}')
    a(f'v_lshrrev_b32 v{T2}, 2, v{I}')
    a(f'v_lshl_add_u32 v{T0}, v{T2}, 8, v{T0}')
    a(f'v_and_b32 v{T1}, 1, v{G}')
    a(f'v_lshl_add_u32 v{T1}, v{T1}, 2, v{T2}')
    a(f'v_and_b32 v{T2}, 3, v{I}')
    a(f'v_lshl_add_u32 v{T0}, v{T2}, 3, v{T0}')
    for t in range(8):
        a(f'v_xor_b32 v{T2}, {t}, v{T1}')
        a(f'v_lshl_add_u32 v{WQ+t}, v{T2}, 5, v{T0}')
    a('s_mul_i32 s50, s48, 6144')
    a(f's_add_u32 s50, s50, {XREG}')
    a(f'v_lshrrev_b32 v{T0}, 1, v{I}')
    a(f'v_xor_b32 v{T0}, v{T0}, v{G}')
    a(f'v_lshlrev_b32 v{T0}, 4, v{T0}')
    a(f'v_lshlrev_b32 v{T1}, 7, v{I}')
    a(f'v_add_u32 v{T1}, s50, v{T1}')
    a(f'v_add_u32 v{XR}, v{T1}, v{T0}')
    a(f'v_xor_b32 v{T0}, 64, v{T0}')
    a(f'v_add_u32 v{XR+1}, v{T1}, v{T0}')
    a('s_lshl_b32 s50, s46, 12')
    a(f'v_lshrrev_b32 v{T0}, 1, v{G}')
    a(f'v_xor_b32 v{T0}, v{T0}, v{I}')
    a(f'v_lshlrev_b32 v{T0}, 4, v{T0}')
    a(f'v_lshl_add_u32 v{T0}, v{I}, 8, v{T0}')
    a(f'v_and_b32 v{T1}, 1, v{G}')
    a(f'v_lshl_add_u32 v{T0}, v{T1}, 3, v{T0}')
    a(f'v_add_u32 v{KR}, s50, v{T0}')
    for j in range(8): a(f'v_xor_b32 v{WQ+8+j}, {j*32}, v{KR}')
    a(f's_add_u32 s50, s50, {QS}')
    a(f'v_lshrrev_b32 v{T0}, 2, v{L}')
    a(f'v_and_b32 v{T1}, 7, v{T0}')
    a(f'v_lshlrev_b32 v{T1}, 5, v{T1}')
    a(f'v_lshl_add_u32 v{T0}, v{T0}, 8, v{T1}')
    a(f'v_and_b32 v{T1}, 3, v{I}')
    a(f'v_lshl_add_u32 v{T0}, v{T1}, 3, v{T0}')
    a(f'v_add_u32 v{VRD}, s50, v{T0}')
    AR, PO, FL, ONE, OX0, GF = 4, 5, 6, 7, 2, 3
    a(f'v_lshrrev_b32 v{T0}, 2, v{L}')
    a(f'v_lshlrev_b32 v{T1}, 7, v{T0}')
    a(f'v_and_b32 v{T2}, 3, v{I}')
    a(f'v_lshl_add_u32 v{T1}, v{T2}, 3, v{T1}')
    a(f'v_lshrrev_b32 v{T0}, 1, v{T0}')
    a(f'v_and_b32 v{T0}, 3, v{T0}')
    a(f'v_xor_b32 v{T0}, s46, v{T0}')
    a(f'v_lshl_add_u32 v{T0}, v{T0}, 5, v{T1}')
    a(f'v_add_u32 v{AR}, {HS[0]}, v{T0}')
    a(f'v_mov_b32 v{PO}, v30'); a(f'v_mov_b32 v{FL}, v31'); a(f'v_mov_b32 v{GF}, v32'); a(f'v_mov_b32 v{OX0}, v33'); a(f'v_mov_b32 v{ONE}, 1'); a('v_mov_b32 v1, v29')
    if o.get('tlb'):
        a('s_cmp_eq_u32 s42, 0')
        a('s_cselect_b64 s[26:27], s[26:27], s[34:35]')
        a('s_cselect_b64 s[28:29], s[28:29], s[36:37]')
        a('s_cselect_b64 s[32:33], s[20:21], s[22:23]')
        a(f's_mov_b32 s59, {KV_B}')
        a(f's_cselect_b32 s59, {KV_A}, s59')
        a('s_cselect_b32 s58, 4, 5')
        a('s_lshl_b32 s50, s43, 1')
        a('s_add_u32 s50, s50, s49')
        a('s_cmp_eq_u32 s42, 0')
        a('s_cselect_b32 s50, s43, s50')
        a('s_lshl_b32 s51, s44, 1')
        a('s_add_u32 s51, s51, s48')
        a('s_lshl_b32 s51, s51, s58')
        a('s_add_u32 s51, s51, s50')
        a('s_mul_i32 s51, s51, 12288')
        a('v_mov_b32 v34, 0')
        srd(a, 12, 26, 27, 's59')
        a('buffer_load_dword v35, v34, s[12:15], s51 offen')
        srd(a, 16, 28, 29, 's59')
        a('buffer_load_dword v36, v34, s[16:19], s51 offen')
        srd(a, 20, 32, 33, W_BYTES)
        a('s_and_b32 s50, s43, 14')
        a('s_lshl_b32 s50, s50, 1')
        a('s_add_u32 s50, s50, s46')
        a(f's_mul_i32 s50, s50, {128*1152}')
        a('buffer_load_dword v37, v34, s[20:23], s50 offen')
        a('v_readfirstlane_b32 s50, v30')
        a(f's_mul_i32 s51, s46, {14*8192}')
        a('s_add_u32 s50, s50, s51')
        a('buffer_load_dword v38, v34, s[4:7], s50 offen')
        a('s_mul_i32 s50, s63, 24576')
        a(f's_add_u32 s50, s50, {OSOFF}')
        a('buffer_load_dword v39, v34, s[4:7], s50 offen')
        a('s_mul_i32 s50, s62, 110592')
        a('buffer_load_dword v29, v34, s[8:11], s50 offen')
    a(f's_mul_i32 s24, s46, {3*1024}')
    a(f's_lshl_b32 s25, s46, 11')
    a(f's_add_u32 s25, s25, {48*1024}')
    a('s_movk_i32 s27, 4096'); a('s_movk_i32 s28, 8192')
    cscale = math.log2(math.e) / math.sqrt(128.0)
    a(f's_mov_b32 s60, {f32bits(cscale):#x}')

    def FA(s, t): return F0 + s*44 + 12 + t*4
    def FB(s, mt): return F0 + s*44 + mt*4
    def frag_reads(n):
        s = n % 2
        it = []
        for mt in range(3):
            it.append(f'ds_read_b128 {vr(FB(s,mt),4)}, v{XR+(n&1)} offset:{((n>>1)%3)*12288+mt*2048}')
        for t in range(8):
            for half in range(2):
                it.append(f'ds_read_b64_tr_b16 {vr(FA(s,t)+2*half,2)}, v{WQ+t} offset:{(n%4)*16384+half*1024}')
        return it
    def mfmas(n):
        s = n % 2; it = []
        for t in range(8):
            for mt in range(3):
                d = vr(QA+(t*3+mt)*4, 4)
                c = '0' if n == 0 else d
                it.append(f'v_mfma_f32_16x16x32_bf16 {d}, {vr(FA(s,t),4)}, {vr(FB(s,mt),4)}, {c}')
        return it
    set0 = [F0 + 4*i for i in range(11)]
    set1 = [F0 + 44 + 4*i for i in range(11)]
    def tile(t, mt): return QA + (t*3+mt)*4
    KFt = set0 + [SP]
    PB = SP + 8; TM = SP + 26
    odd = [tile(t, mt) for t in (1, 3, 5, 7) for mt in range(3)]
    VF32t = odd[:8]; VF16t = [odd[8 + (t >> 1)] + 2*(t & 1) for t in range(8)]
    SA = F0 + 44
    QX = [F0 + 80]
    def kf(kt, s): return KFt[kt*4+s]
    def v_addrs(): return [f'v_xor_b32 v{WQ+t}, {t*32}, v{VRD}' for t in range(8)]
    def k_reads():
        it = []
        for s in range(4):
            for kt in range(3):
                r = kf(kt, s)
                it.append(f'ds_read_b64 {vr(r,2)}, v{WQ+8+2*s} offset:{kt*16384}')
                it.append(f'ds_read_b64 {vr(r+2,2)}, v{WQ+8+2*s+1} offset:{kt*16384}')
        return it
    def v_reads():
        it = []
        for t in range(8):
            it.append(f'ds_read_b64_tr_b16 {vr(VF32t[t],2)}, v{WQ+t} offset:{VT[0]-QS}')
            it.append(f'ds_read_b64_tr_b16 {vr(VF32t[t]+2,2)}, v{WQ+t} offset:{VT[1]-QS}')
        for t in range(8):
            it.append(f'ds_read_b64_tr_b16 {vr(VF16t[t],2)}, v{WQ+t} offset:{VT[2]-QS}')
        return it
    a(f's_setprio {o.get("cprio", 2)}')
    a('s_barrier')
    st_()
    em(a, frag_reads(0))
    for n in range(17):
        a.comment(f'--- kstep {n}')
        a('s_waitcnt lgkmcnt(0)' if n != 3 else 's_waitcnt vmcnt(0) lgkmcnt(0)')
        if n == 3: a.vm = []
        a('s_barrier')
        if n in (3, 8, 13): st_()
        interleave(a, mfmas(n), frag_reads(n+1), ratio=1.0)
    def qb(s, qt): return tile(2*s, qt)
    def cvt_q(qt):
        it = []
        for s in range(4):
            for hh in range(2):
                d = QA + ((2*s+hh)*3+qt)*4
                it.append(f'v_cvt_pk_bf16_f32 v{qb(s,qt)+2*hh}, v{d}, v{d+1}')
                it.append(f'v_cvt_pk_bf16_f32 v{qb(s,qt)+2*hh+1}, v{d+2}, v{d+3}')
        return it
    def sa(kt, qt): return SA + (qt*3+kt)*4
    def s_mfma(qt):
        it = []
        for s in range(4):
            for kt in range(3):
                d = vr(sa(kt,qt), 4)
                c = '0' if s == 0 else d
                it.append(f'v_mfma_f32_16x16x32_bf16 {d}, {vr(kf(kt,s),4)}, {vr(qb(s,qt),4)}, {c}')
        return it
    def softmax(qt):
        b = sa(0, qt); m = TM + 2*qt; t = m + 1
        it = []
        it.append(f'v_max3_f32 v{m}, v{b}, v{b+1}, v{b+2}')
        it.append(f'v_max3_f32 v{t}, v{b+3}, v{b+4}, v{b+5}')
        it.append(f'v_max3_f32 v{m}, v{m}, v{b+6}, v{b+7}')
        it.append(f'v_max3_f32 v{t}, v{t}, v{b+8}, v{b+9}')
        it.append(f'v_max3_f32 v{m}, v{m}, v{b+10}, v{b+11}')
        it.append(f'v_max_f32 v{m}, v{m}, v{t}')
        for sw in ('v_permlane32_swap_b32', 'v_permlane16_swap_b32'):
            it.append(f'v_mov_b32 v{t}, v{m}')
            it.append(f'{sw} v{m}, v{t}')
            it.append(f'v_max_f32 v{m}, v{m}, v{t}')
        it.append(f'v_mul_f32 v{m}, s60, v{m}')
        pk = o.get('pk')
        if pk:
            for j in range(0, 12, 2): it.append(f'v_pk_fma_f32 {vr(b+j,2)}, {vr(b+j,2)}, s[60:61], {vr(m,2)} op_sel_hi:[1,0,0] neg_lo:[0,0,1] neg_hi:[0,0,1]')
        else:
            for j in range(12): it.append(f'v_fma_f32 v{b+j}, v{b+j}, s60, -v{m}')
        for j in range(12): it.append(f'v_exp_f32 v{b+j}, v{b+j}')
        if pk:
            it.append(f'v_pk_add_f32 {vr(m,2)}, {vr(b,2)}, {vr(b+2,2)}')
            for j in range(4, 12, 2): it.append(f'v_pk_add_f32 {vr(m,2)}, {vr(m,2)}, {vr(b+j,2)}')
        else:
            it.append(f'v_add_f32 v{m}, v{b}, v{b+1}')
            it.append(f'v_add_f32 v{t}, v{b+2}, v{b+3}')
            for j in range(4, 12, 2):
                it.append(f'v_add_f32 v{m}, v{m}, v{b+j}')
                it.append(f'v_add_f32 v{t}, v{t}, v{b+j+1}')
        it.append(f'v_add_f32 v{m}, v{m}, v{t}')
        for sw in ('v_permlane32_swap_b32', 'v_permlane16_swap_b32'):
            it.append(f'v_mov_b32 v{t}, v{m}')
            it.append(f'{sw} v{m}, v{t}')
            it.append(f'v_add_f32 v{m}, v{m}, v{t}')
        it.append(f'v_rcp_f32 v{m}, v{m}')
        if pk:
            for j in range(0, 12, 2): it.append(f'v_pk_mul_f32 {vr(b+j,2)}, {vr(b+j,2)}, {vr(m,2)} op_sel_hi:[1,0]')
        else:
            for j in range(12): it.append(f'v_mul_f32 v{b+j}, v{b+j}, v{m}')
        for j in range(6): it.append(f'v_cvt_pk_bf16_f32 v{PB+qt*6+j}, v{b+2*j}, v{b+2*j+1}')
        return it
    X0 = KFt[:8]
    X1 = KFt[8:12] + [sa(0,0), sa(1,0), sa(2,0)] + QX[:1]
    def oa(t, qt): return (X0, X1, X0)[qt][t]
    def pv_mfma(qt):
        it = []; pp = PB + qt*6
        for t in range(8):
            d = vr(oa(t,qt), 4)
            it.append(f'v_mfma_f32_16x16x32_bf16 {d}, {vr(VF32t[t],4)}, {vr(pp,4)}, 0')
        for t in range(8):
            d = vr(oa(t,qt), 4)
            it.append(f'v_mfma_f32_16x16x16_bf16 {d}, {vr(VF16t[t],2)}, {vr(pp+4,2)}, {d}')
        return it
    def o_pack(qt, giver):
        it = []
        for s in range(4):
            r = qb(s, qt)
            for hh in range(2):
                d = oa(2*s+hh, qt)
                it.append(f'v_cvt_pk_bf16_f32 v{r+2*hh}, v{d}, v{d+1}')
                it.append(f'v_cvt_pk_bf16_f32 v{r+2*hh+1}, v{d+2}, v{d+3}')
            if not giver: it.append(f'ds_write_b128 v{OXW}, {vr(r,4)} offset:{(qt*4+s)*1024}')
        return it
    def o_give():
        return [(f'buffer_store_dwordx4 {vr(qb(s,qt),4)}, v{GF}, s[4:7], {["0","s27","s28"][qt]} offen offset:{s*1024}{"" if o.get("loc") == "2" else CO}', ('G', 0)) for qt in range(3) for s in range(4)]
    def zipl(*ls):
        out = []; n = max(len(x) for x in ls)
        for i in range(n):
            for x in ls:
                if i < len(x): out.append(x[i])
        return out
    a('s_waitcnt lgkmcnt(0)')
    a('s_barrier')
    st_()
    m17 = mfmas(17)
    m17 = [m17[t*3+mt] for mt in range(3) for t in range(8)]
    kr = k_reads()
    interleave(a, m17[:12], zipl(kr[:12], v_addrs()), ratio=2)
    interleave(a, m17[12:24], zipl(kr[12:], cvt_q(0)[:12]), ratio=2)
    em(a, cvt_q(0)[12:])
    sm0, sm1, sm2 = softmax(0), softmax(1), softmax(2)
    a('s_waitcnt lgkmcnt(6)')
    s0 = s_mfma(0)
    interleave(a, s0[:9], cvt_q(1), ratio=2)
    a('s_waitcnt lgkmcnt(0)')
    interleave(a, s0[9:] + s_mfma(1)[:5], cvt_q(2), ratio=2)
    NB = int(o.get('smb', 40))
    SL = len(sm0); C1 = int(o.get('c1', 40 if SL > 60 else 38)); C2 = SL - C1
    seq = sm0[:C1] + zipl(sm0[C1:], sm1[:C2]) + zipl(sm1[C2:], sm2[:C1])
    interleave(a, s_mfma(1)[5:] + s_mfma(2), seq[:NB], ratio=2)
    st_()
    a('s_barrier')
    st_()
    rest = seq[NB:]
    n1 = max(C1 + 2*C2 - NB, min(48, len(rest) - 32), 0)
    interleave(a, v_reads(), rest[:min(48, n1)], ratio=2)
    a('s_waitcnt lgkmcnt(0)')
    a('s_barrier')
    em(a, rest[min(48, n1):n1])
    interleave(a, pv_mfma(0), rest[n1:], ratio=2)
    a('s_cmp_eq_u32 s57, 1')
    a('s_cbranch_scc1 GIVER')
    hist = list(a.hist)
    for giver in (0, 1):
        if giver:
            a.label('GIVER'); a.hist = list(hist)
        z = zipl(sm2[C1:], o_pack(0, giver))
        interleave(a, pv_mfma(1), z, ratio=2)
        GS = int(o.get('gs', 0))
        og = o_give()
        interleave(a, pv_mfma(2), (og[:min(GS,4)] if giver else []) + o_pack(1, giver), ratio=1.25)
        if giver: em(a, og[4:GS])
        em(a, o_pack(2, giver))
        if not giver:
            a('s_waitcnt lgkmcnt(0)')
            a('s_branch ATT_END')
    a.label('ATT_END')
    st_()
    a('s_barrier')
    if fine: st_.on = True
    st_()
    AFR = 8; AD = 5; LA = 4
    ACCG = [28, 52, 76, 100, 124, 136, 148, 40, 64]
    BF = 160
    def bf(k, mt): return BF + (k*3+mt)*4
    def acc(r, mt): return ACCG[r] + mt*4
    NK = 144
    def a_reads(n):
        k = n % 8
        d = AFR + (n % AD)*4
        return [f'ds_read_b64_tr_b16 {vr(d+2*half,2)}, v{AR} offset:{k*4096+half*2048}' for half in range(2)]
    def b_reads(k):
        return [f'ds_read_b128 {vr(bf(k,mt),4)}, v{OX0} offset:{(k>>2)*12288+(mt*4+(k&3))*1024}' for mt in range(3)]
    def o_mfmas(n):
        u, k = n // 8, n % 8
        it = []
        for mt in range(3):
            d = vr(acc(u % 9, mt), 4)
            c = '0' if (k == 0 and u < 9) else d
            it.append(f'v_mfma_f32_16x16x32_bf16 {d}, {vr(AFR+(n%AD)*4,4)}, {vr(bf(k,mt),4)}, {c}')
        return it
    def p_pack(r):
        it = []
        for mt in range(3):
            d = acc(r, mt); q = acc(r, 0) + 2*mt
            it.append(f'v_cvt_pk_bf16_f32 v{q}, v{d}, v{d+1}')
            it.append(f'v_cvt_pk_bf16_f32 v{q+1}, v{d+2}, v{d+3}')
        return it
    def b_store(t):
        return [f's_mov_b32 s26, {t*6144}',
                (f'buffer_store_dwordx4 {vr(acc(t,0),4)}, v{PO}, s[4:7], s26 offen{CO}', ('P', t)),
                (f'buffer_store_dwordx2 {vr(acc(t,0)+4,2)}, v1, s[4:7], s26 offen offset:1024{CO}', ('P', t))]
    def flag(mask, upto):
        def f():
            a.wait_vm(lambda t: t[0] == 'P' and t[1] <= upto)
            a(f's_mov_b64 exec, {mask:#x}')
            a(f'buffer_store_dword v{ONE}, v{FL}, s[4:7], 0 offen{CO}', ('F', upto))
            a('s_mov_b64 exec, -1')
        return f
    def gflag():
        a('s_waitcnt vmcnt(0)'); a.vm = []
        a(f'buffer_store_dword v{ONE}, v{GF}, s[4:7], 0 offen{CO}', ('F', 9))
    lq = []
    def ds(x, tag):
        a(x); lq.append(tag)
    def need(tags):
        idx = max((i for i, t in enumerate(lq) if t in tags), default=-1)
        if idx < 0: return
        n = len(lq) - 1 - idx
        a(f's_waitcnt lgkmcnt({min(n, 15)})')
        del lq[:idx+1]
    for n in range(LA):
        for x in a_reads(n): ds(x, ('A', n))
        for x in b_reads(n): ds(x, ('B', n))
    LASTB = int(o.get('lastb', 15))
    ER = int(o.get('er', 1))
    GU = int(o.get('gu', 2))
    SA_, SB_ = int(o.get('sa', 13)), int(o.get('sb', 15))
    FA_, FB_ = int(o.get('fa', 15)), int(o.get('fb', 17))
    STU = [int(x) for x in str(o.get('stu', '13,13,13,13,15,15,16,17')).split(',')]
    assert all(su >= t + 10 for t, su in enumerate(STU)) and FA_ <= LASTB
    for u in range(18):
        a.comment(f'--- half-round {u}')
        oth = {g: [] for g in range(24)}
        g = 3
        if u >= 10:
            for x in p_pack(u-10):
                oth[g].append(x); g += 1
        if u == FB_: oth[1].append(flag(0x30, 5))
        if u == 0:
            for j, x in enumerate(o_give()[GS:]): oth[j].append(x)
        st = []
        for t, su in enumerate(STU):
            if su == u: st += b_store(t)
        for x in st:
            oth[g].append(x)
            if not isinstance(x, str): g += 1
        for k in range(8):
            n = u*8 + k
            need({('A', n), ('B', n)} | ({('A', n+3)} if (k == 4 and u <= LASTB and ER) else set()))
            if k == 4 and u < 17:
                if u <= LASTB:
                    if u == GU: a('s_waitcnt vmcnt(0)'); a.vm = []
                    if u == FA_: a.wait_vm(lambda t: t[0] == 'P' and t[1] <= 3)
                    a('s_barrier')
                    if (u in (3, 9) and not fine) or (fine and u >= 2): st_()
                dlt = HS[(u+1) % 4] - HS[u % 4]
                a(f'v_add_u32 v{AR}, {dlt & 0xffffffff:#x}, v{AR}')
            rd = []
            if n + LA < NK: rd += [(x, ('A', n+LA)) for x in a_reads(n+LA)]
            if n + LA < 8: rd += [(x, ('B', n+LA)) for x in b_reads(n+LA)]
            if 65 <= n <= 72: rd += [(x, ('B', n+7)) for x in b_reads(n-65)]
            for i, m in enumerate(o_mfmas(n)):
                a(m)
                take = rd[:2] if len(rd) > 3 - i else rd[:1]
                rd = rd[len(take):]
                for x, tg in take: ds(x, tg)
                em(a, oth[k*3+i])
            assert not rd
    a('s_mul_i32 s50, s46, 3072')
    a(f'v_add_u32 v{AR}, s50, v{OX0}')
    a('s_lshl_b32 s50, s46, 2')
    a(f's_add_u32 s50, s50, {LFLAG}')
    a(f'v_mov_b32 v{GF}, s50')
    for mt in range(3): a(f'ds_write_b128 v{AR}, {vr(acc(8,mt),4)} offset:{mt*1024}')
    a(f'ds_write_b32 v{GF}, v{ONE}')
    st_()
    a('s_lshr_b32 s47, s43, 1')
    a('s_lshl_b32 s48, s46, 1')
    a('s_cmp_eq_u32 s47, s48')
    a('s_cbranch_scc1 C_DUTY')
    vm_ = list(a.vm)
    flag(0xc0, 7)()
    a('s_branch C_DONE')
    a.label('C_DUTY')
    a.vm = vm_
    a('s_add_u32 s57, s61, 4096')
    a('s_load_dwordx8 s[32:39], s[40:41], s57 glc')
    a(f'v_mov_b32 v8, v{ONE}')
    ONE = 8
    lane_ids(a)
    a('s_mov_b32 s47, 8')
    red_setup(a, 47)
    flag(0xc0, 7)()
    def t_all():
        a('s_and_b64 s[16:17], s[32:33], s[34:35]')
        a('s_and_b64 s[18:19], s[36:37], s[38:39]')
        a('s_and_b64 s[16:17], s[16:17], s[18:19]')
        a('s_and_b32 s16, s16, s17')
    spoll(a, 'CS', t_all)
    for pq in range(8):
        if pq: a(f's_add_u32 s56, s56, {PSTR}')
        ld6(a, 32 + 6*pq, 's56', ('R', pq))
    for pq in range(8):
        a.wait_vm(lambda t: t == ('R', pq))
        sum6(a, 16, 32 + 6*pq, pq == 0)
    red_out(a, 16, o)
    a.label('C_DONE')
    st_.dump(40, 41, 0, 3)
    a('s_endpgm')

    h = Asm()
    sh = Stamps(h, ts, tsmode); sh.n = 1; sh.on = False
    h.label('HELPER')
    WO = 8; XO = 12; KO = 16; VO = 20; OW = 24; AT = 30; PV_ = 32; CV = 33; PA = 34; PD = 35; ZA = 36
    h('s_lshl_b32 s47, s3, 1')
    h('s_add_u32 s47, s47, s44')
    modn(h, 47, 48, 9)
    h('s_mov_b32 s60, s47')
    h('s_and_b32 s48, s46, 1')
    h('s_lshl_b32 s48, s48, 17')
    h('s_lshl_b32 s49, s43, 1')
    h('s_lshr_b32 s50, s46, 1')
    h('s_add_u32 s49, s49, s50')
    h('s_lshl_b32 s49, s49, 8')
    h('s_add_u32 s48, s48, s49')
    h(f'v_lshlrev_b32 v{T0}, 13, v{G}')
    h(f'v_add_u32 v{T0}, s48, v{T0}')
    h(f'v_lshlrev_b32 v{T1}, 1, v{G}')
    h(f'v_xor_b32 v{T1}, v{T1}, v{I}')
    h(f'v_lshlrev_b32 v{T1}, 4, v{T1}')
    h(f'v_xor_b32 v{T2}, 128, v{T1}')
    h(f'v_add_u32 v{T1}, v{T0}, v{T1}')
    h(f'v_add_u32 v{T2}, v{T0}, v{T2}')
    for q in range(4):
        h(f'v_add_u32 v{WO+q}, {4*q*8192 - q*1024}, v{T1 if (q >> 1) == 0 else T2}')
    h('s_mul_i32 s48, s44, 96')
    h('s_mul_i32 s49, s46, 24')
    h('s_add_u32 s48, s48, s49')
    h('s_mul_i32 s48, s48, 1152')
    h(f'v_lshrrev_b32 v{T0}, 3, v{L}')
    h(f'v_mul_u32_u24 v{T0}, 1152, v{T0}')
    h(f'v_add_u32 v7, s48, v{T0}')
    h(f'v_and_b32 v{T1}, 7, v{L}')
    h(f'v_xor_b32 v{T1}, v{T1}, v{G}')
    h('s_and_b32 s49, s46, 1')
    h('s_lshl_b32 s49, s49, 2')
    h(f'v_xor_b32 v{T1}, s49, v{T1}')
    h(f'v_lshlrev_b32 v{T1}, 4, v{T1}')
    h(f'v_xor_b32 v{T2}, 64, v{T1}')
    h(f'v_add_u32 v{T1}, v7, v{T1}')
    h(f'v_add_u32 v{T2}, v7, v{T2}')
    for pp in range(3):
        h(f'v_add_u32 v{XO+pp}, {pp*9216 - pp*1024}, v{T1 if pp % 2 == 0 else T2}')
    h('s_lshl_b32 s56, s46, 12')
    h('s_lshl_b32 s57, s46, 13')
    h('s_mul_i32 s58, s46, 3072')
    h('s_waitcnt lgkmcnt(0)')
    h('s_cmp_eq_u32 s42, 0')
    h('s_cselect_b64 s[24:25], s[24:25], s[32:33]')
    h('s_cselect_b64 s[26:27], s[26:27], s[34:35]')
    h('s_cselect_b64 s[28:29], s[28:29], s[36:37]')
    h('s_cselect_b64 s[30:31], s[30:31], s[38:39]')
    h('s_cselect_b64 s[32:33], s[20:21], s[22:23]')
    h(f's_mov_b32 s59, {KV_B}')
    h(f's_cselect_b32 s59, {KV_A}, s59')
    srd(h, 4, 24, 25, X_BYTES)
    srd(h, 8, 30, 31, W_BYTES)
    sh()
    def x_chunk(c, pieces=(0, 1, 2)):
        it = []
        it.append('s_lshl_b32 s48, s60, 7')
        it.append(f's_add_u32 m0, s58, {XREG + (c % 3)*12288}')
        for pp in pieces:
            it.append((f'buffer_load_dwordx4 v{XO+pp}, s[4:7], s48 offen offset:{pp*1024}{M("x")} lds', ('X', c)))
        if 2 in pieces:
            it.append('s_add_u32 s60, s60, 1')
            it.append('s_cmp_eq_u32 s60, 9')
            it.append('s_cselect_b32 s60, 0, s60')
        return it
    def dma_stage(n):
        it = []
        it.append('s_lshl_b32 s49, s47, 19')
        if n & 1: it.append(f's_add_u32 s49, s49, {32*8192}')
        it.append(f's_add_u32 m0, s56, {QS + (n % 4)*16384}')
        for q in range(4):
            it.append((f'buffer_load_dwordx4 v{WO+q}, s[8:11], s49 offen offset:{q*1024}{M("wq")} lds', ('S', n)))
        if n & 1:
            it.append('s_add_u32 s47, s47, 1')
            it.append('s_cmp_eq_u32 s47, 9')
            it.append('s_cselect_b32 s47, 0, s47')
        return it
    em(h, x_chunk(0)); em(h, dma_stage(0)); em(h, dma_stage(1))
    srd(h, 12, 26, 27, 's59')
    srd(h, 16, 28, 29, 's59')
    srd(h, 20, 32, 33, W_BYTES)
    srd(h, 36, 54, 55, 256)
    srd(h, 28, 40, 41, WS_BYTES)
    h('s_lshl_b32 s51, s44, 1')
    h('s_lshr_b32 s50, s46, 1')
    h('s_add_u32 s51, s51, s50')
    h('s_lshl_b32 s50, s43, 1')
    h('s_and_b32 s59, s46, 1')
    h('s_add_u32 s50, s50, s59')
    h('s_cmp_eq_u32 s42, 0')
    h('s_cselect_b32 s59, 4, 5')
    h('s_cselect_b32 s50, s43, s50')
    h('s_lshl_b32 s51, s51, s59')
    h('s_add_u32 s51, s51, s50')
    h('s_mul_i32 s51, s51, 12288')
    h(f'v_lshlrev_b32 v7, 8, v{G}')
    h(f'v_add_u32 v7, s51, v7')
    h(f'v_xor_b32 v{T1}, v{I}, v{G}')
    h(f'v_lshlrev_b32 v{T1}, 4, v{T1}')
    for q in range(4):
        h(f'v_xor_b32 v{T2}, {q*64}, v{T1}')
        h(f'v_add_u32 v{KO+q}, v7, v{T2}')
    h(f'v_lshlrev_b32 v{T1}, 1, v{G}')
    h(f'v_xor_b32 v{T1}, v{I}, v{T1}')
    h(f'v_lshlrev_b32 v{T1}, 4, v{T1}')
    h(f'v_add_u32 v{VO}, v7, v{T1}')
    h(f'v_xor_b32 v{T1}, 128, v{T1}')
    h(f'v_add_u32 v{VO+1}, v7, v{T1}')
    h(f'v_cmp_eq_u32 vcc, 256, v0')
    h('s_lshr_b32 s50, s63, 4')
    h('s_lshl_b32 s50, s50, 4')
    h(f'v_mov_b32 v{ZA}, s50')
    h(f'v_mov_b32 v{T2}, {OOB:#x}')
    h(f'v_cndmask_b32 v{AT}, v{T2}, v{ZA}, vcc')
    h(f'v_mov_b32 v{AT+1}, 1')
    h('s_xor_b32 s50, s63, 1')
    h('s_lshl_b32 s51, s50, 7')
    h(f's_add_u32 s51, s51, {GOFF}')
    h(f'v_and_b32 v{T1}, 1, v{L}')
    h(f'v_lshlrev_b32 v{T1}, 2, v{T1}')
    h(f'v_add_u32 v{PA}, s51, v{T1}')
    if o.get('loc'):
        h('s_lshl_b32 s50, s42, 4')
        h('s_add_u32 s50, s50, s62')
        h('s_lshl_b32 s50, s50, 3')
        h('s_lshr_b32 s51, s43, 1')
        h('s_add_u32 s50, s50, s51')
        h(f's_mul_i32 s50, s50, {NBLK*1024}')
        h('s_mul_i32 s51, s46, 6144')
        h('s_add_u32 s50, s50, s51')
    else:
        h('s_mul_i32 s50, s50, 24576')
        h('s_mul_i32 s51, s46, 6144')
        h('s_add_u32 s50, s50, s51')
        h(f's_add_u32 s50, s50, {OSOFF}')
    h(f'v_lshlrev_b32 v{T1}, 4, v{L}')
    h(f'v_add_u32 v{PD}, s50, v{T1}')
    h('s_movk_i32 s34, 4096')
    h('s_movk_i32 s35, 8192')
    def kv_tile(which, tile):
        it = []
        base = KREG + tile*16384 if which == 0 else VT[tile]
        sr = 12 if which == 0 else 16
        so = ['0', 's34', 's35'][tile]
        it.append(f's_add_u32 m0, s56, {base}')
        for q in range(4):
            vo = KO + q if which == 0 else VO + (q & 1)
            it.append((f'buffer_load_dwordx4 v{vo}, s[{sr}:{sr+3}], {so} offen offset:{q*1024}{M("kv")} lds', ('K' if which == 0 else 'V', tile)))
        return it
    h('s_lshl_b32 s51, s46, 6')
    h('s_mul_i32 s51, s51, 1152')
    h(f'v_add_u32 v{T0}, s51, v{T0}')
    h(f'v_and_b32 v{T1}, 7, v{L}')
    h(f'v_lshlrev_b32 v{T2}, 1, v{G}')
    h(f'v_xor_b32 v{T1}, v{T1}, v{T2}')
    h(f'v_lshl_add_u32 v{T0}, v{T1}, 4, v{T0}')
    for q in range(4):
        h(f'v_add_u32 v{OW+q}, {q*8192}, v{T0}')
    h('s_lshr_b32 s61, s43, 1')
    for t in range(9):
        if t == 0: h('s_add_u32 s50, s44, 8')
        else:
            h(f's_add_u32 s50, s61, {t}')
            h('s_and_b32 s50, s50, 7')
            h('s_add_u32 s50, s50, s44')
        modn(h, 50, 51, 9)
        h(f's_lshl_b32 s{CB0+t}, s50, 7')
    h(f's_mul_i32 s32, s43, {256*1152}')
    h('s_xor_b32 s33, s43, 1')
    h(f's_mul_i32 s33, s33, {256*1152}')
    def wo_half(u):
        slot = HS[u % 4]
        it = []
        it.append(f's_add_u32 s48, s{CB0 + u % 9}, s{32 if u < 9 else 33}')
        it.append(f's_add_u32 s49, s48, {32*1152}')
        it.append(f's_add_u32 m0, s57, {slot}')
        for q in range(4):
            it.append((f'buffer_load_dwordx4 v{OW+q}, s[20:23], s48 offen offset:{q*1024}{M("wo")} lds', ('W', u)))
        it.append(f's_add_u32 m0, s57, {slot+4096}')
        for q in range(4):
            it.append((f'buffer_load_dwordx4 v{OW+q}, s[20:23], s49 offen offset:{q*1024}{M("wo")} lds', ('W', u)))
        return it
    spf = str(o.get('spf', ''))
    pf = []
    if 'w' in spf:
        h('s_lshl_b32 s50, s46, 6')
        h('s_mul_i32 s50, s50, 1152')
        h('s_add_u32 s50, s50, s32')
        h(f's_add_u32 s50, s50, s{CB0}')
        h('s_add_u32 s24, s20, s50'); h('s_addc_u32 s25, s21, 0')
        h('s_lshl_b32 s50, s44, 2')
        h('s_add_u32 s50, s50, s46')
        h(f's_mul_i32 s50, s50, {8*1152}')
        h('s_add_u32 s50, s50, s32')
        h('s_add_u32 s26, s20, s50'); h('s_addc_u32 s27, s21, 0')
        pf += [f's_load_dword s{96 + (i % 4)}, s[26:27], {(i >> 1)*1152 + 896 + (i & 1)*64}' for i in range(16)]
        pf += [f's_load_dword s{96 + (i % 4)}, s[24:25], {(i >> 1)*1152 + (i & 1)*64}' for i in range(128)]
    npf = int(o.get('npf', 5)); pf0 = int(o.get('pf0', 0))
    em(h, x_chunk(1)); em(h, dma_stage(2))
    n9 = []
    if o.get('c9'):
        h('s_lshl_b32 s50, s3, 1')
        h('s_add_u32 s50, s50, 8')
        modn(h, 50, 51, 9)
        h('s_lshl_b32 s50, s50, 6')
        h('s_lshl_b32 s51, s44, 3')
        h('s_add_u32 s50, s50, s51')
        h('s_lshl_b32 s51, s46, 1')
        h('s_add_u32 s50, s50, s51')
        h('s_lshl_b32 s50, s50, 13')
        h('s_lshl_b32 s51, s43, 9')
        h('s_add_u32 s50, s50, s51')
        h('s_add_u32 s92, s8, s50'); h('s_addc_u32 s93, s9, 0')
        for i in range(14): h(f's_load_dword s{96 + (i % 4)}, s[92:93], {(i >> 3)*8192 + (i & 7)*64}')
        n9 += [f's_load_dword s{96 + (i % 4)}, s[92:93], {(i >> 3)*8192 + (i & 7)*64}' for i in range(14, 16)]
        h('s_add_u32 s50, s44, 8')
        modn(h, 50, 51, 9)
        h('s_lshl_b32 s50, s50, 7')
        h('s_mul_i32 s51, s44, 96')
        h('s_mul_i32 s59, s3, 24')
        h('s_add_u32 s51, s51, s59')
        h('s_mul_i32 s59, s46, 6')
        h('s_add_u32 s51, s51, s59')
        h('s_mul_i32 s51, s51, 1152')
        h('s_add_u32 s50, s50, s51')
        h('s_add_u32 s94, s4, s50'); h('s_addc_u32 s95, s5, 0')
        n9 += [f's_load_dword s{96 + (i % 4)}, s[94:95], {(i >> 1)*1152 + (i & 1)*64}' for i in range(12)]
    sh()
    h.wait_vm(lambda t: t == ('S', 0))
    h('s_barrier')
    em(h, n9)
    em(h, dma_stage(3)); em(h, x_chunk(2))
    kats = [int(x) for x in str(o.get('kat', '8')).split(',')]
    vm0 = list(h.vm)
    if len(kats) > 1:
        h(f's_and_b32 s59, s44, {len(kats)-1}')
        for vi in range(1, len(kats)):
            h(f's_cmp_eq_u32 s59, {vi}')
            h(f's_cbranch_scc1 HQ{vi}')
    n0 = sh.n
    for vi, kat in enumerate(kats):
        h.vm = list(vm0); sh.n = n0
        if vi: h.label(f'HQ{vi}')
        for n in range(17):
            h.wait_vm(lambda t: t == ('S', n+1) or t == ('X', (n+1) >> 1))
            h('s_barrier')
            if n in (3, 8, 13): sh()
            if n == 3:
                h('s_cmp_lg_u32 s46, 0')
                h(f's_cbranch_scc1 H_NOCNT{vi}')
                h('s_lshr_b32 s50, s63, 4')
                h('s_lshl_b32 s50, s50, 4')
                h('s_mov_b32 s100, 1')
                h('s_atomic_add s100, s[54:55], s50')
                h.label(f'H_NOCNT{vi}')
            if n + 4 <= 17: em(h, dma_stage(n+4))
            if o.get('xs'):
                XA = (0,) if o['xs'] == '1' else (0, 1)
                XB = tuple(p for p in (0, 1, 2) if p not in XA)
                if (n & 1) and (n >> 1) + 3 <= 8: em(h, x_chunk((n >> 1) + 3, XA))
                if n >= 2 and not (n & 1) and (n >> 1) + 2 <= 8: em(h, x_chunk((n >> 1) + 2, XB))
            elif (n & 1) and (n >> 1) + 3 <= 8: em(h, x_chunk((n >> 1) + 3))
            if o.get('kall'):
                if n == kat:
                    for tile in range(3): em(h, kv_tile(0, tile))
            elif kat <= n < kat + 3: em(h, kv_tile(0, n - kat))
            if n >= 14: em(h, kv_tile(1, n - 14))
            if pf0 <= n <= int(o.get('pf1', 16)): em(h, pf[(n-pf0)*npf:(n-pf0+1)*npf])
        h.wait_vm(lambda t: t[0] == 'K')
        assert all(t[0] == 'V' for t in h.vm), h.vm
        h.vm = [('V', 0)]*12
        if vi + 1 < len(kats): h('s_branch HQ_END')
    h.label('HQ_END')
    sh()
    h('s_barrier')
    cload = f'buffer_load_dword v{CV}, v{ZA}, s[36:39], 0 offen{CO}'
    h(cload, ('C', 0))
    em(h, wo_half(0))
    h.wait_vm(lambda t: t[0] == 'V')
    sh()
    h('s_barrier')
    h('s_barrier')
    em(h, wo_half(1)); em(h, wo_half(2))
    h.wait_vm(lambda t: t == ('W', 0))
    if int(o.get('w3early', 0)): em(h, wo_half(3))
    sh()
    h('s_barrier')
    check_or_poll(h, 'HC', cload, CV, 16)
    if not int(o.get('w3early', 0)): em(h, wo_half(3))
    PI, PC = int(o.get('pi', 4)), int(o.get('pc', 5))
    h('s_lshl_b32 s24, s63, 7')
    h(f's_add_u32 s24, s24, {GOFF}')
    h('s_xor_b32 s25, s24, 128')
    h('s_lshl_b32 s26, s42, 4')
    h('s_add_u32 s26, s26, s62')
    h(f's_mul_i32 s26, s26, {36*128}')
    h('s_lshl_b32 s27, s46, 7')
    h('s_add_u32 s26, s26, s27')
    h(f's_add_u32 s26, s26, {FOFF}')
    h('s_lshl_b32 s27, s46, 2')
    h(f's_add_u32 s27, s27, {LFLAG}')
    h(f'v_mov_b32 v37, s27'); h('v_mov_b32 v38, 0')
    h('ds_write_b32 v37, v38')
    h('s_mov_b32 s100, 1')
    assert GOFF % 256 == 0
    def tail_setup():
        if o.get('rprio'): h(f's_setprio {o["rprio"]}')
        srd(h, 4, 40, 41, WS_BYTES)
        srd(h, 8, 52, 53, OUT_BYTES)
        h('s_lshl_b32 s57, s61, 9')
        h('s_add_u32 s57, s57, s26')
        h('s_load_dwordx8 s[32:39], s[40:41], s57 glc')
        red_setup(h, 61)
        for t in range(1, 8):
            h(f's_sub_u32 s58, s61, {t}')
            h('s_and_b32 s58, s58, 7')
            h(f's_mul_i32 s58, s58, {PSTR}')
            h('s_add_u32 s58, s58, s56')
            h(f's_add_u32 s{CB0+t}, s58, {t*6144}')
        h('s_mul_i32 s58, s46, 3072')
        h('v_add_u32 v11, s58, v12')
    nxt = 4
    wq_pos = 8
    for u in range(LASTB+1):
        if u < LASTB:
            assert nxt > u+1
            h.wait_vm(lambda t: t == ('W', u+1) or (u == 7 and t[0] == 'O'))
        else:
            assert nxt == 18
            tail_setup()
            h.wait_vm(lambda t: t[0] == 'W')
        h('s_barrier')
        if u == GU:
            h('s_cmp_lg_u32 s46, 0')
            h('s_cbranch_scc1 H_NOG')
            h('s_atomic_add s100, s[40:41], s24')
            h.label('H_NOG')
        if u == FA_:
            h('s_lshl_b32 s27, s61, 2')
            h('s_add_u32 s27, s27, s26')
            h('s_add_u32 s27, s27, 4096')
            h('s_atomic_add s100, s[40:41], s27')
            for t in (1, 2, 3):
                h(f's_add_u32 s27, s61, {t}')
                h('s_and_b32 s27, s27, 7')
                h('s_lshl_b32 s27, s27, 9')
                h('s_add_u32 s27, s27, s26')
                h(f's_add_u32 s27, s27, {t*4}')
                h('s_atomic_add s100, s[40:41], s27')
        if u == PC:
            h('s_mov_b32 s59, 0')
            h.label('HP_POLL')
            h('s_waitcnt lgkmcnt(0)')
            h('s_cmp_ge_u32 s101, 1')
            h('s_cbranch_scc1 HP_GO')
            h('s_load_dword s101, s[40:41], s25 glc')
            h('s_add_u32 s59, s59, 1')
            h('s_cmp_lt_u32 s59, 0x40000')
            h('s_cbranch_scc1 HP_POLL')
            h.label('HP_GO')
            h('s_mul_i32 s48, s46, 6144')
            h('s_mov_b32 m0, s48')
            for q in range(4): h(f'buffer_load_dwordx4 v{PD}, s[28:31], 0 offen offset:{q*1024}{CO} lds', ('O', q))
            h('s_add_u32 m0, s48, 4096')
            for q in range(2): h(f'buffer_load_dwordx4 v{PD}, s[28:31], s34 offen offset:{q*1024}{CO} lds', ('O', q))
        if u == PI: h('s_load_dword s101, s[40:41], s25 glc')
        if o.get('wsch'):
            ng = int(o['wsch'][u])
            for _ in range(ng):
                hh, part = wq_pos // 2, wq_pos % 2
                assert hh <= 17 and hh - 4 <= u - 1 + ER, (hh, u)
                it = wo_half(hh)
                cut = 8
                if part == 0: em(h, it[:cut])
                else: em(h, it[:3] + it[cut:])
                wq_pos += 1
            nxt = wq_pos // 2
        elif nxt <= 17 and nxt - 4 <= u - 1 + ER:
            em(h, wo_half(nxt)); nxt += 1
    assert nxt == 18, nxt
    sh.on = ts
    sh()
    def t_a():
        h('s_and_b32 s16, s33, s34')
        h('s_and_b32 s16, s16, s35')
    spoll(h, 'HA', t_a)
    sh()
    h.vm = []
    for t in (1, 2, 3): ld6(h, 40 + 6*(t-1), f's{CB0+t}', ('R', t))
    def t_b(): h('s_and_b32 s16, s36, s37')
    def t_c(): h('s_and_b32 s16, s38, s39')
    spoll(h, 'HB', t_b)
    ld6(h, 60, f's{CB0+4}', ('R', 4)); ld6(h, 66, f's{CB0+5}', ('R', 5))
    t_c()
    h('s_cselect_b32 s98, 1, 0')
    h('s_cbranch_scc0 HNOC')
    ld6(h, 72, f's{CB0+6}', ('R', 6)); ld6(h, 78, f's{CB0+7}', ('R', 7))
    h.vm = h.vm[:-4]
    h.label('HNOC')
    h('s_load_dwordx8 s[32:39], s[40:41], s57 glc')
    for t in (1, 2, 3, 4, 5):
        h.wait_vm(lambda x: x == ('R', t))
        sum6(h, 16, [0, 40, 46, 52, 60, 66][t], t == 1)
    sh()
    h('s_cmp_lg_u32 s98, 0')
    h('s_cbranch_scc1 HOWN')
    h('s_waitcnt lgkmcnt(0)')
    t_c()
    h('s_cbranch_scc0 HOWN')
    ld6(h, 72, f's{CB0+6}', ('R', 6)); ld6(h, 78, f's{CB0+7}', ('R', 7))
    h('s_mov_b32 s98, 1')
    h.label('HOWN')
    h('s_mov_b32 s59, 0')
    h.label('HL_P')
    h('ds_read_b32 v38, v37')
    h('s_waitcnt lgkmcnt(0)')
    h('v_readfirstlane_b32 s58, v38')
    h('s_add_u32 s59, s59, 1')
    h('s_cmp_lg_u32 s58, 0')
    h('s_cbranch_scc1 HL_G')
    h('s_sleep 1')
    h('s_cmp_lt_u32 s59, 0x400000')
    h('s_cbranch_scc1 HL_P')
    h.label('HL_G')
    for mt in range(3): h(f'ds_read_b128 {vr(40+4*mt,4)}, v11 offset:{mt*1024}')
    h('s_waitcnt lgkmcnt(0)')
    for j in range(12): h(f'v_add_f32 v{16+j}, v{16+j}, v{40+j}')
    sh()
    h('s_cmp_lg_u32 s98, 0')
    h('s_cbranch_scc1 HSUMC')
    spoll(h, 'HC2', t_c)
    ld6(h, 72, f's{CB0+6}', ('R', 6)); ld6(h, 78, f's{CB0+7}', ('R', 7))
    h.label('HSUMC')
    sh()
    h('s_waitcnt vmcnt(2)')
    sum6(h, 16, 72)
    h('s_waitcnt vmcnt(0)'); h.vm = []
    sum6(h, 16, 78)
    sh()
    red_out(h, 16, o)
    sh.dump(40, 41, 0, 3)
    h.label('M_END')
    h('s_endpgm')
    a.label('CODE_END')
    print('main: compute inst', a.ninst, 'nops', a.nops_inserted, 'helper', h.ninst, 'stamps', st_.n, sh.n)
    return p.text() + h.text() + a.text()

DOC = """; ---------------------------------------------------------------------------------------------
; ---------------------------------------------------------------------------------------------
"""

if __name__ == '__main__':
    out = sys.argv[1]
    o = dict(x.split('=') if '=' in x else (x, 1) for x in sys.argv[2:])
    SLEEP = int(o.get('sleep', 1))
    SP0 = 32
    txt = build_file([dict(name=NAME + '_kernel', grid=256, block=512, lds=163840, body=gen_main(o), vgpr=256, sgpr=102, accum=256)])
    txt = txt.replace('.amdgcn_target', DOC + '.amdgcn_target', 1)
    open(out, 'w').write(txt)
```

```python
import sys, struct, math
sys.path.insert(0, 'gen')
from asmgen import Asm, interleave
from common import *
from v2 import Stamps, srd, em, f32bits, vr

X_BYTES = 16*48*576*2
W_BYTES = 576*4096*2
KV_A = 16*16*48*128*2
KV_B = 16*32*48*128*2
OUT_BYTES = 16*48*1152*2
PSTR = 50176
P_BYTES = 256*PSTR
OSOFF = P_BYTES
FOFF = OSOFF + 256*24576
GOFF = FOFF + 32*36*128
WS_BYTES = GOFF + 256*128
LFLAG = 24576
OOB = 0x7ffffff0

KREG = 0; XREG = 49152; QS = 98304
VT = [131072, 147456, 98304]
HS = [65536, 32768, 98304, 131072]
L, I, G, T0, T1, T2 = 1, 2, 3, 4, 5, 6
CO = ' sc0 sc1'
SLEEP = 1
A_, B_, C_, D_ = 65536, 32768, 98304, 131072
SL2 = [A_, B_, C_, D_, A_, C_, D_, A_, C_, D_, A_, C_, B_, D_, A_, C_, B_, D_]
IS2 = {0: [4], 2: [5], 3: [6], 4: [7], 5: [8], 6: [9], 7: [10], 8: [11, 12], 9: [13], 10: [14], 11: [15], 12: [16], 13: [17]}
def blk_of(u): return u if u < 8 else (u - 8 if u < 17 else 8)
CB0 = 84
SP0 = 64

def lane_ids(a):
    a(f'v_and_b32 v{L}, 63, v0')
    a(f'v_and_b32 v{I}, 15, v0')
    a(f'v_lshrrev_b32 v{G}, 4, v{L}')

def modn(a, d, t, n):
    a(f's_cmp_ge_u32 s{d}, {n}')
    a(f's_cselect_b32 s{t}, {n}, 0')
    a(f's_sub_u32 s{d}, s{d}, s{t}')

def poll(a, lbl, load, vreg, expect, keep_vm=False):
    vm = list(a.vm)
    a('s_mov_b32 s59, 0')
    a.label(f'{lbl}_POLL')
    a(load)
    a('s_waitcnt vmcnt(0)')
    a(f'v_cmp_gt_u32 vcc, {expect}, v{vreg}')
    a('s_add_u32 s59, s59, 1')
    a('s_nop 0')
    a(f's_cbranch_vccz {lbl}_GO')
    a(f's_sleep {SLEEP}')
    a('s_cmp_lt_u32 s59, 0x40000')
    a(f's_cbranch_scc1 {lbl}_POLL')
    a.label(f'{lbl}_GO')
    a.vm = vm if keep_vm else []

def check_or_poll(a, lbl, load, vreg, expect):
    a(f'v_cmp_gt_u32 vcc, {expect}, v{vreg}')
    a('s_nop 1')
    a(f's_cbranch_vccz {lbl}_GO')
    poll(a, lbl, load, vreg, expect, keep_vm=True)

def sum6(a, acc, r, first=False):
    for j in range(6):
        if first:
            a(f'v_lshlrev_b32 v{acc+2*j}, 16, v{r+j}')
            a(f'v_and_b32 v{acc+2*j+1}, 0xffff0000, v{r+j}')
        else:
            a(f'v_dot2c_f32_bf16 v{acc+2*j}, v{r+j}, v14')
            a(f'v_dot2c_f32_bf16 v{acc+2*j+1}, v{r+j}, v15')

def red_setup(a, c_sreg):
    a(f's_add_u32 s48, s{c_sreg}, s44')
    modn(a, 48, 58, 9)
    a('s_lshl_b32 s48, s48, 7')
    a('s_mul_i32 s58, s62, 110592')
    a('s_add_u32 s48, s48, s58')
    a('s_mul_i32 s58, s42, 1152')
    a('s_add_u32 s48, s48, s58')
    a('s_lshl_b32 s58, s46, 5')
    a('s_add_u32 s48, s48, s58')
    a(f'v_mul_u32_u24 v7, 2304, v{I}')
    a(f'v_lshl_add_u32 v7, v{G}, 3, v7')
    a('v_add_u32 v7, s48, v7')
    a(f'v_lshlrev_b32 v12, 4, v{L}')
    a(f'v_lshlrev_b32 v13, 3, v{L}')
    a('v_mov_b32 v14, 0x3f80'); a('v_mov_b32 v15, 0x3f800000')
    a('s_lshl_b32 s51, s42, 4')
    a('s_add_u32 s51, s51, s62')
    a(f's_mul_i32 s56, s51, {8*PSTR}')
    a('s_mul_i32 s58, s46, 1536')
    a('s_add_u32 s56, s56, s58')
    a('s_movk_i32 s49, 0x4800'); a('s_lshl_b32 s49, s49, 1'); a('s_lshl_b32 s50, s49, 1')

def ld6(a, r, so, tag):
    a(f'buffer_load_dwordx4 {vr(r,4)}, v12, s[4:7], {so} offen{CO}', tag)
    a(f'buffer_load_dwordx2 {vr(r+4,2)}, v13, s[4:7], {so} offen offset:1024{CO}', tag)

def red_out(a, acc, o):
    M = lambda k: (' ' + o[k].replace('+', ' ')) if k in o else ''
    a('s_nop 2')
    for j in range(6): a(f'v_cvt_pk_bf16_f32 v{acc+j}, v{acc+2*j}, v{acc+2*j+1}')
    for mt in range(3): a(f'buffer_store_dwordx2 {vr(acc+2*mt,2)}, v7, s[8:11], {["0","s49","s50"][mt]} offen{M("out")}')

def spoll(a, lbl, test):
    a('s_mov_b32 s59, 0')
    a.label(f'{lbl}_P')
    a('s_waitcnt lgkmcnt(0)')
    test()
    a(f's_cbranch_scc1 {lbl}_G')
    a('s_load_dwordx8 s[32:39], s[40:41], s57 glc')
    a('s_add_u32 s59, s59, 1')
    a('s_cmp_lt_u32 s59, 0x40000')
    a(f's_cbranch_scc1 {lbl}_P')
    a('s_waitcnt lgkmcnt(0)')
    a.label(f'{lbl}_G')

def gen_main(o):
    ts = o.get('ts'); tsmode = o.get('tsmode', 's_memrealtime')
    M = lambda k: (' ' + o[k].replace('+', ' ')) if k in o else ''
    p = Asm()
    p.label('KSTART')
    p('s_cmp_ge_u32 s2, 256')
    p('s_cbranch_scc1 M_END')
    if ts: p(f'{tsmode} s[64:65]')
    p('s_load_dwordx8 s[24:31], s[0:1], 0')
    p('s_load_dwordx8 s[32:39], s[0:1], 40')
    p('s_load_dwordx2 s[40:41], s[0:1], 96')
    p('s_load_dwordx2 s[20:21], s[0:1], 32')
    p('s_load_dwordx2 s[22:23], s[0:1], 72')
    p('s_load_dwordx4 s[52:55], s[0:1], 80')
    if o.get('cpf') == 'e':
        p(f'v_lshrrev_b32 v{T0}, 6, v0')
        p('s_getpc_b64 s[16:17]')
        p.label('PCREF')
        p(f'v_readfirstlane_b32 s45, v{T0}')
        p('s_cmp_lt_u32 s45, 4')
        p('s_cbranch_scc1 NOCPF')
        p('s_lshr_b32 s18, s2, 3')
        p('s_lshl_b32 s18, s18, 2')
        p('s_add_u32 s18, s18, s45')
        p('s_lshl_b32 s18, s18, 8')
        p('s_sub_u32 s18, s18, 1024')
        p('s_min_u32 s18, s18, CODE_END - PCREF - 196')
        p('s_add_u32 s16, s16, s18'); p('s_addc_u32 s17, s17, 0')
        for i in range(4): p(f's_load_dword s{96+i}, s[16:17], {i*64}')
        p.label('NOCPF')
    p('s_and_b32 s47, s2, 7')
    p('s_lshr_b32 s48, s2, 3')
    p('s_lshr_b32 s42, s47, 2')
    if o.get('bsw') == '1': p('s_xor_b32 s42, s42, 1')
    if o.get('bsw') == '2':
        p('s_and_b32 s42, s47, 1'); p('s_lshr_b32 s47, s47, 1')
    p('s_and_b32 s49, s47, 3')
    p('s_lshl_b32 s49, s49, 2')
    p('s_and_b32 s3, s48, 3')
    p('s_add_u32 s43, s49, s3')
    p('s_lshr_b32 s44, s48, 2')
    p('s_and_b32 s49, s43, 1')
    p('s_lshl_b32 s62, s44, 1')
    p('s_add_u32 s62, s62, s49')
    p('s_lshl_b32 s63, s42, 3')
    p('s_add_u32 s63, s63, s44')
    p('s_lshl_b32 s63, s63, 4')
    p('s_add_u32 s63, s63, s43')
    p(f'v_lshrrev_b32 v{T0}, 6, v0')
    lane_ids(p)
    p(f'v_readfirstlane_b32 s45, v{T0}')
    p('s_and_b32 s46, s45, 3')
    p('s_xor_b32 s45, s45, 4')
    p('s_cmp_lt_u32 s45, 4')
    p('s_cbranch_scc1 COMPUTE')

    a = Asm()
    st_ = Stamps(a, ts, tsmode); st_.n = 1
    fine = o.get('fine')
    if fine: st_.on = False
    a.label('COMPUTE')
    WQ = 8; XR = 24; KR = 26; VRD = 27; OXW = 28
    QA = 40; F0 = 136; SP = 224
    a('s_lshr_b32 s48, s46, 1')
    a('s_and_b32 s49, s46, 1')
    a('s_and_b32 s50, s43, 1')
    a('s_xor_b32 s57, s48, s50')
    a('s_lshl_b32 s50, s42, 4')
    a('s_add_u32 s50, s50, s62')
    a('s_lshr_b32 s56, s43, 1')
    a(f's_mul_i32 s51, s50, {36*128}')
    a('s_lshl_b32 s58, s46, 7')
    a('s_add_u32 s51, s51, s58')
    a(f's_add_u32 s61, s51, {FOFF}')
    a(f'v_add_u32 v{T0}, s56, v{L}')
    a(f'v_and_b32 v{T0}, 7, v{T0}')
    a(f'v_lshlrev_b32 v{T0}, 9, v{T0}')
    a(f'v_lshl_add_u32 v{T0}, v{L}, 2, v{T0}')
    a('s_lshl_b32 s58, s56, 2')
    a('s_add_u32 s58, s58, 4096')
    a(f'v_mov_b32 v{T1}, s58')
    a(f'v_cmp_eq_u32 vcc, 0, v{L}')
    a(f'v_cndmask_b32 v{T0}, v{T0}, v{T1}, vcc')
    a(f'v_add_u32 v{T0}, s61, v{T0}')
    a(f'v_mov_b32 v{T1}, {OOB:#x}')
    a(f'v_cmp_gt_u32 vcc, 8, v{L}')
    a(f'v_cndmask_b32 v31, v{T1}, v{T0}, vcc')
    a('s_lshl_b32 s51, s63, 7')
    a(f's_add_u32 s51, s51, {GOFF}')
    a('s_cmp_eq_u32 s46, 0')
    a(f's_cselect_b32 s51, s51, {OOB:#x}')
    a(f'v_mov_b32 v{T0}, s51')
    a(f'v_cmp_eq_u32 vcc, 8, v{L}')
    a(f'v_cndmask_b32 v{T2}, v31, v{T0}, vcc')
    a(f'v_mov_b32 v7, 0')
    a('s_waitcnt lgkmcnt(0)')
    srd(a, 4, 40, 41, WS_BYTES)
    a(f'buffer_store_dword v7, v{T2}, s[4:7], 0 offen{CO}')
    cpf = o.get('cpf')
    if cpf == 's':
        a('s_getpc_b64 s[16:17]')
        a.label('PCREF')
        a('s_sub_u32 s16, s16, PCREF - KSTART'); a('s_subb_u32 s17, s17, 0')
        if cpf == 's':
            a('s_lshr_b32 s18, s2, 3')
            a('s_lshl_b32 s18, s18, 2')
            a('s_add_u32 s18, s18, s46')
            a('s_mul_i32 s18, s18, 256')
            a('s_min_u32 s18, s18, CODE_END - KSTART - 196')
            a('s_add_u32 s16, s16, s18'); a('s_addc_u32 s17, s17, 0')
            for i in range(4): a(f's_load_dword s{96+i}, s[16:17], {i*64}')
        else:
            pass
    srd(a, 8, 52, 53, OUT_BYTES)
    a('s_lshl_b32 s50, s50, 3')
    a('s_add_u32 s50, s50, s56')
    a(f's_mul_i32 s58, s50, {PSTR}')
    a('s_mul_i32 s50, s46, 1536')
    a('s_add_u32 s58, s58, s50')
    a(f'v_lshlrev_b32 v{T0}, 3, v{L}')
    a(f'v_add_u32 v29, s58, v{T0}')
    a(f'v_lshlrev_b32 v{T0}, 4, v{L}')
    a(f'v_add_u32 v30, s58, v{T0}')
    a('s_mul_i32 s50, s49, 12288')
    if o.get('loc'):
        a('s_lshl_b32 s51, s42, 4')
        a('s_add_u32 s51, s51, s62')
        a('s_xor_b32 s51, s51, 1')
        a('s_lshl_b32 s51, s51, 3')
        a('s_add_u32 s51, s51, s56')
        a(f's_mul_i32 s51, s51, {NBLK*1024}')
    else:
        a('s_mul_i32 s51, s63, 24576')
        a(f's_add_u32 s51, s51, {OSOFF}')
    a('s_add_u32 s51, s51, s50')
    a('s_cmp_eq_u32 s57, 1')
    a(f's_cselect_b32 s51, s51, {OOB - 4096:#x}')
    a(f'v_add_u32 v{OXW}, s50, v{T0}')
    a(f'v_add_u32 v32, s51, v{T0}')
    a(f'v_mov_b32 v33, v{T0}')
    a('s_lshl_b32 s50, s49, 13')
    a(f's_add_u32 s50, s50, {QS}')
    a(f'v_lshlrev_b32 v{T0}, 11, v{G}')
    a(f'v_add_u32 v{T0}, s50, v{T0}')
    a(f'v_lshrrev_b32 v{T2}, 2, v{I}')
    a(f'v_lshl_add_u32 v{T0}, v{T2}, 8, v{T0}')
    a(f'v_and_b32 v{T1}, 1, v{G}')
    a(f'v_lshl_add_u32 v{T1}, v{T1}, 2, v{T2}')
    a(f'v_and_b32 v{T2}, 3, v{I}')
    a(f'v_lshl_add_u32 v{T0}, v{T2}, 3, v{T0}')
    for t in range(8):
        a(f'v_xor_b32 v{T2}, {t}, v{T1}')
        a(f'v_lshl_add_u32 v{WQ+t}, v{T2}, 5, v{T0}')
    a('s_mul_i32 s50, s48, 6144')
    a(f's_add_u32 s50, s50, {XREG}')
    a(f'v_lshrrev_b32 v{T0}, 1, v{I}')
    a(f'v_xor_b32 v{T0}, v{T0}, v{G}')
    a(f'v_lshlrev_b32 v{T0}, 4, v{T0}')
    a(f'v_lshlrev_b32 v{T1}, 7, v{I}')
    a(f'v_add_u32 v{T1}, s50, v{T1}')
    a(f'v_add_u32 v{XR}, v{T1}, v{T0}')
    a(f'v_xor_b32 v{T0}, 64, v{T0}')
    a(f'v_add_u32 v{XR+1}, v{T1}, v{T0}')
    a('s_lshl_b32 s50, s46, 12')
    a(f'v_lshrrev_b32 v{T0}, 1, v{G}')
    a(f'v_xor_b32 v{T0}, v{T0}, v{I}')
    a(f'v_lshlrev_b32 v{T0}, 4, v{T0}')
    a(f'v_lshl_add_u32 v{T0}, v{I}, 8, v{T0}')
    a(f'v_and_b32 v{T1}, 1, v{G}')
    a(f'v_lshl_add_u32 v{T0}, v{T1}, 3, v{T0}')
    a(f'v_add_u32 v{KR}, s50, v{T0}')
    for j in range(8): a(f'v_xor_b32 v{WQ+8+j}, {j*32}, v{KR}')
    a(f's_add_u32 s50, s50, {QS}')
    a(f'v_lshrrev_b32 v{T0}, 2, v{L}')
    a(f'v_and_b32 v{T1}, 7, v{T0}')
    a(f'v_lshlrev_b32 v{T1}, 5, v{T1}')
    a(f'v_lshl_add_u32 v{T0}, v{T0}, 8, v{T1}')
    a(f'v_and_b32 v{T1}, 3, v{I}')
    a(f'v_lshl_add_u32 v{T0}, v{T1}, 3, v{T0}')
    a(f'v_add_u32 v{VRD}, s50, v{T0}')
    AR, PO, FL, ONE, OX0, GF = 4, 5, 6, 7, 2, 3
    a(f'v_lshrrev_b32 v{T0}, 2, v{L}')
    a(f'v_lshlrev_b32 v{T1}, 7, v{T0}')
    a(f'v_and_b32 v{T2}, 3, v{I}')
    a(f'v_lshl_add_u32 v{T1}, v{T2}, 3, v{T1}')
    a(f'v_lshrrev_b32 v{T0}, 1, v{T0}')
    a(f'v_and_b32 v{T0}, 3, v{T0}')
    a(f'v_xor_b32 v{T0}, s46, v{T0}')
    a(f'v_lshl_add_u32 v{T0}, v{T0}, 5, v{T1}')
    a(f'v_add_u32 v{AR}, {HS[0]}, v{T0}')
    a(f'v_mov_b32 v{PO}, v30'); a(f'v_mov_b32 v{FL}, v31'); a(f'v_mov_b32 v{GF}, v32'); a(f'v_mov_b32 v{OX0}, v33'); a(f'v_mov_b32 v{ONE}, 1'); a('v_mov_b32 v1, v29')
    if o.get('tlb'):
        a('s_cmp_eq_u32 s42, 0')
        a('s_cselect_b64 s[26:27], s[26:27], s[34:35]')
        a('s_cselect_b64 s[28:29], s[28:29], s[36:37]')
        a('s_cselect_b64 s[32:33], s[20:21], s[22:23]')
        a(f's_mov_b32 s59, {KV_B}')
        a(f's_cselect_b32 s59, {KV_A}, s59')
        a('s_cselect_b32 s58, 4, 5')
        a('s_lshl_b32 s50, s43, 1')
        a('s_add_u32 s50, s50, s49')
        a('s_cmp_eq_u32 s42, 0')
        a('s_cselect_b32 s50, s43, s50')
        a('s_lshl_b32 s51, s44, 1')
        a('s_add_u32 s51, s51, s48')
        a('s_lshl_b32 s51, s51, s58')
        a('s_add_u32 s51, s51, s50')
        a('s_mul_i32 s51, s51, 12288')
        a('v_mov_b32 v34, 0')
        srd(a, 12, 26, 27, 's59')
        a('buffer_load_dword v35, v34, s[12:15], s51 offen')
        srd(a, 16, 28, 29, 's59')
        a('buffer_load_dword v36, v34, s[16:19], s51 offen')
        srd(a, 20, 32, 33, W_BYTES)
        a('s_and_b32 s50, s43, 14')
        a('s_lshl_b32 s50, s50, 1')
        a('s_add_u32 s50, s50, s46')
        a(f's_mul_i32 s50, s50, {128*1152}')
        a('buffer_load_dword v37, v34, s[20:23], s50 offen')
        a('v_readfirstlane_b32 s50, v30')
        a(f's_mul_i32 s51, s46, {14*8192}')
        a('s_add_u32 s50, s50, s51')
        a('buffer_load_dword v38, v34, s[4:7], s50 offen')
        a('s_mul_i32 s50, s63, 24576')
        a(f's_add_u32 s50, s50, {OSOFF}')
        a('buffer_load_dword v39, v34, s[4:7], s50 offen')
        a('s_mul_i32 s50, s62, 110592')
        a('buffer_load_dword v29, v34, s[8:11], s50 offen')
    a(f's_mul_i32 s24, s46, {3*1024}')
    a(f's_lshl_b32 s25, s46, 11')
    a(f's_add_u32 s25, s25, {48*1024}')
    a('s_movk_i32 s27, 4096'); a('s_movk_i32 s28, 8192')
    cscale = math.log2(math.e) / math.sqrt(128.0)
    a(f's_mov_b32 s60, {f32bits(cscale):#x}')

    def FA(s, t): return F0 + s*44 + 12 + t*4
    def FB(s, mt): return F0 + s*44 + mt*4
    def frag_reads(n):
        s = n % 2
        it = []
        for mt in range(3):
            it.append(f'ds_read_b128 {vr(FB(s,mt),4)}, v{XR+(n&1)} offset:{((n>>1)%3)*12288+mt*2048}')
        for t in range(8):
            for half in range(2):
                it.append(f'ds_read_b64_tr_b16 {vr(FA(s,t)+2*half,2)}, v{WQ+t} offset:{(n%4)*16384+half*1024}')
        return it
    def mfmas(n):
        s = n % 2; it = []
        for t in range(8):
            for mt in range(3):
                d = vr(QA+(t*3+mt)*4, 4)
                c = '0' if n == 0 else d
                it.append(f'v_mfma_f32_16x16x32_bf16 {d}, {vr(FA(s,t),4)}, {vr(FB(s,mt),4)}, {c}')
        return it
    set0 = [F0 + 4*i for i in range(11)]
    set1 = [F0 + 44 + 4*i for i in range(11)]
    def tile(t, mt): return QA + (t*3+mt)*4
    KFt = set0 + [SP]
    PB = SP + 8; TM = SP + 26
    odd = [tile(t, mt) for t in (1, 3, 5, 7) for mt in range(3)]
    VF32t = odd[:8]; VF16t = [odd[8 + (t >> 1)] + 2*(t & 1) for t in range(8)]
    SA = F0 + 44
    QX = [F0 + 80]
    def kf(kt, s): return KFt[kt*4+s]
    def v_addrs(): return [f'v_xor_b32 v{WQ+t}, {t*32}, v{VRD}' for t in range(8)]
    def k_reads():
        it = []
        for s in range(4):
            for kt in range(3):
                r = kf(kt, s)
                it.append(f'ds_read_b64 {vr(r,2)}, v{WQ+8+2*s} offset:{kt*16384}')
                it.append(f'ds_read_b64 {vr(r+2,2)}, v{WQ+8+2*s+1} offset:{kt*16384}')
        return it
    def v_reads():
        it = []
        for t in range(8):
            it.append(f'ds_read_b64_tr_b16 {vr(VF32t[t],2)}, v{WQ+t} offset:{VT[0]-QS}')
            it.append(f'ds_read_b64_tr_b16 {vr(VF32t[t]+2,2)}, v{WQ+t} offset:{VT[1]-QS}')
        for t in range(8):
            it.append(f'ds_read_b64_tr_b16 {vr(VF16t[t],2)}, v{WQ+t} offset:{VT[2]-QS}')
        return it
    a(f's_setprio {o.get("cprio", 2)}')
    a('s_barrier')
    st_()
    em(a, frag_reads(0))
    for n in range(17):
        a.comment(f'--- kstep {n}')
        a('s_waitcnt lgkmcnt(0)' if n != 3 else 's_waitcnt vmcnt(0) lgkmcnt(0)')
        if n == 3: a.vm = []
        a('s_barrier')
        if n in (3, 8, 13): st_()
        interleave(a, mfmas(n), frag_reads(n+1), ratio=1.0)
    def qb(s, qt): return tile(2*s, qt)
    def cvt_q(qt):
        it = []
        for s in range(4):
            for hh in range(2):
                d = QA + ((2*s+hh)*3+qt)*4
                it.append(f'v_cvt_pk_bf16_f32 v{qb(s,qt)+2*hh}, v{d}, v{d+1}')
                it.append(f'v_cvt_pk_bf16_f32 v{qb(s,qt)+2*hh+1}, v{d+2}, v{d+3}')
        return it
    def sa(kt, qt): return SA + (qt*3+kt)*4
    def s_mfma(qt):
        it = []
        for s in range(4):
            for kt in range(3):
                d = vr(sa(kt,qt), 4)
                c = '0' if s == 0 else d
                it.append(f'v_mfma_f32_16x16x32_bf16 {d}, {vr(kf(kt,s),4)}, {vr(qb(s,qt),4)}, {c}')
        return it
    def softmax(qt):
        b = sa(0, qt); m = TM + 2*qt; t = m + 1
        it = []
        it.append(f'v_max3_f32 v{m}, v{b}, v{b+1}, v{b+2}')
        it.append(f'v_max3_f32 v{t}, v{b+3}, v{b+4}, v{b+5}')
        it.append(f'v_max3_f32 v{m}, v{m}, v{b+6}, v{b+7}')
        it.append(f'v_max3_f32 v{t}, v{t}, v{b+8}, v{b+9}')
        it.append(f'v_max3_f32 v{m}, v{m}, v{b+10}, v{b+11}')
        it.append(f'v_max_f32 v{m}, v{m}, v{t}')
        for sw in ('v_permlane32_swap_b32', 'v_permlane16_swap_b32'):
            it.append(f'v_mov_b32 v{t}, v{m}')
            it.append(f'{sw} v{m}, v{t}')
            it.append(f'v_max_f32 v{m}, v{m}, v{t}')
        it.append(f'v_mul_f32 v{m}, s60, v{m}')
        pk = o.get('pk')
        if pk:
            for j in range(0, 12, 2): it.append(f'v_pk_fma_f32 {vr(b+j,2)}, {vr(b+j,2)}, s[60:61], {vr(m,2)} op_sel_hi:[1,0,0] neg_lo:[0,0,1] neg_hi:[0,0,1]')
        else:
            for j in range(12): it.append(f'v_fma_f32 v{b+j}, v{b+j}, s60, -v{m}')
        for j in range(12): it.append(f'v_exp_f32 v{b+j}, v{b+j}')
        if pk:
            it.append(f'v_pk_add_f32 {vr(m,2)}, {vr(b,2)}, {vr(b+2,2)}')
            for j in range(4, 12, 2): it.append(f'v_pk_add_f32 {vr(m,2)}, {vr(m,2)}, {vr(b+j,2)}')
        else:
            it.append(f'v_add_f32 v{m}, v{b}, v{b+1}')
            it.append(f'v_add_f32 v{t}, v{b+2}, v{b+3}')
            for j in range(4, 12, 2):
                it.append(f'v_add_f32 v{m}, v{m}, v{b+j}')
                it.append(f'v_add_f32 v{t}, v{t}, v{b+j+1}')
        it.append(f'v_add_f32 v{m}, v{m}, v{t}')
        for sw in ('v_permlane32_swap_b32', 'v_permlane16_swap_b32'):
            it.append(f'v_mov_b32 v{t}, v{m}')
            it.append(f'{sw} v{m}, v{t}')
            it.append(f'v_add_f32 v{m}, v{m}, v{t}')
        it.append(f'v_rcp_f32 v{m}, v{m}')
        if pk:
            for j in range(0, 12, 2): it.append(f'v_pk_mul_f32 {vr(b+j,2)}, {vr(b+j,2)}, {vr(m,2)} op_sel_hi:[1,0]')
        else:
            for j in range(12): it.append(f'v_mul_f32 v{b+j}, v{b+j}, v{m}')
        for j in range(6): it.append(f'v_cvt_pk_bf16_f32 v{PB+qt*6+j}, v{b+2*j}, v{b+2*j+1}')
        return it
    X0 = KFt[:8]
    X1 = KFt[8:12] + [sa(0,0), sa(1,0), sa(2,0)] + QX[:1]
    def oa(t, qt): return (X0, X1, X0)[qt][t]
    def pv_mfma(qt):
        it = []; pp = PB + qt*6
        for t in range(8):
            d = vr(oa(t,qt), 4)
            it.append(f'v_mfma_f32_16x16x32_bf16 {d}, {vr(VF32t[t],4)}, {vr(pp,4)}, 0')
        for t in range(8):
            d = vr(oa(t,qt), 4)
            it.append(f'v_mfma_f32_16x16x16_bf16 {d}, {vr(VF16t[t],2)}, {vr(pp+4,2)}, {d}')
        return it
    def o_pack(qt, giver):
        it = []
        for s in range(4):
            r = qb(s, qt)
            for hh in range(2):
                d = oa(2*s+hh, qt)
                it.append(f'v_cvt_pk_bf16_f32 v{r+2*hh}, v{d}, v{d+1}')
                it.append(f'v_cvt_pk_bf16_f32 v{r+2*hh+1}, v{d+2}, v{d+3}')
            if not giver: it.append(f'ds_write_b128 v{OXW}, {vr(r,4)} offset:{(qt*4+s)*1024}')
        return it
    def o_give():
        return [(f'buffer_store_dwordx4 {vr(qb(s,qt),4)}, v{GF}, s[4:7], {["0","s27","s28"][qt]} offen offset:{s*1024}{"" if o.get("loc") == "2" else CO}', ('G', 0)) for qt in range(3) for s in range(4)]
    def zipl(*ls):
        out = []; n = max(len(x) for x in ls)
        for i in range(n):
            for x in ls:
                if i < len(x): out.append(x[i])
        return out
    a('s_waitcnt lgkmcnt(0)')
    a('s_barrier')
    st_()
    m17 = mfmas(17)
    m17 = [m17[t*3+mt] for mt in range(3) for t in range(8)]
    kr = k_reads()
    interleave(a, m17[:12], zipl(kr[:12], v_addrs()), ratio=2)
    interleave(a, m17[12:24], zipl(kr[12:], cvt_q(0)[:12]), ratio=2)
    em(a, cvt_q(0)[12:])
    sm0, sm1, sm2 = softmax(0), softmax(1), softmax(2)
    a('s_waitcnt lgkmcnt(6)')
    s0 = s_mfma(0)
    interleave(a, s0[:9], cvt_q(1), ratio=2)
    a('s_waitcnt lgkmcnt(0)')
    interleave(a, s0[9:] + s_mfma(1)[:5], cvt_q(2), ratio=2)
    NB = int(o.get('smb', 40))
    SL = len(sm0); C1 = int(o.get('c1', 40 if SL > 60 else 38)); C2 = SL - C1
    seq = sm0[:C1] + zipl(sm0[C1:], sm1[:C2]) + zipl(sm1[C2:], sm2[:C1])
    interleave(a, s_mfma(1)[5:] + s_mfma(2), seq[:NB], ratio=2)
    st_()
    a('s_barrier')
    st_()
    rest = seq[NB:]
    n1 = max(C1 + 2*C2 - NB, min(48, len(rest) - 32), 0)
    interleave(a, v_reads(), rest[:min(48, n1)], ratio=2)
    a('s_waitcnt lgkmcnt(0)')
    a('s_barrier')
    em(a, rest[min(48, n1):n1])
    interleave(a, pv_mfma(0), rest[n1:], ratio=2)
    a('s_cmp_eq_u32 s57, 1')
    a('s_cbranch_scc1 GIVER')
    hist = list(a.hist)
    for giver in (0, 1):
        if giver:
            a.label('GIVER'); a.hist = list(hist)
        z = zipl(sm2[C1:], o_pack(0, giver))
        interleave(a, pv_mfma(1), z, ratio=2)
        GS = int(o.get('gs', 0))
        og = o_give()
        interleave(a, pv_mfma(2), (og[:min(GS,4)] if giver else []) + o_pack(1, giver), ratio=1.25)
        if giver: em(a, og[4:GS])
        em(a, o_pack(2, giver))
        if not giver:
            a('s_waitcnt lgkmcnt(0)')
            a('s_branch ATT_END')
    a.label('ATT_END')
    st_()
    a('s_barrier')
    if fine: st_.on = True
    st_()
    AFR = 8; AD = 5; LA = 4
    ACCG = [28, 52, 76, 100, 124, 136, 148, 40, 64]
    BF = 160
    def bf(k, mt): return BF + (k*3+mt)*4
    def acc(r, mt): return ACCG[r] + mt*4
    NK = 144
    def a_reads(n):
        k = n % 8
        d = AFR + (n % AD)*4
        return [f'ds_read_b64_tr_b16 {vr(d+2*half,2)}, v{AR} offset:{k*4096+half*2048}' for half in range(2)]
    def b_reads(k, base=0):
        return [f'ds_read_b128 {vr(bf(k,mt),4)}, v{OX0} offset:{base+(k>>2)*12288+(mt*4+(k&3))*1024}' for mt in range(3)]
    def o_mfmas(n):
        u, k = n // 8, n % 8
        it = []
        for mt in range(3):
            d = vr(acc(blk_of(u), mt), 4)
            c = '0' if (k == 0 and (u < 8 or u == 16)) else d
            it.append(f'v_mfma_f32_16x16x32_bf16 {d}, {vr(AFR+(n%AD)*4,4)}, {vr(bf(k,mt),4)}, {c}')
        return it
    def p_pack(r):
        it = []
        for mt in range(3):
            d = acc(r, mt); q = acc(r, 0) + 2*mt
            it.append(f'v_cvt_pk_bf16_f32 v{q}, v{d}, v{d+1}')
            it.append(f'v_cvt_pk_bf16_f32 v{q+1}, v{d+2}, v{d+3}')
        return it
    def b_store(t):
        return [f's_mov_b32 s26, {t*6144}',
                (f'buffer_store_dwordx4 {vr(acc(t,0),4)}, v{PO}, s[4:7], s26 offen{CO}', ('P', t)),
                (f'buffer_store_dwordx2 {vr(acc(t,0)+4,2)}, v1, s[4:7], s26 offen offset:1024{CO}', ('P', t))]
    def flag(mask, upto):
        def f():
            a.wait_vm(lambda t: t[0] == 'P' and t[1] <= upto)
            a(f's_mov_b64 exec, {mask:#x}')
            a(f'buffer_store_dword v{ONE}, v{FL}, s[4:7], 0 offen{CO}', ('F', upto))
            a('s_mov_b64 exec, -1')
        return f
    def gflag():
        a('s_waitcnt vmcnt(0)'); a.vm = []
        a(f'buffer_store_dword v{ONE}, v{GF}, s[4:7], 0 offen{CO}', ('F', 9))
    lq = []
    def ds(x, tag):
        a(x); lq.append(tag)
    def need(tags):
        idx = max((i for i, t in enumerate(lq) if t in tags), default=-1)
        if idx < 0: return
        n = len(lq) - 1 - idx
        a(f's_waitcnt lgkmcnt({min(n, 15)})')
        del lq[:idx+1]
    for n in range(LA):
        for x in a_reads(n): ds(x, ('A', n))
        for x in b_reads(n): ds(x, ('B', n))
    LASTB = int(o.get('lastb', 15))
    ER = 1
    assert LASTB >= 14
    GU = int(o.get('gu', 1))
    SA_, SB_ = int(o.get('sa', 13)), int(o.get('sb', 15))
    FA_, FB_ = int(o.get('fa', 14)), int(o.get('fb', 16))
    STU = [int(x) for x in str(o.get('stu', '13,13,13,13,15,15,16,17')).split(',')]
    assert all(su >= t + 9 for t, su in enumerate(STU)) and FA_ <= LASTB
    for u in range(18):
        a.comment(f'--- half-round {u}')
        oth = {g: [] for g in range(24)}
        g = 3
        if 9 <= u <= 16:
            for x in p_pack(u-9):
                oth[g].append(x); g += 1
        if u == FB_: oth[1].append(flag(0x30, 5))
        if u == 17 and o.get('f6'): oth[int(o['f6'])].append(flag(0x40, 6))
        if u == 0:
            for j, x in enumerate(o_give()[GS:]): oth[j].append(x)
        st = []
        for t, su in enumerate(STU):
            if su == u: st += b_store(t)
        for x in st:
            oth[g].append(x)
            if not isinstance(x, str): g += 1
        for k in range(8):
            n = u*8 + k
            need({('A', n), ('B', n)} | ({('A', n+3)} if (k == 4 and u <= LASTB and ER) else set()))
            if k == 4 and u < 17:
                if u <= LASTB:
                    if u == GU: a('s_waitcnt vmcnt(0)'); a.vm = []
                    if u == FA_: a.wait_vm(lambda t: t[0] == 'P' and t[1] <= 3)
                    a('s_barrier')
                    if (u in (3, 9) and not fine) or (fine and u >= 2): st_()
                dlt = SL2[u+1] - SL2[u]
                a(f'v_add_u32 v{AR}, {dlt & 0xffffffff:#x}, v{AR}')
            rd = []
            if n + LA < NK: rd += [(x, ('A', n+LA)) for x in a_reads(n+LA)]
            if n + LA < 8: rd += [(x, ('B', n+LA)) for x in b_reads(n+LA)]
            if 57 <= n <= 64: rd += [(x, ('B', n+7)) for x in b_reads(n-57, B_)]
            if 129 <= n <= 136: rd += [(x, ('B', n+7)) for x in b_reads(n-129)]
            for i, m in enumerate(o_mfmas(n)):
                a(m)
                take = rd[:2] if len(rd) > 3 - i else rd[:1]
                rd = rd[len(take):]
                for x, tg in take: ds(x, tg)
                em(a, oth[k*3+i])
            assert not rd
    a('s_mul_i32 s50, s46, 3072')
    a(f's_add_u32 s50, s50, {B_ if o.get("is3") else SL2[14]}')
    a(f'v_add_u32 v{AR}, s50, v{OX0}')
    a('s_lshl_b32 s50, s46, 2')
    a(f's_add_u32 s50, s50, {LFLAG}')
    a(f'v_mov_b32 v{GF}, s50')
    for mt in range(3): a(f'ds_write_b128 v{AR}, {vr(acc(8,mt),4)} offset:{mt*1024}')
    a(f'ds_write_b32 v{GF}, v{ONE}')
    st_()
    a('s_lshr_b32 s47, s43, 1')
    a('s_lshl_b32 s48, s46, 1')
    a('s_cmp_eq_u32 s47, s48')
    a('s_cbranch_scc1 C_DUTY')
    vm_ = list(a.vm)
    flag(0x80 if o.get('f6') else 0xc0, 7)()
    a('s_branch C_DONE')
    a.label('C_DUTY')
    a.vm = vm_
    a('s_add_u32 s57, s61, 4096')
    a('s_load_dwordx8 s[32:39], s[40:41], s57 glc')
    a(f'v_mov_b32 v8, v{ONE}')
    ONE = 8
    lane_ids(a)
    a('s_mov_b32 s47, 8')
    red_setup(a, 47)
    flag(0x80 if o.get('f6') else 0xc0, 7)()
    def t_all():
        a('s_and_b64 s[16:17], s[32:33], s[34:35]')
        a('s_and_b64 s[18:19], s[36:37], s[38:39]')
        a('s_and_b64 s[16:17], s[16:17], s[18:19]')
        a('s_and_b32 s16, s16, s17')
    spoll(a, 'CS', t_all)
    for pq in range(8):
        if pq: a(f's_add_u32 s56, s56, {PSTR}')
        ld6(a, 32 + 6*pq, 's56', ('R', pq))
    for pq in range(8):
        a.wait_vm(lambda t: t == ('R', pq))
        sum6(a, 16, 32 + 6*pq, pq == 0)
    red_out(a, 16, o)
    a.label('C_DONE')
    st_.dump(40, 41, 0, 3)
    a('s_endpgm')

    h = Asm()
    sh = Stamps(h, ts, tsmode); sh.n = 1; sh.on = False
    h.label('HELPER')
    WO = 8; XO = 12; KO = 16; VO = 20; OW = 24; AT = 30; PV_ = 32; CV = 33; PA = 34; PD = 35; ZA = 36
    h('s_lshl_b32 s47, s3, 1')
    h('s_add_u32 s47, s47, s44')
    modn(h, 47, 48, 9)
    h('s_mov_b32 s60, s47')
    h('s_and_b32 s48, s46, 1')
    h('s_lshl_b32 s48, s48, 17')
    h('s_lshl_b32 s49, s43, 1')
    h('s_lshr_b32 s50, s46, 1')
    h('s_add_u32 s49, s49, s50')
    h('s_lshl_b32 s49, s49, 8')
    h('s_add_u32 s48, s48, s49')
    h(f'v_lshlrev_b32 v{T0}, 13, v{G}')
    h(f'v_add_u32 v{T0}, s48, v{T0}')
    h(f'v_lshlrev_b32 v{T1}, 1, v{G}')
    h(f'v_xor_b32 v{T1}, v{T1}, v{I}')
    h(f'v_lshlrev_b32 v{T1}, 4, v{T1}')
    h(f'v_xor_b32 v{T2}, 128, v{T1}')
    h(f'v_add_u32 v{T1}, v{T0}, v{T1}')
    h(f'v_add_u32 v{T2}, v{T0}, v{T2}')
    for q in range(4):
        h(f'v_add_u32 v{WO+q}, {4*q*8192 - q*1024}, v{T1 if (q >> 1) == 0 else T2}')
    h('s_mul_i32 s48, s44, 96')
    h('s_mul_i32 s49, s46, 24')
    h('s_add_u32 s48, s48, s49')
    h('s_mul_i32 s48, s48, 1152')
    h(f'v_lshrrev_b32 v{T0}, 3, v{L}')
    h(f'v_mul_u32_u24 v{T0}, 1152, v{T0}')
    h(f'v_add_u32 v7, s48, v{T0}')
    h(f'v_and_b32 v{T1}, 7, v{L}')
    h(f'v_xor_b32 v{T1}, v{T1}, v{G}')
    h('s_and_b32 s49, s46, 1')
    h('s_lshl_b32 s49, s49, 2')
    h(f'v_xor_b32 v{T1}, s49, v{T1}')
    h(f'v_lshlrev_b32 v{T1}, 4, v{T1}')
    h(f'v_xor_b32 v{T2}, 64, v{T1}')
    h(f'v_add_u32 v{T1}, v7, v{T1}')
    h(f'v_add_u32 v{T2}, v7, v{T2}')
    for pp in range(3):
        h(f'v_add_u32 v{XO+pp}, {pp*9216 - pp*1024}, v{T1 if pp % 2 == 0 else T2}')
    h('s_lshl_b32 s56, s46, 12')
    h('s_lshl_b32 s57, s46, 13')
    h('s_mul_i32 s58, s46, 3072')
    h('s_waitcnt lgkmcnt(0)')
    h('s_cmp_eq_u32 s42, 0')
    h('s_cselect_b64 s[24:25], s[24:25], s[32:33]')
    h('s_cselect_b64 s[26:27], s[26:27], s[34:35]')
    h('s_cselect_b64 s[28:29], s[28:29], s[36:37]')
    h('s_cselect_b64 s[30:31], s[30:31], s[38:39]')
    h('s_cselect_b64 s[32:33], s[20:21], s[22:23]')
    h(f's_mov_b32 s59, {KV_B}')
    h(f's_cselect_b32 s59, {KV_A}, s59')
    srd(h, 4, 24, 25, X_BYTES)
    srd(h, 8, 30, 31, W_BYTES)
    sh()
    def x_chunk(c, pieces=(0, 1, 2)):
        it = []
        it.append('s_lshl_b32 s48, s60, 7')
        it.append(f's_add_u32 m0, s58, {XREG + (c % 3)*12288}')
        for pp in pieces:
            it.append((f'buffer_load_dwordx4 v{XO+pp}, s[4:7], s48 offen offset:{pp*1024}{M("x")} lds', ('X', c)))
        if 2 in pieces:
            it.append('s_add_u32 s60, s60, 1')
            it.append('s_cmp_eq_u32 s60, 9')
            it.append('s_cselect_b32 s60, 0, s60')
        return it
    def dma_stage(n):
        it = []
        it.append('s_lshl_b32 s49, s47, 19')
        if n & 1: it.append(f's_add_u32 s49, s49, {32*8192}')
        it.append(f's_add_u32 m0, s56, {QS + (n % 4)*16384}')
        for q in range(4):
            it.append((f'buffer_load_dwordx4 v{WO+q}, s[8:11], s49 offen offset:{q*1024}{M("wq")} lds', ('S', n)))
        if n & 1:
            it.append('s_add_u32 s47, s47, 1')
            it.append('s_cmp_eq_u32 s47, 9')
            it.append('s_cselect_b32 s47, 0, s47')
        return it
    em(h, x_chunk(0)); em(h, dma_stage(0)); em(h, dma_stage(1))
    srd(h, 12, 26, 27, 's59')
    srd(h, 16, 28, 29, 's59')
    srd(h, 20, 32, 33, W_BYTES)
    srd(h, 36, 54, 55, 256)
    srd(h, 28, 40, 41, WS_BYTES)
    h('s_lshl_b32 s51, s44, 1')
    h('s_lshr_b32 s50, s46, 1')
    h('s_add_u32 s51, s51, s50')
    h('s_lshl_b32 s50, s43, 1')
    h('s_and_b32 s59, s46, 1')
    h('s_add_u32 s50, s50, s59')
    h('s_cmp_eq_u32 s42, 0')
    h('s_cselect_b32 s59, 4, 5')
    h('s_cselect_b32 s50, s43, s50')
    h('s_lshl_b32 s51, s51, s59')
    h('s_add_u32 s51, s51, s50')
    h('s_mul_i32 s51, s51, 12288')
    h(f'v_lshlrev_b32 v7, 8, v{G}')
    h(f'v_add_u32 v7, s51, v7')
    h(f'v_xor_b32 v{T1}, v{I}, v{G}')
    h(f'v_lshlrev_b32 v{T1}, 4, v{T1}')
    for q in range(4):
        h(f'v_xor_b32 v{T2}, {q*64}, v{T1}')
        h(f'v_add_u32 v{KO+q}, v7, v{T2}')
    h(f'v_lshlrev_b32 v{T1}, 1, v{G}')
    h(f'v_xor_b32 v{T1}, v{I}, v{T1}')
    h(f'v_lshlrev_b32 v{T1}, 4, v{T1}')
    h(f'v_add_u32 v{VO}, v7, v{T1}')
    h(f'v_xor_b32 v{T1}, 128, v{T1}')
    h(f'v_add_u32 v{VO+1}, v7, v{T1}')
    h(f'v_cmp_eq_u32 vcc, 256, v0')
    h('s_lshr_b32 s50, s63, 4')
    h('s_lshl_b32 s50, s50, 4')
    h(f'v_mov_b32 v{ZA}, s50')
    h(f'v_mov_b32 v{T2}, {OOB:#x}')
    h(f'v_cndmask_b32 v{AT}, v{T2}, v{ZA}, vcc')
    h(f'v_mov_b32 v{AT+1}, 1')
    h('s_xor_b32 s50, s63, 1')
    h('s_lshl_b32 s51, s50, 7')
    h(f's_add_u32 s51, s51, {GOFF}')
    h(f'v_and_b32 v{T1}, 1, v{L}')
    h(f'v_lshlrev_b32 v{T1}, 2, v{T1}')
    h(f'v_add_u32 v{PA}, s51, v{T1}')
    if o.get('loc'):
        h('s_lshl_b32 s50, s42, 4')
        h('s_add_u32 s50, s50, s62')
        h('s_lshl_b32 s50, s50, 3')
        h('s_lshr_b32 s51, s43, 1')
        h('s_add_u32 s50, s50, s51')
        h(f's_mul_i32 s50, s50, {NBLK*1024}')
        h('s_mul_i32 s51, s46, 6144')
        h('s_add_u32 s50, s50, s51')
    else:
        h('s_mul_i32 s50, s50, 24576')
        h('s_mul_i32 s51, s46, 6144')
        h('s_add_u32 s50, s50, s51')
        h(f's_add_u32 s50, s50, {OSOFF}')
    h(f'v_lshlrev_b32 v{T1}, 4, v{L}')
    h(f'v_add_u32 v{PD}, s50, v{T1}')
    h('s_movk_i32 s34, 4096')
    h('s_movk_i32 s35, 8192')
    def kv_tile(which, tile):
        it = []
        base = KREG + tile*16384 if which == 0 else VT[tile]
        sr = 12 if which == 0 else 16
        so = ['0', 's34', 's35'][tile]
        it.append(f's_add_u32 m0, s56, {base}')
        for q in range(4):
            vo = KO + q if which == 0 else VO + (q & 1)
            it.append((f'buffer_load_dwordx4 v{vo}, s[{sr}:{sr+3}], {so} offen offset:{q*1024}{M("kv")} lds', ('K' if which == 0 else 'V', tile)))
        return it
    h('s_lshl_b32 s51, s46, 6')
    h('s_mul_i32 s51, s51, 1152')
    h(f'v_add_u32 v{T0}, s51, v{T0}')
    h(f'v_and_b32 v{T1}, 7, v{L}')
    h(f'v_lshlrev_b32 v{T2}, 1, v{G}')
    h(f'v_xor_b32 v{T1}, v{T1}, v{T2}')
    h(f'v_lshl_add_u32 v{T0}, v{T1}, 4, v{T0}')
    for q in range(4):
        h(f'v_add_u32 v{OW+q}, {q*8192}, v{T0}')
    h('s_lshr_b32 s61, s43, 1')
    for t in range(9):
        if t == 0: h('s_add_u32 s50, s44, 8')
        else:
            h(f's_add_u32 s50, s61, {t}')
            h('s_and_b32 s50, s50, 7')
            h('s_add_u32 s50, s50, s44')
        modn(h, 50, 51, 9)
        h(f's_lshl_b32 s{CB0+t}, s50, 7')
    h(f's_mul_i32 s32, s43, {256*1152}')
    h('s_xor_b32 s33, s43, 1')
    h(f's_mul_i32 s33, s33, {256*1152}')
    def wo_half(u):
        slot = SL2[u]
        it = []
        it.append(f's_add_u32 s48, s{CB0 + blk_of(u)}, s{32 if (u < 8 or u == 17) else 33}')
        it.append(f's_add_u32 s49, s48, {32*1152}')
        it.append(f's_add_u32 m0, s57, {slot}')
        for q in range(4):
            it.append((f'buffer_load_dwordx4 v{OW+q}, s[20:23], s48 offen offset:{q*1024}{M("wo")} lds', ('W', u)))
        it.append(f's_add_u32 m0, s57, {slot+4096}')
        for q in range(4):
            it.append((f'buffer_load_dwordx4 v{OW+q}, s[20:23], s49 offen offset:{q*1024}{M("wo")} lds', ('W', u)))
        return it
    spf = str(o.get('spf', ''))
    pf = []
    if 'w' in spf:
        h('s_lshl_b32 s50, s46, 6')
        h('s_mul_i32 s50, s50, 1152')
        h('s_add_u32 s50, s50, s32')
        h(f's_add_u32 s50, s50, s{CB0}')
        h('s_add_u32 s24, s20, s50'); h('s_addc_u32 s25, s21, 0')
        h('s_lshl_b32 s50, s44, 2')
        h('s_add_u32 s50, s50, s46')
        h(f's_mul_i32 s50, s50, {8*1152}')
        h('s_add_u32 s50, s50, s32')
        h('s_add_u32 s26, s20, s50'); h('s_addc_u32 s27, s21, 0')
        pf += [f's_load_dword s{96 + (i % 4)}, s[26:27], {(i >> 1)*1152 + 896 + (i & 1)*64}' for i in range(16)]
        pf += [f's_load_dword s{96 + (i % 4)}, s[24:25], {(i >> 1)*1152 + (i & 1)*64}' for i in range(128)]
    npf = int(o.get('npf', 5)); pf0 = int(o.get('pf0', 0))
    em(h, x_chunk(1)); em(h, dma_stage(2))
    n9 = []
    if o.get('c9'):
        h('s_lshl_b32 s50, s3, 1')
        h('s_add_u32 s50, s50, 8')
        modn(h, 50, 51, 9)
        h('s_lshl_b32 s50, s50, 6')
        h('s_lshl_b32 s51, s44, 3')
        h('s_add_u32 s50, s50, s51')
        h('s_lshl_b32 s51, s46, 1')
        h('s_add_u32 s50, s50, s51')
        h('s_lshl_b32 s50, s50, 13')
        h('s_lshl_b32 s51, s43, 9')
        h('s_add_u32 s50, s50, s51')
        h('s_add_u32 s92, s8, s50'); h('s_addc_u32 s93, s9, 0')
        for i in range(14): h(f's_load_dword s{96 + (i % 4)}, s[92:93], {(i >> 3)*8192 + (i & 7)*64}')
        n9 += [f's_load_dword s{96 + (i % 4)}, s[92:93], {(i >> 3)*8192 + (i & 7)*64}' for i in range(14, 16)]
        h('s_add_u32 s50, s44, 8')
        modn(h, 50, 51, 9)
        h('s_lshl_b32 s50, s50, 7')
        h('s_mul_i32 s51, s44, 96')
        h('s_mul_i32 s59, s3, 24')
        h('s_add_u32 s51, s51, s59')
        h('s_mul_i32 s59, s46, 6')
        h('s_add_u32 s51, s51, s59')
        h('s_mul_i32 s51, s51, 1152')
        h('s_add_u32 s50, s50, s51')
        h('s_add_u32 s94, s4, s50'); h('s_addc_u32 s95, s5, 0')
        n9 += [f's_load_dword s{96 + (i % 4)}, s[94:95], {(i >> 1)*1152 + (i & 1)*64}' for i in range(12)]
    sh()
    h.wait_vm(lambda t: t == ('S', 0))
    h('s_barrier')
    em(h, n9)
    em(h, dma_stage(3)); em(h, x_chunk(2))
    kats = [int(x) for x in str(o.get('kat', '8')).split(',')]
    vm0 = list(h.vm)
    if len(kats) > 1:
        h(f's_and_b32 s59, s44, {len(kats)-1}')
        for vi in range(1, len(kats)):
            h(f's_cmp_eq_u32 s59, {vi}')
            h(f's_cbranch_scc1 HQ{vi}')
    n0 = sh.n
    for vi, kat in enumerate(kats):
        h.vm = list(vm0); sh.n = n0
        if vi: h.label(f'HQ{vi}')
        for n in range(17):
            h.wait_vm(lambda t: t == ('S', n+1) or t == ('X', (n+1) >> 1))
            h('s_barrier')
            if n in (3, 8, 13): sh()
            if n == 3:
                h('s_cmp_lg_u32 s46, 0')
                h(f's_cbranch_scc1 H_NOCNT{vi}')
                h('s_lshr_b32 s50, s63, 4')
                h('s_lshl_b32 s50, s50, 4')
                h('s_mov_b32 s100, 1')
                h('s_atomic_add s100, s[54:55], s50')
                h.label(f'H_NOCNT{vi}')
            if n + 4 <= 17: em(h, dma_stage(n+4))
            if o.get('xs'):
                XA = (0,) if o['xs'] == '1' else (0, 1)
                XB = tuple(p for p in (0, 1, 2) if p not in XA)
                if (n & 1) and (n >> 1) + 3 <= 8: em(h, x_chunk((n >> 1) + 3, XA))
                if n >= 2 and not (n & 1) and (n >> 1) + 2 <= 8: em(h, x_chunk((n >> 1) + 2, XB))
            elif (n & 1) and (n >> 1) + 3 <= 8: em(h, x_chunk((n >> 1) + 3))
            if o.get('kall'):
                if n == kat:
                    for tile in range(3): em(h, kv_tile(0, tile))
            elif kat <= n < kat + 3: em(h, kv_tile(0, n - kat))
            if n >= 14: em(h, kv_tile(1, n - 14))
            if pf0 <= n <= int(o.get('pf1', 16)): em(h, pf[(n-pf0)*npf:(n-pf0+1)*npf])
        h.wait_vm(lambda t: t[0] == 'K')
        assert all(t[0] == 'V' for t in h.vm), h.vm
        h.vm = [('V', 0)]*12
        if vi + 1 < len(kats): h('s_branch HQ_END')
    h.label('HQ_END')
    sh()
    h('s_barrier')
    cload = f'buffer_load_dword v{CV}, v{ZA}, s[36:39], 0 offen{CO}'
    h(cload, ('C', 0))
    em(h, wo_half(0))
    h.wait_vm(lambda t: t[0] == 'V')
    sh()
    h('s_barrier')
    h('s_barrier')
    em(h, wo_half(1)); em(h, wo_half(2))
    h.wait_vm(lambda t: t == ('W', 0))
    if int(o.get('w3early', 0)): em(h, wo_half(3))
    sh()
    h('s_barrier')
    check_or_poll(h, 'HC', cload, CV, 16)
    if not int(o.get('w3early', 0)): em(h, wo_half(3))
    PI, PC = int(o.get('pi', 3)), int(o.get('pc', 4))
    h('s_lshl_b32 s24, s63, 7')
    h(f's_add_u32 s24, s24, {GOFF}')
    h('s_xor_b32 s25, s24, 128')
    h('s_lshl_b32 s26, s42, 4')
    h('s_add_u32 s26, s26, s62')
    h(f's_mul_i32 s26, s26, {36*128}')
    h('s_lshl_b32 s27, s46, 7')
    h('s_add_u32 s26, s26, s27')
    h(f's_add_u32 s26, s26, {FOFF}')
    h('s_lshl_b32 s27, s46, 2')
    h(f's_add_u32 s27, s27, {LFLAG}')
    h(f'v_mov_b32 v37, s27'); h('v_mov_b32 v38, 0')
    h('ds_write_b32 v37, v38')
    h('s_mov_b32 s100, 1')
    assert GOFF % 256 == 0
    def tail_setup():
        if o.get('rprio'): h(f's_setprio {o["rprio"]}')
        srd(h, 4, 40, 41, WS_BYTES)
        srd(h, 8, 52, 53, OUT_BYTES)
        h('s_lshl_b32 s57, s61, 9')
        h('s_add_u32 s57, s57, s26')
        h('s_load_dwordx8 s[32:39], s[40:41], s57 glc')
        red_setup(h, 61)
        for t in range(1, 8):
            h(f's_sub_u32 s58, s61, {t}')
            h('s_and_b32 s58, s58, 7')
            h(f's_mul_i32 s58, s58, {PSTR}')
            h('s_add_u32 s58, s58, s56')
            h(f's_add_u32 s{CB0+t}, s58, {t*6144}')
        h('s_mul_i32 s58, s46, 3072')
        h(f's_add_u32 s58, s58, {B_ if o.get("is3") else SL2[14]}')
        h('v_add_u32 v11, s58, v12')
    nxt = 4
    wq_pos = 8
    for u in range(LASTB+1):
        if u < LASTB:
            assert nxt > u+1
            h.wait_vm(lambda t: t == ('W', u+1) or (u == 6 and t[0] == 'O'))
        else:
            assert nxt == 18
            tail_setup()
            h.wait_vm(lambda t: t[0] == 'W')
        h('s_barrier')
        if u == GU:
            h('s_cmp_lg_u32 s46, 0')
            h('s_cbranch_scc1 H_NOG')
            h('s_atomic_add s100, s[40:41], s24')
            h.label('H_NOG')
        if u == FA_:
            h('s_lshl_b32 s27, s61, 2')
            h('s_add_u32 s27, s27, s26')
            h('s_add_u32 s27, s27, 4096')
            h('s_atomic_add s100, s[40:41], s27')
            for t in (1, 2, 3):
                h(f's_add_u32 s27, s61, {t}')
                h('s_and_b32 s27, s27, 7')
                h('s_lshl_b32 s27, s27, 9')
                h('s_add_u32 s27, s27, s26')
                h(f's_add_u32 s27, s27, {t*4}')
                h('s_atomic_add s100, s[40:41], s27')
        if u == PC:
            h('s_mov_b32 s59, 0')
            h.label('HP_POLL')
            h('s_waitcnt lgkmcnt(0)')
            h('s_cmp_ge_u32 s101, 1')
            h('s_cbranch_scc1 HP_GO')
            h('s_load_dword s101, s[40:41], s25 glc')
            h('s_add_u32 s59, s59, 1')
            h('s_cmp_lt_u32 s59, 0x40000')
            h('s_cbranch_scc1 HP_POLL')
            h.label('HP_GO')
            h('s_mul_i32 s48, s46, 6144')
            h(f's_add_u32 s48, s48, {B_}')
            h('s_mov_b32 m0, s48')
            for q in range(4): h(f'buffer_load_dwordx4 v{PD}, s[28:31], 0 offen offset:{q*1024}{CO} lds', ('O', q))
            h('s_add_u32 m0, s48, 4096')
            for q in range(2): h(f'buffer_load_dwordx4 v{PD}, s[28:31], s34 offen offset:{q*1024}{CO} lds', ('O', q))
        if u == PI: h('s_load_dword s101, s[40:41], s25 glc')
        for hh in IS2.get(u, []):
            assert hh == nxt
            em(h, wo_half(hh)); nxt += 1
    assert nxt == 18, nxt
    sh.on = ts
    sh()
    def t_a():
        h('s_and_b32 s16, s33, s34')
        h('s_and_b32 s16, s16, s35')
    spoll(h, 'HA', t_a)
    sh()
    h.vm = []
    for t in (1, 2, 3): ld6(h, 40 + 6*(t-1), f's{CB0+t}', ('R', t))
    def t_b(): h('s_and_b32 s16, s36, s37')
    def t_c(): h('s_and_b32 s16, s38, s39')
    spoll(h, 'HB', t_b)
    ld6(h, 60, f's{CB0+4}', ('R', 4)); ld6(h, 66, f's{CB0+5}', ('R', 5))
    t_c()
    h('s_cselect_b32 s98, 1, 0')
    h('s_cbranch_scc0 HNOC')
    ld6(h, 72, f's{CB0+6}', ('R', 6)); ld6(h, 78, f's{CB0+7}', ('R', 7))
    h.vm = h.vm[:-4]
    h.label('HNOC')
    h('s_load_dwordx8 s[32:39], s[40:41], s57 glc')
    for t in (1, 2, 3, 4, 5):
        h.wait_vm(lambda x: x == ('R', t))
        sum6(h, 16, [0, 40, 46, 52, 60, 66][t], t == 1)
    sh()
    h('s_cmp_lg_u32 s98, 0')
    h('s_cbranch_scc1 HOWN')
    h('s_waitcnt lgkmcnt(0)')
    t_c()
    h('s_cbranch_scc0 HOWN')
    ld6(h, 72, f's{CB0+6}', ('R', 6)); ld6(h, 78, f's{CB0+7}', ('R', 7))
    h('s_mov_b32 s98, 1')
    h.label('HOWN')
    h('s_mov_b32 s59, 0')
    h.label('HL_P')
    h('ds_read_b32 v38, v37')
    h('s_waitcnt lgkmcnt(0)')
    h('v_readfirstlane_b32 s58, v38')
    h('s_add_u32 s59, s59, 1')
    h('s_cmp_lg_u32 s58, 0')
    h('s_cbranch_scc1 HL_G')
    h('s_sleep 1')
    h('s_cmp_lt_u32 s59, 0x400000')
    h('s_cbranch_scc1 HL_P')
    h.label('HL_G')
    for mt in range(3): h(f'ds_read_b128 {vr(40+4*mt,4)}, v11 offset:{mt*1024}')
    h('s_waitcnt lgkmcnt(0)')
    for j in range(12): h(f'v_add_f32 v{16+j}, v{16+j}, v{40+j}')
    sh()
    h('s_cmp_lg_u32 s98, 0')
    h('s_cbranch_scc1 HSUMC')
    spoll(h, 'HC2', t_c)
    ld6(h, 72, f's{CB0+6}', ('R', 6)); ld6(h, 78, f's{CB0+7}', ('R', 7))
    h.label('HSUMC')
    sh()
    h('s_waitcnt vmcnt(2)')
    sum6(h, 16, 72)
    h('s_waitcnt vmcnt(0)'); h.vm = []
    sum6(h, 16, 78)
    sh()
    red_out(h, 16, o)
    sh.dump(40, 41, 0, 3)
    h.label('M_END')
    h('s_endpgm')
    a.label('CODE_END')
    print('main: compute inst', a.ninst, 'nops', a.nops_inserted, 'helper', h.ninst, 'stamps', st_.n, sh.n)
    return p.text() + h.text() + a.text()

DOC = """; ---------------------------------------------------------------------------------------------
; ---------------------------------------------------------------------------------------------
"""

if __name__ == '__main__':
    out = sys.argv[1]
    o = dict(x.split('=') if '=' in x else (x, 1) for x in sys.argv[2:])
    SLEEP = int(o.get('sleep', 1))
    if o.get('is3'):
        SL2 = [A_, B_, C_, D_] + [(A_, C_, D_)[i % 3] for i in range(14)]
        IS2 = {0: [4]}; IS2.update({u: [u+3] for u in range(2, 15)})
    if o.get('is4'):
        SL2 = [A_, B_, C_, D_, A_, C_, D_, A_, C_, D_, A_, C_, D_, B_, A_, C_, D_, B_]
        IS2 = {0: [4], 2: [5], 3: [6], 4: [7], 5: [8], 6: [9], 7: [10], 8: [11], 9: [12, 13], 10: [14], 11: [15], 12: [16], 13: [17]}
    SP0 = 32
    txt = build_file([dict(name=NAME + '_kernel', grid=256, block=512, lds=163840, body=gen_main(o), vgpr=256, sgpr=102, accum=256)])
    txt = txt.replace('.amdgcn_target', DOC + '.amdgcn_target', 1)
    open(out, 'w').write(txt)
```

```python
import sys, struct, math
sys.path.insert(0, 'gen')
from asmgen import Asm, interleave
from common import *
from v2 import Stamps, srd, em, f32bits, vr

X_BYTES = 16*48*576*2
W_BYTES = 576*4096*2
KV_A = 16*16*48*128*2
KV_B = 16*32*48*128*2
OUT_BYTES = 16*48*1152*2
PSTR = 50176
P_BYTES = 256*PSTR
OSOFF = P_BYTES
FOFF = OSOFF + 256*24576
GOFF = FOFF + 32*36*128
WS_BYTES = GOFF + 256*128
LFLAG = 24576
OOB = 0x7ffffff0

KREG = 0; XREG = 49152; QS = 98304
VT = [131072, 147456, 98304]
HS = [65536, 32768, 98304, 131072]
L, I, G, T0, T1, T2 = 1, 2, 3, 4, 5, 6
CO = ' sc0 sc1'
SLEEP = 1
A_, B_, C_, D_ = 65536, 32768, 98304, 131072
SL2 = [A_, B_, C_, D_, A_, C_, D_, A_, C_, D_, A_, C_, B_, D_, A_, C_, B_, D_]
IS2 = {0: [4], 2: [5], 3: [6], 4: [7], 5: [8], 6: [9], 7: [10], 8: [11, 12], 9: [13], 10: [14], 11: [15], 12: [16], 13: [17]}
def blk_of(u): return u if u < 8 else (u - 8 if u < 17 else 8)
CB0 = 84
SP0 = 64

def lane_ids(a):
    a(f'v_and_b32 v{L}, 63, v0')
    a(f'v_and_b32 v{I}, 15, v0')
    a(f'v_lshrrev_b32 v{G}, 4, v{L}')

def modn(a, d, t, n):
    a(f's_cmp_ge_u32 s{d}, {n}')
    a(f's_cselect_b32 s{t}, {n}, 0')
    a(f's_sub_u32 s{d}, s{d}, s{t}')

def poll(a, lbl, load, vreg, expect, keep_vm=False):
    vm = list(a.vm)
    a('s_mov_b32 s59, 0')
    a.label(f'{lbl}_POLL')
    a(load)
    a('s_waitcnt vmcnt(0)')
    a(f'v_cmp_gt_u32 vcc, {expect}, v{vreg}')
    a('s_add_u32 s59, s59, 1')
    a('s_nop 0')
    a(f's_cbranch_vccz {lbl}_GO')
    a(f's_sleep {SLEEP}')
    a('s_cmp_lt_u32 s59, 0x40000')
    a(f's_cbranch_scc1 {lbl}_POLL')
    a.label(f'{lbl}_GO')
    a.vm = vm if keep_vm else []

def check_or_poll(a, lbl, load, vreg, expect):
    a(f'v_cmp_gt_u32 vcc, {expect}, v{vreg}')
    a('s_nop 1')
    a(f's_cbranch_vccz {lbl}_GO')
    poll(a, lbl, load, vreg, expect, keep_vm=True)

def sum6(a, acc, r, first=False):
    for j in range(6):
        if first:
            a(f'v_lshlrev_b32 v{acc+2*j}, 16, v{r+j}')
            a(f'v_and_b32 v{acc+2*j+1}, 0xffff0000, v{r+j}')
        else:
            a(f'v_dot2c_f32_bf16 v{acc+2*j}, v{r+j}, v14')
            a(f'v_dot2c_f32_bf16 v{acc+2*j+1}, v{r+j}, v15')

def red_setup(a, c_sreg):
    a(f's_add_u32 s48, s{c_sreg}, s44')
    modn(a, 48, 58, 9)
    a('s_lshl_b32 s48, s48, 7')
    a('s_mul_i32 s58, s62, 110592')
    a('s_add_u32 s48, s48, s58')
    a('s_mul_i32 s58, s42, 1152')
    a('s_add_u32 s48, s48, s58')
    a('s_lshl_b32 s58, s46, 5')
    a('s_add_u32 s48, s48, s58')
    a(f'v_mul_u32_u24 v7, 2304, v{I}')
    a(f'v_lshl_add_u32 v7, v{G}, 3, v7')
    a('v_add_u32 v7, s48, v7')
    a(f'v_lshlrev_b32 v12, 4, v{L}')
    a(f'v_lshlrev_b32 v13, 3, v{L}')
    a('v_mov_b32 v14, 0x3f80'); a('v_mov_b32 v15, 0x3f800000')
    a('s_lshl_b32 s51, s42, 4')
    a('s_add_u32 s51, s51, s62')
    a(f's_mul_i32 s56, s51, {8*PSTR}')
    a('s_mul_i32 s58, s46, 1536')
    a('s_add_u32 s56, s56, s58')
    a('s_movk_i32 s49, 0x4800'); a('s_lshl_b32 s49, s49, 1'); a('s_lshl_b32 s50, s49, 1')

def ld6(a, r, so, tag):
    a(f'buffer_load_dwordx4 {vr(r,4)}, v12, s[4:7], {so} offen{CO}', tag)
    a(f'buffer_load_dwordx2 {vr(r+4,2)}, v13, s[4:7], {so} offen offset:1024{CO}', tag)

def red_out(a, acc, o):
    M = lambda k: (' ' + o[k].replace('+', ' ')) if k in o else ''
    a('s_nop 2')
    for j in range(6): a(f'v_cvt_pk_bf16_f32 v{acc+j}, v{acc+2*j}, v{acc+2*j+1}')
    for mt in range(3): a(f'buffer_store_dwordx2 {vr(acc+2*mt,2)}, v7, s[8:11], {["0","s49","s50"][mt]} offen{M("out")}')

def spoll(a, lbl, test):
    a('s_mov_b32 s59, 0')
    a.label(f'{lbl}_P')
    a('s_waitcnt lgkmcnt(0)')
    test()
    a(f's_cbranch_scc1 {lbl}_G')
    a('s_load_dwordx8 s[32:39], s[40:41], s57 glc')
    a('s_add_u32 s59, s59, 1')
    a('s_cmp_lt_u32 s59, 0x40000')
    a(f's_cbranch_scc1 {lbl}_P')
    a('s_waitcnt lgkmcnt(0)')
    a.label(f'{lbl}_G')

def gen_main(o):
    ts = o.get('ts'); tsmode = o.get('tsmode', 's_memrealtime')
    M = lambda k: (' ' + o[k].replace('+', ' ')) if k in o else ''
    p = Asm()
    p.label('KSTART')
    p('s_cmp_ge_u32 s2, 256')
    p('s_cbranch_scc1 M_END')
    if ts: p(f'{tsmode} s[64:65]')
    p('s_load_dwordx8 s[24:31], s[0:1], 0')
    p('s_load_dwordx8 s[32:39], s[0:1], 40')
    p('s_load_dwordx2 s[40:41], s[0:1], 96')
    p('s_load_dwordx2 s[20:21], s[0:1], 32')
    p('s_load_dwordx2 s[22:23], s[0:1], 72')
    p('s_load_dwordx4 s[52:55], s[0:1], 80')
    if o.get('cpf') == 'e':
        p(f'v_lshrrev_b32 v{T0}, 6, v0')
        p('s_getpc_b64 s[16:17]')
        p.label('PCREF')
        p(f'v_readfirstlane_b32 s45, v{T0}')
        p('s_cmp_lt_u32 s45, 4')
        p('s_cbranch_scc1 NOCPF')
        p('s_lshr_b32 s18, s2, 3')
        p('s_lshl_b32 s18, s18, 2')
        p('s_add_u32 s18, s18, s45')
        NL = int(o.get('cnl', 4))
        p(f's_mul_i32 s18, s18, {64*NL}')
        p(f's_sub_u32 s18, s18, {256*NL}')
        p(f's_min_u32 s18, s18, CODE_END - PCREF - {64*NL-60}')
        p('s_add_u32 s16, s16, s18'); p('s_addc_u32 s17, s17, 0')
        for i in range(NL): p(f's_load_dword s{96+i}, s[16:17], {i*64}')
        p.label('NOCPF')
    p('s_and_b32 s47, s2, 7')
    p('s_lshr_b32 s48, s2, 3')
    p('s_lshr_b32 s42, s47, 2')
    if o.get('bsw') == '1': p('s_xor_b32 s42, s42, 1')
    if o.get('bsw') == '2':
        p('s_and_b32 s42, s47, 1'); p('s_lshr_b32 s47, s47, 1')
    p('s_and_b32 s49, s47, 3')
    p('s_lshl_b32 s49, s49, 2')
    p('s_and_b32 s3, s48, 3')
    p('s_add_u32 s43, s49, s3')
    p('s_lshr_b32 s44, s48, 2')
    p('s_and_b32 s49, s43, 1')
    p('s_lshl_b32 s62, s44, 1')
    p('s_add_u32 s62, s62, s49')
    p('s_lshl_b32 s63, s42, 3')
    p('s_add_u32 s63, s63, s44')
    p('s_lshl_b32 s63, s63, 4')
    p('s_add_u32 s63, s63, s43')
    p(f'v_lshrrev_b32 v{T0}, 6, v0')
    lane_ids(p)
    p(f'v_readfirstlane_b32 s45, v{T0}')
    p('s_and_b32 s46, s45, 3')
    p('s_xor_b32 s45, s45, 4')
    p('s_cmp_lt_u32 s45, 4')
    p('s_cbranch_scc1 COMPUTE')

    a = Asm()
    st_ = Stamps(a, ts, tsmode); st_.n = 1
    fine = o.get('fine')
    if fine: st_.on = False
    a.label('COMPUTE')
    WQ = 8; XR = 24; KR = 26; VRD = 27; OXW = 28
    QA = 40; F0 = 136; SP = 224
    a('s_lshr_b32 s48, s46, 1')
    a('s_and_b32 s49, s46, 1')
    a('s_and_b32 s50, s43, 1')
    a('s_xor_b32 s57, s48, s50')
    a('s_lshl_b32 s50, s42, 4')
    a('s_add_u32 s50, s50, s62')
    a('s_lshr_b32 s56, s43, 1')
    a(f's_mul_i32 s51, s50, {36*128}')
    a('s_lshl_b32 s58, s46, 7')
    a('s_add_u32 s51, s51, s58')
    a(f's_add_u32 s61, s51, {FOFF}')
    a(f'v_add_u32 v{T0}, s56, v{L}')
    a(f'v_and_b32 v{T0}, 7, v{T0}')
    a(f'v_lshlrev_b32 v{T0}, 9, v{T0}')
    a(f'v_lshl_add_u32 v{T0}, v{L}, 2, v{T0}')
    a('s_lshl_b32 s58, s56, 2')
    a('s_add_u32 s58, s58, 4096')
    a(f'v_mov_b32 v{T1}, s58')
    a(f'v_cmp_eq_u32 vcc, 0, v{L}')
    a(f'v_cndmask_b32 v{T0}, v{T0}, v{T1}, vcc')
    a(f'v_add_u32 v{T0}, s61, v{T0}')
    a(f'v_mov_b32 v{T1}, {OOB:#x}')
    a(f'v_cmp_gt_u32 vcc, 8, v{L}')
    a(f'v_cndmask_b32 v31, v{T1}, v{T0}, vcc')
    a('s_lshl_b32 s51, s63, 7')
    a(f's_add_u32 s51, s51, {GOFF}')
    a('s_cmp_eq_u32 s46, 0')
    a(f's_cselect_b32 s51, s51, {OOB:#x}')
    a(f'v_mov_b32 v{T0}, s51')
    a(f'v_cmp_eq_u32 vcc, 8, v{L}')
    a(f'v_cndmask_b32 v{T2}, v31, v{T0}, vcc')
    a(f'v_mov_b32 v7, 0')
    a('s_waitcnt lgkmcnt(0)')
    srd(a, 4, 40, 41, WS_BYTES)
    a(f'buffer_store_dword v7, v{T2}, s[4:7], 0 offen{CO}')
    cpf = o.get('cpf')
    if cpf == 's':
        a('s_getpc_b64 s[16:17]')
        a.label('PCREF')
        a('s_sub_u32 s16, s16, PCREF - KSTART'); a('s_subb_u32 s17, s17, 0')
        if cpf == 's':
            a('s_lshr_b32 s18, s2, 3')
            a('s_lshl_b32 s18, s18, 2')
            a('s_add_u32 s18, s18, s46')
            a('s_mul_i32 s18, s18, 256')
            a('s_min_u32 s18, s18, CODE_END - KSTART - 196')
            a('s_add_u32 s16, s16, s18'); a('s_addc_u32 s17, s17, 0')
            for i in range(4): a(f's_load_dword s{96+i}, s[16:17], {i*64}')
        else:
            pass
    srd(a, 8, 52, 53, OUT_BYTES)
    a('s_lshl_b32 s50, s50, 3')
    a('s_add_u32 s50, s50, s56')
    a(f's_mul_i32 s58, s50, {PSTR}')
    a('s_mul_i32 s50, s46, 1536')
    a('s_add_u32 s58, s58, s50')
    a(f'v_lshlrev_b32 v{T0}, 3, v{L}')
    a(f'v_add_u32 v29, s58, v{T0}')
    a(f'v_lshlrev_b32 v{T0}, 4, v{L}')
    a(f'v_add_u32 v30, s58, v{T0}')
    a('s_mul_i32 s50, s49, 12288')
    if o.get('loc'):
        a('s_lshl_b32 s51, s42, 4')
        a('s_add_u32 s51, s51, s62')
        a('s_xor_b32 s51, s51, 1')
        a('s_lshl_b32 s51, s51, 3')
        a('s_add_u32 s51, s51, s56')
        a(f's_mul_i32 s51, s51, {NBLK*1024}')
    else:
        a('s_mul_i32 s51, s63, 24576')
        a(f's_add_u32 s51, s51, {OSOFF}')
    a('s_add_u32 s51, s51, s50')
    a('s_cmp_eq_u32 s57, 1')
    a(f's_cselect_b32 s51, s51, {OOB - 4096:#x}')
    a(f'v_add_u32 v{OXW}, s50, v{T0}')
    a(f'v_add_u32 v32, s51, v{T0}')
    a(f'v_mov_b32 v33, v{T0}')
    a('s_lshl_b32 s50, s49, 13')
    a(f's_add_u32 s50, s50, {QS}')
    a(f'v_lshlrev_b32 v{T0}, 11, v{G}')
    a(f'v_add_u32 v{T0}, s50, v{T0}')
    a(f'v_lshrrev_b32 v{T2}, 2, v{I}')
    a(f'v_lshl_add_u32 v{T0}, v{T2}, 8, v{T0}')
    a(f'v_and_b32 v{T1}, 1, v{G}')
    a(f'v_lshl_add_u32 v{T1}, v{T1}, 2, v{T2}')
    a(f'v_and_b32 v{T2}, 3, v{I}')
    a(f'v_lshl_add_u32 v{T0}, v{T2}, 3, v{T0}')
    for t in range(8):
        a(f'v_xor_b32 v{T2}, {t}, v{T1}')
        a(f'v_lshl_add_u32 v{WQ+t}, v{T2}, 5, v{T0}')
    a('s_mul_i32 s50, s48, 6144')
    a(f's_add_u32 s50, s50, {XREG}')
    a(f'v_lshrrev_b32 v{T0}, 1, v{I}')
    a(f'v_xor_b32 v{T0}, v{T0}, v{G}')
    a(f'v_lshlrev_b32 v{T0}, 4, v{T0}')
    a(f'v_lshlrev_b32 v{T1}, 7, v{I}')
    a(f'v_add_u32 v{T1}, s50, v{T1}')
    a(f'v_add_u32 v{XR}, v{T1}, v{T0}')
    a(f'v_xor_b32 v{T0}, 64, v{T0}')
    a(f'v_add_u32 v{XR+1}, v{T1}, v{T0}')
    a('s_lshl_b32 s50, s46, 12')
    a(f'v_lshrrev_b32 v{T0}, 1, v{G}')
    a(f'v_xor_b32 v{T0}, v{T0}, v{I}')
    a(f'v_lshlrev_b32 v{T0}, 4, v{T0}')
    a(f'v_lshl_add_u32 v{T0}, v{I}, 8, v{T0}')
    a(f'v_and_b32 v{T1}, 1, v{G}')
    a(f'v_lshl_add_u32 v{T0}, v{T1}, 3, v{T0}')
    a(f'v_add_u32 v{KR}, s50, v{T0}')
    for j in range(8): a(f'v_xor_b32 v{WQ+8+j}, {j*32}, v{KR}')
    a(f's_add_u32 s50, s50, {QS}')
    a(f'v_lshrrev_b32 v{T0}, 2, v{L}')
    a(f'v_and_b32 v{T1}, 7, v{T0}')
    a(f'v_lshlrev_b32 v{T1}, 5, v{T1}')
    a(f'v_lshl_add_u32 v{T0}, v{T0}, 8, v{T1}')
    a(f'v_and_b32 v{T1}, 3, v{I}')
    a(f'v_lshl_add_u32 v{T0}, v{T1}, 3, v{T0}')
    a(f'v_add_u32 v{VRD}, s50, v{T0}')
    AR, PO, FL, ONE, OX0, GF = 4, 5, 6, 7, 2, 3
    a(f'v_lshrrev_b32 v{T0}, 2, v{L}')
    a(f'v_lshlrev_b32 v{T1}, 7, v{T0}')
    a(f'v_and_b32 v{T2}, 3, v{I}')
    a(f'v_lshl_add_u32 v{T1}, v{T2}, 3, v{T1}')
    a(f'v_lshrrev_b32 v{T0}, 1, v{T0}')
    a(f'v_and_b32 v{T0}, 3, v{T0}')
    a(f'v_xor_b32 v{T0}, s46, v{T0}')
    a(f'v_lshl_add_u32 v{T0}, v{T0}, 5, v{T1}')
    a(f'v_add_u32 v{AR}, {HS[0]}, v{T0}')
    a(f'v_mov_b32 v{PO}, v30'); a(f'v_mov_b32 v{FL}, v31'); a(f'v_mov_b32 v{GF}, v32'); a(f'v_mov_b32 v{OX0}, v33'); a(f'v_mov_b32 v{ONE}, 1'); a('v_mov_b32 v1, v29')
    if o.get('tlb'):
        a('s_cmp_eq_u32 s42, 0')
        a('s_cselect_b64 s[26:27], s[26:27], s[34:35]')
        a('s_cselect_b64 s[28:29], s[28:29], s[36:37]')
        a('s_cselect_b64 s[32:33], s[20:21], s[22:23]')
        a(f's_mov_b32 s59, {KV_B}')
        a(f's_cselect_b32 s59, {KV_A}, s59')
        a('s_cselect_b32 s58, 4, 5')
        a('s_lshl_b32 s50, s43, 1')
        a('s_add_u32 s50, s50, s49')
        a('s_cmp_eq_u32 s42, 0')
        a('s_cselect_b32 s50, s43, s50')
        a('s_lshl_b32 s51, s44, 1')
        a('s_add_u32 s51, s51, s48')
        a('s_lshl_b32 s51, s51, s58')
        a('s_add_u32 s51, s51, s50')
        a('s_mul_i32 s51, s51, 12288')
        a('v_mov_b32 v34, 0')
        srd(a, 12, 26, 27, 's59')
        a('buffer_load_dword v35, v34, s[12:15], s51 offen')
        srd(a, 16, 28, 29, 's59')
        a('buffer_load_dword v36, v34, s[16:19], s51 offen')
        srd(a, 20, 32, 33, W_BYTES)
        a('s_and_b32 s50, s43, 14')
        a('s_lshl_b32 s50, s50, 1')
        a('s_add_u32 s50, s50, s46')
        a(f's_mul_i32 s50, s50, {128*1152}')
        a('buffer_load_dword v37, v34, s[20:23], s50 offen')
        a('v_readfirstlane_b32 s50, v30')
        a(f's_mul_i32 s51, s46, {14*8192}')
        a('s_add_u32 s50, s50, s51')
        a('buffer_load_dword v38, v34, s[4:7], s50 offen')
        a('s_mul_i32 s50, s63, 24576')
        a(f's_add_u32 s50, s50, {OSOFF}')
        a('buffer_load_dword v39, v34, s[4:7], s50 offen')
        a('s_mul_i32 s50, s62, 110592')
        a('buffer_load_dword v29, v34, s[8:11], s50 offen')
    a(f's_mul_i32 s24, s46, {3*1024}')
    a(f's_lshl_b32 s25, s46, 11')
    a(f's_add_u32 s25, s25, {48*1024}')
    a('s_movk_i32 s27, 4096'); a('s_movk_i32 s28, 8192')
    cscale = math.log2(math.e) / math.sqrt(128.0)
    a(f's_mov_b32 s60, {f32bits(cscale):#x}')

    def FA(s, t): return F0 + s*44 + 12 + t*4
    def FB(s, mt): return F0 + s*44 + mt*4
    def frag_reads(n):
        s = n % 2
        it = []
        for mt in range(3):
            it.append(f'ds_read_b128 {vr(FB(s,mt),4)}, v{XR+(n&1)} offset:{((n>>1)%3)*12288+mt*2048}')
        for t in range(8):
            for half in range(2):
                it.append(f'ds_read_b64_tr_b16 {vr(FA(s,t)+2*half,2)}, v{WQ+t} offset:{(n%4)*16384+half*1024}')
        return it
    def mfmas(n):
        s = n % 2; it = []
        for t in range(8):
            for mt in range(3):
                d = vr(QA+(t*3+mt)*4, 4)
                c = '0' if n == 0 else d
                it.append(f'v_mfma_f32_16x16x32_bf16 {d}, {vr(FA(s,t),4)}, {vr(FB(s,mt),4)}, {c}')
        return it
    set0 = [F0 + 4*i for i in range(11)]
    set1 = [F0 + 44 + 4*i for i in range(11)]
    def tile(t, mt): return QA + (t*3+mt)*4
    KFt = set0 + [SP]
    PB = SP + 8; TM = SP + 26
    odd = [tile(t, mt) for t in (1, 3, 5, 7) for mt in range(3)]
    VF32t = odd[:8]; VF16t = [odd[8 + (t >> 1)] + 2*(t & 1) for t in range(8)]
    SA = F0 + 44
    QX = [F0 + 80]
    def kf(kt, s): return KFt[kt*4+s]
    def v_addrs(): return [f'v_xor_b32 v{WQ+t}, {t*32}, v{VRD}' for t in range(8)]
    def k_reads():
        it = []
        for s in range(4):
            for kt in range(3):
                r = kf(kt, s)
                it.append(f'ds_read_b64 {vr(r,2)}, v{WQ+8+2*s} offset:{kt*16384}')
                it.append(f'ds_read_b64 {vr(r+2,2)}, v{WQ+8+2*s+1} offset:{kt*16384}')
        return it
    def v_reads():
        it = []
        for t in range(8):
            it.append(f'ds_read_b64_tr_b16 {vr(VF32t[t],2)}, v{WQ+t} offset:{VT[0]-QS}')
            it.append(f'ds_read_b64_tr_b16 {vr(VF32t[t]+2,2)}, v{WQ+t} offset:{VT[1]-QS}')
        for t in range(8):
            it.append(f'ds_read_b64_tr_b16 {vr(VF16t[t],2)}, v{WQ+t} offset:{VT[2]-QS}')
        return it
    a(f's_setprio {o.get("cprio", 2)}')
    a('s_barrier')
    st_()
    em(a, frag_reads(0))
    for n in range(17):
        a.comment(f'--- kstep {n}')
        a('s_waitcnt lgkmcnt(0)' if n != 3 else 's_waitcnt vmcnt(0) lgkmcnt(0)')
        if n == 3: a.vm = []
        a('s_barrier')
        if n in (3, 8, 13): st_()
        interleave(a, mfmas(n), frag_reads(n+1), ratio=1.0)
    def qb(s, qt): return tile(2*s, qt)
    def cvt_q(qt):
        it = []
        for s in range(4):
            for hh in range(2):
                d = QA + ((2*s+hh)*3+qt)*4
                it.append(f'v_cvt_pk_bf16_f32 v{qb(s,qt)+2*hh}, v{d}, v{d+1}')
                it.append(f'v_cvt_pk_bf16_f32 v{qb(s,qt)+2*hh+1}, v{d+2}, v{d+3}')
        return it
    def sa(kt, qt): return SA + (qt*3+kt)*4
    def s_mfma(qt):
        it = []
        for s in range(4):
            for kt in range(3):
                d = vr(sa(kt,qt), 4)
                c = '0' if s == 0 else d
                it.append(f'v_mfma_f32_16x16x32_bf16 {d}, {vr(kf(kt,s),4)}, {vr(qb(s,qt),4)}, {c}')
        return it
    def softmax(qt):
        b = sa(0, qt); m = TM + 2*qt; t = m + 1
        it = []
        it.append(f'v_max3_f32 v{m}, v{b}, v{b+1}, v{b+2}')
        it.append(f'v_max3_f32 v{t}, v{b+3}, v{b+4}, v{b+5}')
        it.append(f'v_max3_f32 v{m}, v{m}, v{b+6}, v{b+7}')
        it.append(f'v_max3_f32 v{t}, v{t}, v{b+8}, v{b+9}')
        it.append(f'v_max3_f32 v{m}, v{m}, v{b+10}, v{b+11}')
        it.append(f'v_max_f32 v{m}, v{m}, v{t}')
        for sw in ('v_permlane32_swap_b32', 'v_permlane16_swap_b32'):
            it.append(f'v_mov_b32 v{t}, v{m}')
            it.append(f'{sw} v{m}, v{t}')
            it.append(f'v_max_f32 v{m}, v{m}, v{t}')
        it.append(f'v_mul_f32 v{m}, s60, v{m}')
        pk = o.get('pk')
        if pk:
            for j in range(0, 12, 2): it.append(f'v_pk_fma_f32 {vr(b+j,2)}, {vr(b+j,2)}, s[60:61], {vr(m,2)} op_sel_hi:[1,0,0] neg_lo:[0,0,1] neg_hi:[0,0,1]')
        else:
            for j in range(12): it.append(f'v_fma_f32 v{b+j}, v{b+j}, s60, -v{m}')
        for j in range(12): it.append(f'v_exp_f32 v{b+j}, v{b+j}')
        if pk:
            it.append(f'v_pk_add_f32 {vr(m,2)}, {vr(b,2)}, {vr(b+2,2)}')
            for j in range(4, 12, 2): it.append(f'v_pk_add_f32 {vr(m,2)}, {vr(m,2)}, {vr(b+j,2)}')
        else:
            it.append(f'v_add_f32 v{m}, v{b}, v{b+1}')
            it.append(f'v_add_f32 v{t}, v{b+2}, v{b+3}')
            for j in range(4, 12, 2):
                it.append(f'v_add_f32 v{m}, v{m}, v{b+j}')
                it.append(f'v_add_f32 v{t}, v{t}, v{b+j+1}')
        it.append(f'v_add_f32 v{m}, v{m}, v{t}')
        for sw in ('v_permlane32_swap_b32', 'v_permlane16_swap_b32'):
            it.append(f'v_mov_b32 v{t}, v{m}')
            it.append(f'{sw} v{m}, v{t}')
            it.append(f'v_add_f32 v{m}, v{m}, v{t}')
        it.append(f'v_rcp_f32 v{m}, v{m}')
        if pk:
            for j in range(0, 12, 2): it.append(f'v_pk_mul_f32 {vr(b+j,2)}, {vr(b+j,2)}, {vr(m,2)} op_sel_hi:[1,0]')
        else:
            for j in range(12): it.append(f'v_mul_f32 v{b+j}, v{b+j}, v{m}')
        for j in range(6): it.append(f'v_cvt_pk_bf16_f32 v{PB+qt*6+j}, v{b+2*j}, v{b+2*j+1}')
        return it
    X0 = KFt[:8]
    X1 = KFt[8:12] + [sa(0,0), sa(1,0), sa(2,0)] + QX[:1]
    def oa(t, qt): return (X0, X1, X0)[qt][t]
    def pv_mfma(qt):
        it = []; pp = PB + qt*6
        for t in range(8):
            d = vr(oa(t,qt), 4)
            it.append(f'v_mfma_f32_16x16x32_bf16 {d}, {vr(VF32t[t],4)}, {vr(pp,4)}, 0')
        for t in range(8):
            d = vr(oa(t,qt), 4)
            it.append(f'v_mfma_f32_16x16x16_bf16 {d}, {vr(VF16t[t],2)}, {vr(pp+4,2)}, {d}')
        return it
    def o_pack(qt, giver):
        it = []
        for s in range(4):
            r = qb(s, qt)
            for hh in range(2):
                d = oa(2*s+hh, qt)
                it.append(f'v_cvt_pk_bf16_f32 v{r+2*hh}, v{d}, v{d+1}')
                it.append(f'v_cvt_pk_bf16_f32 v{r+2*hh+1}, v{d+2}, v{d+3}')
            if not giver: it.append(f'ds_write_b128 v{OXW}, {vr(r,4)} offset:{(qt*4+s)*1024}')
        return it
    def o_give():
        return [(f'buffer_store_dwordx4 {vr(qb(s,qt),4)}, v{GF}, s[4:7], {["0","s27","s28"][qt]} offen offset:{s*1024}{"" if o.get("loc") == "2" else CO}', ('G', 0)) for qt in range(3) for s in range(4)]
    def zipl(*ls):
        out = []; n = max(len(x) for x in ls)
        for i in range(n):
            for x in ls:
                if i < len(x): out.append(x[i])
        return out
    a('s_waitcnt lgkmcnt(0)')
    a('s_barrier')
    st_()
    m17 = mfmas(17)
    m17 = [m17[t*3+mt] for mt in range(3) for t in range(8)]
    kr = k_reads()
    interleave(a, m17[:12], zipl(kr[:12], v_addrs()), ratio=2)
    interleave(a, m17[12:24], zipl(kr[12:], cvt_q(0)[:12]), ratio=2)
    em(a, cvt_q(0)[12:])
    sm0, sm1, sm2 = softmax(0), softmax(1), softmax(2)
    a('s_waitcnt lgkmcnt(6)')
    s0 = s_mfma(0)
    interleave(a, s0[:9], cvt_q(1), ratio=2)
    a('s_waitcnt lgkmcnt(0)')
    interleave(a, s0[9:] + s_mfma(1)[:5], cvt_q(2), ratio=2)
    NB = int(o.get('smb', 40))
    SL = len(sm0); C1 = int(o.get('c1', 40 if SL > 60 else 38)); C2 = SL - C1
    seq = sm0[:C1] + zipl(sm0[C1:], sm1[:C2]) + zipl(sm1[C2:], sm2[:C1])
    interleave(a, s_mfma(1)[5:] + s_mfma(2), seq[:NB], ratio=2)
    st_()
    a('s_barrier')
    st_()
    rest = seq[NB:]
    n1 = max(C1 + 2*C2 - NB, min(48, len(rest) - 32), 0)
    interleave(a, v_reads(), rest[:min(48, n1)], ratio=2)
    a('s_waitcnt lgkmcnt(0)')
    a('s_barrier')
    em(a, rest[min(48, n1):n1])
    interleave(a, pv_mfma(0), rest[n1:], ratio=2)
    a('s_cmp_eq_u32 s57, 1')
    a('s_cbranch_scc1 GIVER')
    hist = list(a.hist)
    for giver in (0, 1):
        if giver:
            a.label('GIVER'); a.hist = list(hist)
        z = zipl(sm2[C1:], o_pack(0, giver))
        interleave(a, pv_mfma(1), z, ratio=2)
        GS = int(o.get('gs', 0))
        og = o_give()
        interleave(a, pv_mfma(2), (og[:min(GS,4)] if giver else []) + o_pack(1, giver), ratio=1.25)
        if giver: em(a, og[4:GS])
        em(a, o_pack(2, giver))
        if not giver:
            a('s_waitcnt lgkmcnt(0)')
            a('s_branch ATT_END')
    a.label('ATT_END')
    st_()
    a('s_barrier')
    if fine: st_.on = True
    st_()
    AFR = 8; AD = 5; LA = 4
    ACCG = [28, 52, 76, 100, 124, 136, 148, 40, 64]
    BF = 160
    def bf(k, mt): return BF + (k*3+mt)*4
    def acc(r, mt): return ACCG[r] + mt*4
    NK = 144
    def a_reads(n):
        k = n % 8
        d = AFR + (n % AD)*4
        return [f'ds_read_b64_tr_b16 {vr(d+2*half,2)}, v{AR} offset:{k*4096+half*2048}' for half in range(2)]
    def b_reads(k, base=0):
        return [f'ds_read_b128 {vr(bf(k,mt),4)}, v{OX0} offset:{base+(k>>2)*12288+(mt*4+(k&3))*1024}' for mt in range(3)]
    def o_mfmas(n):
        u, k = n // 8, n % 8
        it = []
        for mt in range(3):
            d = vr(acc(blk_of(u), mt), 4)
            c = '0' if (k == 0 and (u < 8 or u == 16)) else d
            it.append(f'v_mfma_f32_16x16x32_bf16 {d}, {vr(AFR+(n%AD)*4,4)}, {vr(bf(k,mt),4)}, {c}')
        return it
    def p_pack(r):
        it = []
        for mt in range(3):
            d = acc(r, mt); q = acc(r, 0) + 2*mt
            it.append(f'v_cvt_pk_bf16_f32 v{q}, v{d}, v{d+1}')
            it.append(f'v_cvt_pk_bf16_f32 v{q+1}, v{d+2}, v{d+3}')
        return it
    def b_store(t):
        return [f's_mov_b32 s26, {t*6144}',
                (f'buffer_store_dwordx4 {vr(acc(t,0),4)}, v{PO}, s[4:7], s26 offen{CO}', ('P', t)),
                (f'buffer_store_dwordx2 {vr(acc(t,0)+4,2)}, v1, s[4:7], s26 offen offset:1024{CO}', ('P', t))]
    def flag(mask, upto):
        def f():
            a.wait_vm(lambda t: t[0] == 'P' and t[1] <= upto)
            a(f's_mov_b64 exec, {mask:#x}')
            a(f'buffer_store_dword v{ONE}, v{FL}, s[4:7], 0 offen{CO}', ('F', upto))
            a('s_mov_b64 exec, -1')
        return f
    def gflag():
        a('s_waitcnt vmcnt(0)'); a.vm = []
        a(f'buffer_store_dword v{ONE}, v{GF}, s[4:7], 0 offen{CO}', ('F', 9))
    lq = []
    def ds(x, tag):
        a(x); lq.append(tag)
    def need(tags):
        idx = max((i for i, t in enumerate(lq) if t in tags), default=-1)
        if idx < 0: return
        n = len(lq) - 1 - idx
        a(f's_waitcnt lgkmcnt({min(n, 15)})')
        del lq[:idx+1]
    for n in range(LA):
        for x in a_reads(n): ds(x, ('A', n))
        for x in b_reads(n): ds(x, ('B', n))
    LASTB = int(o.get('lastb', 15))
    ER = 1
    assert LASTB >= 14
    GU = int(o.get('gu', 1))
    SA_, SB_ = int(o.get('sa', 13)), int(o.get('sb', 15))
    FA_, FB_ = int(o.get('fa', 14)), int(o.get('fb', 16))
    STU = [int(x) for x in str(o.get('stu', '13,13,13,13,15,15,16,17')).split(',')]
    assert all(su >= t + 9 for t, su in enumerate(STU)) and FA_ <= LASTB
    for u in range(18):
        a.comment(f'--- half-round {u}')
        oth = {g: [] for g in range(24)}
        g = 3
        if 9 <= u <= 16:
            for x in p_pack(u-9):
                oth[g].append(x); g += 1
        if u == FB_: oth[1].append(flag(0x30, 5))
        if u == 17 and o.get('f6'): oth[int(o['f6'])].append(flag(0x40, 6))
        if u == 0:
            for j, x in enumerate(o_give()[GS:]): oth[j].append(x)
        st = []
        for t, su in enumerate(STU):
            if su == u: st += b_store(t)
        for x in st:
            oth[g].append(x)
            if not isinstance(x, str): g += 1
        for k in range(8):
            n = u*8 + k
            need({('A', n), ('B', n)} | ({('A', n+3)} if (k == 4 and u <= LASTB and ER) else set()))
            if k == 4 and u < 17:
                if u <= LASTB:
                    if u == GU: a('s_waitcnt vmcnt(0)'); a.vm = []
                    if u == FA_: a.wait_vm(lambda t: t[0] == 'P' and t[1] <= 3)
                    a('s_barrier')
                    if (u in (3, 9) and not fine) or (fine and u >= 2): st_()
                dlt = SL2[u+1] - SL2[u]
                a(f'v_add_u32 v{AR}, {dlt & 0xffffffff:#x}, v{AR}')
            rd = []
            if n + LA < NK: rd += [(x, ('A', n+LA)) for x in a_reads(n+LA)]
            if n + LA < 8: rd += [(x, ('B', n+LA)) for x in b_reads(n+LA)]
            if 57 <= n <= 64: rd += [(x, ('B', n+7)) for x in b_reads(n-57, B_)]
            if 129 <= n <= 136: rd += [(x, ('B', n+7)) for x in b_reads(n-129)]
            for i, m in enumerate(o_mfmas(n)):
                a(m)
                take = rd[:2] if len(rd) > 3 - i else rd[:1]
                rd = rd[len(take):]
                for x, tg in take: ds(x, tg)
                em(a, oth[k*3+i])
            assert not rd
    a('s_mul_i32 s50, s46, 3072')
    a(f's_add_u32 s50, s50, {B_ if o.get("is3") else SL2[14]}')
    a(f'v_add_u32 v{AR}, s50, v{OX0}')
    a('s_lshl_b32 s50, s46, 2')
    a(f's_add_u32 s50, s50, {LFLAG}')
    a(f'v_mov_b32 v{GF}, s50')
    for mt in range(3): a(f'ds_write_b128 v{AR}, {vr(acc(8,mt),4)} offset:{mt*1024}')
    a(f'ds_write_b32 v{GF}, v{ONE}')
    st_()
    a('s_lshr_b32 s47, s43, 1')
    a('s_lshl_b32 s48, s46, 1')
    a('s_cmp_eq_u32 s47, s48')
    a('s_cbranch_scc1 C_DUTY')
    vm_ = list(a.vm)
    flag(0x80 if o.get('f6') else 0xc0, 7)()
    a('s_branch C_DONE')
    a.label('C_DUTY')
    a.vm = vm_
    a('s_add_u32 s57, s61, 4096')
    a('s_load_dwordx8 s[32:39], s[40:41], s57 glc')
    a(f'v_mov_b32 v8, v{ONE}')
    ONE = 8
    lane_ids(a)
    a('s_mov_b32 s47, 8')
    red_setup(a, 47)
    flag(0x80 if o.get('f6') else 0xc0, 7)()
    def t_all():
        a('s_and_b64 s[16:17], s[32:33], s[34:35]')
        a('s_and_b64 s[18:19], s[36:37], s[38:39]')
        a('s_and_b64 s[16:17], s[16:17], s[18:19]')
        a('s_and_b32 s16, s16, s17')
    spoll(a, 'CS', t_all)
    for pq in range(8):
        if pq: a(f's_add_u32 s56, s56, {PSTR}')
        ld6(a, 32 + 6*pq, 's56', ('R', pq))
    for pq in range(8):
        a.wait_vm(lambda t: t == ('R', pq))
        sum6(a, 16, 32 + 6*pq, pq == 0)
    red_out(a, 16, o)
    a.label('C_DONE')
    st_.dump(40, 41, 0, 3)
    a('s_endpgm')

    h = Asm()
    sh = Stamps(h, ts, tsmode); sh.n = 1; sh.on = False
    h.label('HELPER')
    WO = 8; XO = 12; KO = 16; VO = 20; OW = 24; AT = 30; PV_ = 32; CV = 33; PA = 34; PD = 35; ZA = 36
    h('s_lshl_b32 s47, s3, 1')
    h('s_add_u32 s47, s47, s44')
    modn(h, 47, 48, 9)
    h('s_mov_b32 s60, s47')
    h('s_and_b32 s48, s46, 1')
    h('s_lshl_b32 s48, s48, 17')
    h('s_lshl_b32 s49, s43, 1')
    h('s_lshr_b32 s50, s46, 1')
    h('s_add_u32 s49, s49, s50')
    h('s_lshl_b32 s49, s49, 8')
    h('s_add_u32 s48, s48, s49')
    h(f'v_lshlrev_b32 v{T0}, 13, v{G}')
    h(f'v_add_u32 v{T0}, s48, v{T0}')
    h(f'v_lshlrev_b32 v{T1}, 1, v{G}')
    h(f'v_xor_b32 v{T1}, v{T1}, v{I}')
    h(f'v_lshlrev_b32 v{T1}, 4, v{T1}')
    h(f'v_xor_b32 v{T2}, 128, v{T1}')
    h(f'v_add_u32 v{T1}, v{T0}, v{T1}')
    h(f'v_add_u32 v{T2}, v{T0}, v{T2}')
    for q in range(4):
        h(f'v_add_u32 v{WO+q}, {4*q*8192 - q*1024}, v{T1 if (q >> 1) == 0 else T2}')
    h('s_mul_i32 s48, s44, 96')
    h('s_mul_i32 s49, s46, 24')
    h('s_add_u32 s48, s48, s49')
    h('s_mul_i32 s48, s48, 1152')
    h(f'v_lshrrev_b32 v{T0}, 3, v{L}')
    h(f'v_mul_u32_u24 v{T0}, 1152, v{T0}')
    h(f'v_add_u32 v7, s48, v{T0}')
    h(f'v_and_b32 v{T1}, 7, v{L}')
    h(f'v_xor_b32 v{T1}, v{T1}, v{G}')
    h('s_and_b32 s49, s46, 1')
    h('s_lshl_b32 s49, s49, 2')
    h(f'v_xor_b32 v{T1}, s49, v{T1}')
    h(f'v_lshlrev_b32 v{T1}, 4, v{T1}')
    h(f'v_xor_b32 v{T2}, 64, v{T1}')
    h(f'v_add_u32 v{T1}, v7, v{T1}')
    h(f'v_add_u32 v{T2}, v7, v{T2}')
    for pp in range(3):
        h(f'v_add_u32 v{XO+pp}, {pp*9216 - pp*1024}, v{T1 if pp % 2 == 0 else T2}')
    h('s_lshl_b32 s56, s46, 12')
    h('s_lshl_b32 s57, s46, 13')
    h('s_mul_i32 s58, s46, 3072')
    h('s_waitcnt lgkmcnt(0)')
    h('s_cmp_eq_u32 s42, 0')
    h('s_cselect_b64 s[24:25], s[24:25], s[32:33]')
    h('s_cselect_b64 s[26:27], s[26:27], s[34:35]')
    h('s_cselect_b64 s[28:29], s[28:29], s[36:37]')
    h('s_cselect_b64 s[30:31], s[30:31], s[38:39]')
    h('s_cselect_b64 s[32:33], s[20:21], s[22:23]')
    h(f's_mov_b32 s59, {KV_B}')
    h(f's_cselect_b32 s59, {KV_A}, s59')
    srd(h, 4, 24, 25, X_BYTES)
    srd(h, 8, 30, 31, W_BYTES)
    sh()
    def x_chunk(c, pieces=(0, 1, 2)):
        it = []
        it.append('s_lshl_b32 s48, s60, 7')
        it.append(f's_add_u32 m0, s58, {XREG + (c % 3)*12288}')
        for pp in pieces:
            it.append((f'buffer_load_dwordx4 v{XO+pp}, s[4:7], s48 offen offset:{pp*1024}{M("x")} lds', ('X', c)))
        if 2 in pieces:
            it.append('s_add_u32 s60, s60, 1')
            it.append('s_cmp_eq_u32 s60, 9')
            it.append('s_cselect_b32 s60, 0, s60')
        return it
    def dma_stage(n):
        it = []
        it.append('s_lshl_b32 s49, s47, 19')
        if n & 1: it.append(f's_add_u32 s49, s49, {32*8192}')
        it.append(f's_add_u32 m0, s56, {QS + (n % 4)*16384}')
        for q in range(4):
            it.append((f'buffer_load_dwordx4 v{WO+q}, s[8:11], s49 offen offset:{q*1024}{M("wq")} lds', ('S', n)))
        if n & 1:
            it.append('s_add_u32 s47, s47, 1')
            it.append('s_cmp_eq_u32 s47, 9')
            it.append('s_cselect_b32 s47, 0, s47')
        return it
    em(h, x_chunk(0)); em(h, dma_stage(0)); em(h, dma_stage(1))
    srd(h, 12, 26, 27, 's59')
    srd(h, 16, 28, 29, 's59')
    srd(h, 20, 32, 33, W_BYTES)
    srd(h, 36, 54, 55, 256)
    srd(h, 28, 40, 41, WS_BYTES)
    h('s_lshl_b32 s51, s44, 1')
    h('s_lshr_b32 s50, s46, 1')
    h('s_add_u32 s51, s51, s50')
    h('s_lshl_b32 s50, s43, 1')
    h('s_and_b32 s59, s46, 1')
    h('s_add_u32 s50, s50, s59')
    h('s_cmp_eq_u32 s42, 0')
    h('s_cselect_b32 s59, 4, 5')
    h('s_cselect_b32 s50, s43, s50')
    h('s_lshl_b32 s51, s51, s59')
    h('s_add_u32 s51, s51, s50')
    h('s_mul_i32 s51, s51, 12288')
    h(f'v_lshlrev_b32 v7, 8, v{G}')
    h(f'v_add_u32 v7, s51, v7')
    h(f'v_xor_b32 v{T1}, v{I}, v{G}')
    h(f'v_lshlrev_b32 v{T1}, 4, v{T1}')
    for q in range(4):
        h(f'v_xor_b32 v{T2}, {q*64}, v{T1}')
        h(f'v_add_u32 v{KO+q}, v7, v{T2}')
    h(f'v_lshlrev_b32 v{T1}, 1, v{G}')
    h(f'v_xor_b32 v{T1}, v{I}, v{T1}')
    h(f'v_lshlrev_b32 v{T1}, 4, v{T1}')
    h(f'v_add_u32 v{VO}, v7, v{T1}')
    h(f'v_xor_b32 v{T1}, 128, v{T1}')
    h(f'v_add_u32 v{VO+1}, v7, v{T1}')
    h(f'v_cmp_eq_u32 vcc, 256, v0')
    h('s_lshr_b32 s50, s63, 4')
    h('s_lshl_b32 s50, s50, 4')
    h(f'v_mov_b32 v{ZA}, s50')
    h(f'v_mov_b32 v{T2}, {OOB:#x}')
    h(f'v_cndmask_b32 v{AT}, v{T2}, v{ZA}, vcc')
    h(f'v_mov_b32 v{AT+1}, 1')
    h('s_xor_b32 s50, s63, 1')
    h('s_lshl_b32 s51, s50, 7')
    h(f's_add_u32 s51, s51, {GOFF}')
    h(f'v_and_b32 v{T1}, 1, v{L}')
    h(f'v_lshlrev_b32 v{T1}, 2, v{T1}')
    h(f'v_add_u32 v{PA}, s51, v{T1}')
    if o.get('loc'):
        h('s_lshl_b32 s50, s42, 4')
        h('s_add_u32 s50, s50, s62')
        h('s_lshl_b32 s50, s50, 3')
        h('s_lshr_b32 s51, s43, 1')
        h('s_add_u32 s50, s50, s51')
        h(f's_mul_i32 s50, s50, {NBLK*1024}')
        h('s_mul_i32 s51, s46, 6144')
        h('s_add_u32 s50, s50, s51')
    else:
        h('s_mul_i32 s50, s50, 24576')
        h('s_mul_i32 s51, s46, 6144')
        h('s_add_u32 s50, s50, s51')
        h(f's_add_u32 s50, s50, {OSOFF}')
    h(f'v_lshlrev_b32 v{T1}, 4, v{L}')
    h(f'v_add_u32 v{PD}, s50, v{T1}')
    h('s_movk_i32 s34, 4096')
    h('s_movk_i32 s35, 8192')
    def kv_tile(which, tile):
        it = []
        base = KREG + tile*16384 if which == 0 else VT[tile]
        sr = 12 if which == 0 else 16
        so = ['0', 's34', 's35'][tile]
        it.append(f's_add_u32 m0, s56, {base}')
        for q in range(4):
            vo = KO + q if which == 0 else VO + (q & 1)
            it.append((f'buffer_load_dwordx4 v{vo}, s[{sr}:{sr+3}], {so} offen offset:{q*1024}{M("kv")} lds', ('K' if which == 0 else 'V', tile)))
        return it
    h('s_lshl_b32 s51, s46, 6')
    h('s_mul_i32 s51, s51, 1152')
    h(f'v_add_u32 v{T0}, s51, v{T0}')
    h(f'v_and_b32 v{T1}, 7, v{L}')
    h(f'v_lshlrev_b32 v{T2}, 1, v{G}')
    h(f'v_xor_b32 v{T1}, v{T1}, v{T2}')
    h(f'v_lshl_add_u32 v{T0}, v{T1}, 4, v{T0}')
    for q in range(4):
        h(f'v_add_u32 v{OW+q}, {q*8192}, v{T0}')
    h('s_lshr_b32 s61, s43, 1')
    for t in range(9):
        if t == 0: h('s_add_u32 s50, s44, 8')
        else:
            h(f's_add_u32 s50, s61, {t}')
            h('s_and_b32 s50, s50, 7')
            h('s_add_u32 s50, s50, s44')
        modn(h, 50, 51, 9)
        h(f's_lshl_b32 s{CB0+t}, s50, 7')
    h(f's_mul_i32 s32, s43, {256*1152}')
    h('s_xor_b32 s33, s43, 1')
    h(f's_mul_i32 s33, s33, {256*1152}')
    def wo_half(u):
        slot = SL2[u]
        it = []
        it.append(f's_add_u32 s48, s{CB0 + blk_of(u)}, s{32 if (u < 8 or u == 17) else 33}')
        it.append(f's_add_u32 s49, s48, {32*1152}')
        it.append(f's_add_u32 m0, s57, {slot}')
        for q in range(4):
            it.append((f'buffer_load_dwordx4 v{OW+q}, s[20:23], s48 offen offset:{q*1024}{M("wo")} lds', ('W', u)))
        it.append(f's_add_u32 m0, s57, {slot+4096}')
        for q in range(4):
            it.append((f'buffer_load_dwordx4 v{OW+q}, s[20:23], s49 offen offset:{q*1024}{M("wo")} lds', ('W', u)))
        return it
    spf = str(o.get('spf', ''))
    pf = []
    if 'w' in spf:
        h('s_lshl_b32 s50, s46, 6')
        h('s_mul_i32 s50, s50, 1152')
        h('s_add_u32 s50, s50, s32')
        h(f's_add_u32 s50, s50, s{CB0}')
        h('s_add_u32 s24, s20, s50'); h('s_addc_u32 s25, s21, 0')
        h('s_lshl_b32 s50, s44, 2')
        h('s_add_u32 s50, s50, s46')
        h(f's_mul_i32 s50, s50, {8*1152}')
        h('s_add_u32 s50, s50, s32')
        h('s_add_u32 s26, s20, s50'); h('s_addc_u32 s27, s21, 0')
        pf += [f's_load_dword s{96 + (i % 4)}, s[26:27], {(i >> 1)*1152 + 896 + (i & 1)*64}' for i in range(16)]
        pf += [f's_load_dword s{96 + (i % 4)}, s[24:25], {(i >> 1)*1152 + (i & 1)*64}' for i in range(128)]
    npf = int(o.get('npf', 5)); pf0 = int(o.get('pf0', 0))
    em(h, x_chunk(1)); em(h, dma_stage(2))
    n9 = []
    if o.get('c9'):
        h('s_lshl_b32 s50, s3, 1')
        h('s_add_u32 s50, s50, 8')
        modn(h, 50, 51, 9)
        h('s_lshl_b32 s50, s50, 6')
        h('s_lshl_b32 s51, s44, 3')
        h('s_add_u32 s50, s50, s51')
        h('s_lshl_b32 s51, s46, 1')
        h('s_add_u32 s50, s50, s51')
        h('s_lshl_b32 s50, s50, 13')
        h('s_lshl_b32 s51, s43, 9')
        h('s_add_u32 s50, s50, s51')
        h('s_add_u32 s92, s8, s50'); h('s_addc_u32 s93, s9, 0')
        for i in range(14): h(f's_load_dword s{96 + (i % 4)}, s[92:93], {(i >> 3)*8192 + (i & 7)*64}')
        n9 += [f's_load_dword s{96 + (i % 4)}, s[92:93], {(i >> 3)*8192 + (i & 7)*64}' for i in range(14, 16)]
        h('s_add_u32 s50, s44, 8')
        modn(h, 50, 51, 9)
        h('s_lshl_b32 s50, s50, 7')
        h('s_mul_i32 s51, s44, 96')
        h('s_mul_i32 s59, s3, 24')
        h('s_add_u32 s51, s51, s59')
        h('s_mul_i32 s59, s46, 6')
        h('s_add_u32 s51, s51, s59')
        h('s_mul_i32 s51, s51, 1152')
        h('s_add_u32 s50, s50, s51')
        h('s_add_u32 s94, s4, s50'); h('s_addc_u32 s95, s5, 0')
        n9 += [f's_load_dword s{96 + (i % 4)}, s[94:95], {(i >> 1)*1152 + (i & 1)*64}' for i in range(12)]
    sh()
    if o.get('pfl'): em(h, pf[:int(o['pfl'][0], 16)])
    h.wait_vm(lambda t: t == ('S', 0))
    h('s_barrier')
    if o.get('pfl'): em(h, pf[int(o['pfl'][0], 16):int(o['pfl'][0], 16)+int(o['pfl'][1], 16)])
    em(h, n9)
    em(h, dma_stage(3)); em(h, x_chunk(2))
    kats = [int(x) for x in str(o.get('kat', '8')).split(',')]
    vm0 = list(h.vm)
    if len(kats) > 1:
        if o.get('vsel') == 'h':
            h('s_lshr_b32 s59, s43, 1'); h('s_add_u32 s59, s59, s44'); h(f's_and_b32 s59, s59, {len(kats)-1}')
        else: h(f's_and_b32 s59, s44, {len(kats)-1}')
        for vi in range(1, len(kats)):
            h(f's_cmp_eq_u32 s59, {vi}')
            h(f's_cbranch_scc1 HQ{vi}')
    n0 = sh.n
    for vi, kat in enumerate(kats):
        h.vm = list(vm0); sh.n = n0
        if vi: h.label(f'HQ{vi}')
        for n in range(17):
            h.wait_vm(lambda t: t == ('S', n+1) or t == ('X', (n+1) >> 1))
            h('s_barrier')
            if n in (3, 8, 13): sh()
            if n == 3:
                h('s_cmp_lg_u32 s46, 0')
                h(f's_cbranch_scc1 H_NOCNT{vi}')
                h('s_lshr_b32 s50, s63, 4')
                h('s_lshl_b32 s50, s50, 4')
                h('s_mov_b32 s100, 1')
                h('s_atomic_add s100, s[54:55], s50')
                h.label(f'H_NOCNT{vi}')
            if n + 4 <= 17: em(h, dma_stage(n+4))
            if o.get('xs'):
                XA = (0,) if o['xs'] == '1' else (0, 1)
                XB = tuple(p for p in (0, 1, 2) if p not in XA)
                if (n & 1) and (n >> 1) + 3 <= 8: em(h, x_chunk((n >> 1) + 3, XA))
                if n >= 2 and not (n & 1) and (n >> 1) + 2 <= 8: em(h, x_chunk((n >> 1) + 2, XB))
            elif (n & 1) and (n >> 1) + 3 <= 8: em(h, x_chunk((n >> 1) + 3))
            if o.get('kall'):
                if n == kat:
                    for tile in range(3): em(h, kv_tile(0, tile))
            elif kat <= n < kat + 3: em(h, kv_tile(0, n - kat))
            if n >= 14: em(h, kv_tile(1, n - 14))
            if o.get('pfl'):
                cnts = [int(c, 16) for c in o['pfl']]
                st0 = sum(cnts[:n+2]); em(h, pf[st0:st0+cnts[n+2]])
            elif pf0 <= n <= int(o.get('pf1', 16)): em(h, pf[(n-pf0)*npf:(n-pf0+1)*npf])
        h.wait_vm(lambda t: t[0] == 'K')
        assert all(t[0] == 'V' for t in h.vm), h.vm
        h.vm = [('V', 0)]*12
        if vi + 1 < len(kats): h('s_branch HQ_END')
    h.label('HQ_END')
    sh()
    h('s_barrier')
    cload = f'buffer_load_dword v{CV}, v{ZA}, s[36:39], 0 offen{CO}'
    h(cload, ('C', 0))
    em(h, wo_half(0))
    h.wait_vm(lambda t: t[0] == 'V')
    sh()
    h('s_barrier')
    h('s_barrier')
    em(h, wo_half(1)); em(h, wo_half(2))
    h.wait_vm(lambda t: t == ('W', 0))
    if int(o.get('w3early', 0)): em(h, wo_half(3))
    sh()
    h('s_barrier')
    check_or_poll(h, 'HC', cload, CV, 16)
    if not int(o.get('w3early', 0)): em(h, wo_half(3))
    PI, PC = int(o.get('pi', 3)), int(o.get('pc', 4))
    h('s_lshl_b32 s24, s63, 7')
    h(f's_add_u32 s24, s24, {GOFF}')
    h('s_xor_b32 s25, s24, 128')
    h('s_lshl_b32 s26, s42, 4')
    h('s_add_u32 s26, s26, s62')
    h(f's_mul_i32 s26, s26, {36*128}')
    h('s_lshl_b32 s27, s46, 7')
    h('s_add_u32 s26, s26, s27')
    h(f's_add_u32 s26, s26, {FOFF}')
    h('s_lshl_b32 s27, s46, 2')
    h(f's_add_u32 s27, s27, {LFLAG}')
    h(f'v_mov_b32 v37, s27'); h('v_mov_b32 v38, 0')
    h('ds_write_b32 v37, v38')
    h('s_mov_b32 s100, 1')
    assert GOFF % 256 == 0
    def tail_setup():
        if o.get('rprio'): h(f's_setprio {o["rprio"]}')
        srd(h, 4, 40, 41, WS_BYTES)
        srd(h, 8, 52, 53, OUT_BYTES)
        h('s_lshl_b32 s57, s61, 9')
        h('s_add_u32 s57, s57, s26')
        h('s_load_dwordx8 s[32:39], s[40:41], s57 glc')
        red_setup(h, 61)
        for t in range(1, 8):
            h(f's_sub_u32 s58, s61, {t}')
            h('s_and_b32 s58, s58, 7')
            h(f's_mul_i32 s58, s58, {PSTR}')
            h('s_add_u32 s58, s58, s56')
            h(f's_add_u32 s{CB0+t}, s58, {t*6144}')
        h('s_mul_i32 s58, s46, 3072')
        h(f's_add_u32 s58, s58, {B_ if o.get("is3") else SL2[14]}')
        h('v_add_u32 v11, s58, v12')
    nxt = 4
    wq_pos = 8
    for u in range(LASTB+1):
        if u < LASTB:
            assert nxt > u+1
            h.wait_vm(lambda t: t == ('W', u+1) or (u == 6 and t[0] == 'O'))
        else:
            assert nxt == 18
            tail_setup()
            h.wait_vm(lambda t: t[0] == 'W')
        h('s_barrier')
        if u == GU:
            h('s_cmp_lg_u32 s46, 0')
            h('s_cbranch_scc1 H_NOG')
            h('s_atomic_add s100, s[40:41], s24')
            h.label('H_NOG')
        if u == FA_:
            h('s_lshl_b32 s27, s61, 2')
            h('s_add_u32 s27, s27, s26')
            h('s_add_u32 s27, s27, 4096')
            h('s_atomic_add s100, s[40:41], s27')
            for t in (1, 2, 3):
                h(f's_add_u32 s27, s61, {t}')
                h('s_and_b32 s27, s27, 7')
                h('s_lshl_b32 s27, s27, 9')
                h('s_add_u32 s27, s27, s26')
                h(f's_add_u32 s27, s27, {t*4}')
                h('s_atomic_add s100, s[40:41], s27')
        if u == PC:
            h('s_mov_b32 s59, 0')
            h.label('HP_POLL')
            h('s_waitcnt lgkmcnt(0)')
            h('s_cmp_ge_u32 s101, 1')
            h('s_cbranch_scc1 HP_GO')
            h('s_load_dword s101, s[40:41], s25 glc')
            h('s_add_u32 s59, s59, 1')
            h('s_cmp_lt_u32 s59, 0x40000')
            h('s_cbranch_scc1 HP_POLL')
            h.label('HP_GO')
            h('s_mul_i32 s48, s46, 6144')
            h(f's_add_u32 s48, s48, {B_}')
            h('s_mov_b32 m0, s48')
            for q in range(4): h(f'buffer_load_dwordx4 v{PD}, s[28:31], 0 offen offset:{q*1024}{CO} lds', ('O', q))
            h('s_add_u32 m0, s48, 4096')
            for q in range(2): h(f'buffer_load_dwordx4 v{PD}, s[28:31], s34 offen offset:{q*1024}{CO} lds', ('O', q))
        if u == PI: h('s_load_dword s101, s[40:41], s25 glc')
        for hh in IS2.get(u, []):
            assert hh == nxt
            em(h, wo_half(hh)); nxt += 1
    assert nxt == 18, nxt
    sh.on = ts
    sh()
    def t_a():
        h('s_and_b32 s16, s33, s34')
        h('s_and_b32 s16, s16, s35')
    spoll(h, 'HA', t_a)
    sh()
    h.vm = []
    for t in (1, 2, 3): ld6(h, 40 + 6*(t-1), f's{CB0+t}', ('R', t))
    def t_b(): h('s_and_b32 s16, s36, s37')
    def t_c(): h('s_and_b32 s16, s38, s39')
    spoll(h, 'HB', t_b)
    ld6(h, 60, f's{CB0+4}', ('R', 4)); ld6(h, 66, f's{CB0+5}', ('R', 5))
    t_c()
    h('s_cselect_b32 s98, 1, 0')
    h('s_cbranch_scc0 HNOC')
    ld6(h, 72, f's{CB0+6}', ('R', 6)); ld6(h, 78, f's{CB0+7}', ('R', 7))
    h.vm = h.vm[:-4]
    h.label('HNOC')
    h('s_load_dwordx8 s[32:39], s[40:41], s57 glc')
    for t in (1, 2, 3, 4, 5):
        h.wait_vm(lambda x: x == ('R', t))
        sum6(h, 16, [0, 40, 46, 52, 60, 66][t], t == 1)
    sh()
    h('s_cmp_lg_u32 s98, 0')
    h('s_cbranch_scc1 HOWN')
    h('s_waitcnt lgkmcnt(0)')
    t_c()
    h('s_cbranch_scc0 HOWN')
    ld6(h, 72, f's{CB0+6}', ('R', 6)); ld6(h, 78, f's{CB0+7}', ('R', 7))
    h('s_mov_b32 s98, 1')
    h.label('HOWN')
    h('s_mov_b32 s59, 0')
    h.label('HL_P')
    h('ds_read_b32 v38, v37')
    h('s_waitcnt lgkmcnt(0)')
    h('v_readfirstlane_b32 s58, v38')
    h('s_add_u32 s59, s59, 1')
    h('s_cmp_lg_u32 s58, 0')
    h('s_cbranch_scc1 HL_G')
    h('s_sleep 1')
    h('s_cmp_lt_u32 s59, 0x400000')
    h('s_cbranch_scc1 HL_P')
    h.label('HL_G')
    for mt in range(3): h(f'ds_read_b128 {vr(40+4*mt,4)}, v11 offset:{mt*1024}')
    h('s_waitcnt lgkmcnt(0)')
    for j in range(12): h(f'v_add_f32 v{16+j}, v{16+j}, v{40+j}')
    sh()
    h('s_cmp_lg_u32 s98, 0')
    h('s_cbranch_scc1 HSUMC')
    spoll(h, 'HC2', t_c)
    ld6(h, 72, f's{CB0+6}', ('R', 6)); ld6(h, 78, f's{CB0+7}', ('R', 7))
    h.label('HSUMC')
    sh()
    h('s_waitcnt vmcnt(2)')
    sum6(h, 16, 72)
    h('s_waitcnt vmcnt(0)'); h.vm = []
    sum6(h, 16, 78)
    sh()
    red_out(h, 16, o)
    sh.dump(40, 41, 0, 3)
    h.label('M_END')
    h('s_endpgm')
    a.label('CODE_END')
    print('main: compute inst', a.ninst, 'nops', a.nops_inserted, 'helper', h.ninst, 'stamps', st_.n, sh.n)
    return p.text() + h.text() + a.text()

DOC = """; ---------------------------------------------------------------------------------------------
;     each of the 8 workgroups of a batch owns one 64-column block of the output (computed last, kept
;     in fp32); bf16 partials of the other blocks go through d_ws to their owners, which sum in fp32.
; ---------------------------------------------------------------------------------------------
"""

if __name__ == '__main__':
    out = sys.argv[1]
    o = dict(x.split('=') if '=' in x else (x, 1) for x in sys.argv[2:])
    SLEEP = int(o.get('sleep', 1))
    if o.get('is3'):
        SL2 = [A_, B_, C_, D_] + [(A_, C_, D_)[i % 3] for i in range(14)]
        IS2 = {0: [4]}; IS2.update({u: [u+3] for u in range(2, 15)})
    if o.get('is4'):
        SL2 = [A_, B_, C_, D_, A_, C_, D_, A_, C_, D_, A_, C_, D_, B_, A_, C_, D_, B_]
        IS2 = {0: [4], 2: [5], 3: [6], 4: [7], 5: [8], 6: [9], 7: [10], 8: [11], 9: [12, 13], 10: [14], 11: [15], 12: [16], 13: [17]}
    SP0 = 32
    txt = build_file([dict(name=NAME + '_kernel', grid=256, block=512, lds=163840, body=gen_main(o), vgpr=256, sgpr=102, accum=256)])
    txt = txt.replace('.amdgcn_target', DOC + '.amdgcn_target', 1)
    open(out, 'w').write(txt)
```

```python
import sys, struct, math
sys.path.insert(0, 'gen')
from asmgen import Asm, interleave
from common import *
from v2 import Stamps, srd, em, f32bits, vr

X_BYTES = 16*48*576*2
W_BYTES = 576*4096*2
KV_A = 16*16*48*128*2
KV_B = 16*32*48*128*2
OUT_BYTES = 16*48*1152*2
PSTR = 50176
P_BYTES = 256*PSTR
OSOFF = P_BYTES
FOFF = OSOFF + 256*24576
GOFF = FOFF + 32*36*128
WS_BYTES = GOFF + 256*128
LFLAG = 24576
OOB = 0x7ffffff0

KREG = 0; XREG = 49152; QS = 98304; NS = 4; VB = 98304; XS = [0, 12288, 24576]
VT = [131072, 147456, 98304]
HS = [65536, 32768, 98304, 131072]
L, I, G, T0, T1, T2 = 1, 2, 3, 4, 5, 6
CO = ' sc0 sc1'
SLEEP = 1
X3 = 0
A_, B_, C_, D_ = 65536, 32768, 98304, 131072
SL2 = [A_, B_, C_, D_, A_, C_, D_, A_, C_, D_, A_, C_, B_, D_, A_, C_, B_, D_]
IS2 = {0: [4], 2: [5], 3: [6], 4: [7], 5: [8], 6: [9], 7: [10], 8: [11, 12], 9: [13], 10: [14], 11: [15], 12: [16], 13: [17]}
def blk_of(u): return u if u < 8 else (u - 8 if u < 17 else 8)
CB0 = 84
SP0 = 64

def lane_ids(a):
    a(f'v_and_b32 v{L}, 63, v0')
    a(f'v_and_b32 v{I}, 15, v0')
    a(f'v_lshrrev_b32 v{G}, 4, v{L}')

def modn(a, d, t, n):
    a(f's_cmp_ge_u32 s{d}, {n}')
    a(f's_cselect_b32 s{t}, {n}, 0')
    a(f's_sub_u32 s{d}, s{d}, s{t}')

def poll(a, lbl, load, vreg, expect, keep_vm=False):
    vm = list(a.vm)
    a('s_mov_b32 s59, 0')
    a.label(f'{lbl}_POLL')
    a(load)
    a('s_waitcnt vmcnt(0)')
    a(f'v_cmp_gt_u32 vcc, {expect}, v{vreg}')
    a('s_add_u32 s59, s59, 1')
    a('s_nop 0')
    a(f's_cbranch_vccz {lbl}_GO')
    a(f's_sleep {SLEEP}')
    a('s_cmp_lt_u32 s59, 0x40000')
    a(f's_cbranch_scc1 {lbl}_POLL')
    a.label(f'{lbl}_GO')
    a.vm = vm if keep_vm else []

def check_or_poll(a, lbl, load, vreg, expect):
    a(f'v_cmp_gt_u32 vcc, {expect}, v{vreg}')
    a('s_nop 1')
    a(f's_cbranch_vccz {lbl}_GO')
    poll(a, lbl, load, vreg, expect, keep_vm=True)

def sum6(a, acc, r, first=False):
    r_ = r
    for j in range(6):
        if X3: r = 32 + (r_ - 32)*2 + (1 if j >= 3 else 0)
        if first:
            a(f'v_lshlrev_b32 v{acc+2*j}, 16, v{r+j}')
            a(f'v_and_b32 v{acc+2*j+1}, 0xffff0000, v{r+j}')
        else:
            a(f'v_dot2c_f32_bf16 v{acc+2*j}, v{r+j}, v14')
            a(f'v_dot2c_f32_bf16 v{acc+2*j+1}, v{r+j}, v15')

def red_setup(a, c_sreg):
    a(f's_add_u32 s48, s{c_sreg}, s44')
    modn(a, 48, 58, 9)
    a('s_lshl_b32 s48, s48, 7')
    a('s_mul_i32 s58, s62, 110592')
    a('s_add_u32 s48, s48, s58')
    a('s_mul_i32 s58, s42, 1152')
    a('s_add_u32 s48, s48, s58')
    a('s_lshl_b32 s58, s46, 5')
    a('s_add_u32 s48, s48, s58')
    a(f'v_mul_u32_u24 v7, 2304, v{I}')
    a(f'v_lshl_add_u32 v7, v{G}, 3, v7')
    a('v_add_u32 v7, s48, v7')
    a(f'v_lshlrev_b32 v12, 4, v{L}')
    a(f'v_mul_u32_u24 v13, {12 if X3 else 8}, v{L}')
    a('v_mov_b32 v14, 0x3f80'); a('v_mov_b32 v15, 0x3f800000')
    a('s_lshl_b32 s51, s42, 4')
    a('s_add_u32 s51, s51, s62')
    a(f's_mul_i32 s56, s51, {8*PSTR}')
    a('s_mul_i32 s58, s46, 1536')
    a('s_add_u32 s56, s56, s58')
    a('s_movk_i32 s49, 0x4800'); a('s_lshl_b32 s49, s49, 1'); a('s_lshl_b32 s50, s49, 1')

def ld6(a, r, so, tag):
    if X3:
        r = 32 + (r - 32)*2
        a(f'buffer_load_dwordx3 {vr(r,3)}, v13, s[4:7], {so} offen{CO}', tag)
        a(f'buffer_load_dwordx3 {vr(r+4,3)}, v13, s[4:7], {so} offen offset:768{CO}', tag)
        return
    a(f'buffer_load_dwordx4 {vr(r,4)}, v12, s[4:7], {so} offen{CO}', tag)
    a(f'buffer_load_dwordx2 {vr(r+4,2)}, v13, s[4:7], {so} offen offset:1024{CO}', tag)

def red_out(a, acc, o):
    M = lambda k: (' ' + o[k].replace('+', ' ')) if k in o else ''
    a('s_nop 2')
    for j in range(6): a(f'v_cvt_pk_bf16_f32 v{acc+j}, v{acc+2*j}, v{acc+2*j+1}')
    for mt in range(3): a(f'buffer_store_dwordx2 {vr(acc+2*mt,2)}, v7, s[8:11], {["0","s49","s50"][mt]} offen{M("out")}')

def spoll(a, lbl, test):
    a('s_mov_b32 s59, 0')
    a.label(f'{lbl}_P')
    a('s_waitcnt lgkmcnt(0)')
    test()
    a(f's_cbranch_scc1 {lbl}_G')
    a('s_load_dwordx8 s[32:39], s[40:41], s57 glc')
    a('s_add_u32 s59, s59, 1')
    a('s_cmp_lt_u32 s59, 0x40000')
    a(f's_cbranch_scc1 {lbl}_P')
    a('s_waitcnt lgkmcnt(0)')
    a.label(f'{lbl}_G')

def gen_main(o):
    ts = o.get('ts'); tsmode = o.get('tsmode', 's_memrealtime')
    M = lambda k: (' ' + o[k].replace('+', ' ')) if k in o else ''
    p = Asm()
    p.label('KSTART')
    p('s_cmp_ge_u32 s2, 256')
    p('s_cbranch_scc1 M_END')
    if ts: p(f'{tsmode} s[64:65]')
    p('s_load_dwordx8 s[24:31], s[0:1], 0')
    p('s_load_dwordx8 s[32:39], s[0:1], 40')
    p('s_load_dwordx2 s[40:41], s[0:1], 96')
    p('s_load_dwordx2 s[20:21], s[0:1], 32')
    p('s_load_dwordx2 s[22:23], s[0:1], 72')
    p('s_load_dwordx4 s[52:55], s[0:1], 80')
    if o.get('cpf') == 'e':
        p(f'v_lshrrev_b32 v{T0}, 6, v0')
        p('s_getpc_b64 s[16:17]')
        p.label('PCREF')
        p(f'v_readfirstlane_b32 s45, v{T0}')
        p('s_cmp_lt_u32 s45, 4')
        p('s_cbranch_scc1 NOCPF')
        p('s_lshr_b32 s18, s2, 3')
        p('s_lshl_b32 s18, s18, 2')
        p('s_add_u32 s18, s18, s45')
        NL = int(o.get('cnl', 4))
        p(f's_mul_i32 s18, s18, {64*NL}')
        p(f's_sub_u32 s18, s18, {256*NL}')
        p(f's_min_u32 s18, s18, CODE_END - PCREF - {64*NL-60}')
        p('s_add_u32 s16, s16, s18'); p('s_addc_u32 s17, s17, 0')
        for i in range(NL): p(f's_load_dword s{96+i}, s[16:17], {i*64}')
        p.label('NOCPF')
    p('s_and_b32 s47, s2, 7')
    p('s_lshr_b32 s48, s2, 3')
    p('s_lshr_b32 s42, s47, 2')
    if o.get('bsw') == '1': p('s_xor_b32 s42, s42, 1')
    if o.get('bsw') == '2':
        p('s_and_b32 s42, s47, 1'); p('s_lshr_b32 s47, s47, 1')
    p('s_and_b32 s49, s47, 3')
    p('s_lshl_b32 s49, s49, 2')
    p('s_and_b32 s3, s48, 3')
    p('s_add_u32 s43, s49, s3')
    p('s_lshr_b32 s44, s48, 2')
    p('s_and_b32 s49, s43, 1')
    p('s_lshl_b32 s62, s44, 1')
    p('s_add_u32 s62, s62, s49')
    p('s_lshl_b32 s63, s42, 3')
    p('s_add_u32 s63, s63, s44')
    p('s_lshl_b32 s63, s63, 4')
    p('s_add_u32 s63, s63, s43')
    p(f'v_lshrrev_b32 v{T0}, 6, v0')
    lane_ids(p)
    p(f'v_readfirstlane_b32 s45, v{T0}')
    p('s_and_b32 s46, s45, 3')
    p('s_xor_b32 s45, s45, 4')
    p('s_cmp_lt_u32 s45, 4')
    p('s_cbranch_scc1 COMPUTE')

    a = Asm()
    st_ = Stamps(a, ts, tsmode); st_.n = 1
    fine = o.get('fine')
    if fine: st_.on = False
    a.label('COMPUTE')
    WQ = 8; XR = 24; KR = 26; VRD = 27; OXW = 28
    QA = 40; F0 = 136; SP = 224
    a('s_lshr_b32 s48, s46, 1')
    a('s_and_b32 s49, s46, 1')
    a('s_and_b32 s50, s43, 1')
    a('s_xor_b32 s57, s48, s50')
    a('s_lshl_b32 s50, s42, 4')
    a('s_add_u32 s50, s50, s62')
    a('s_lshr_b32 s56, s43, 1')
    a(f's_mul_i32 s51, s50, {36*128}')
    a('s_lshl_b32 s58, s46, 7')
    a('s_add_u32 s51, s51, s58')
    a(f's_add_u32 s61, s51, {FOFF}')
    a(f'v_add_u32 v{T0}, s56, v{L}')
    a(f'v_and_b32 v{T0}, 7, v{T0}')
    a(f'v_lshlrev_b32 v{T0}, 9, v{T0}')
    a(f'v_lshl_add_u32 v{T0}, v{L}, 2, v{T0}')
    a('s_lshl_b32 s58, s56, 2')
    a('s_add_u32 s58, s58, 4096')
    a(f'v_mov_b32 v{T1}, s58')
    a(f'v_cmp_eq_u32 vcc, 0, v{L}')
    a(f'v_cndmask_b32 v{T0}, v{T0}, v{T1}, vcc')
    a(f'v_add_u32 v{T0}, s61, v{T0}')
    a(f'v_mov_b32 v{T1}, {OOB:#x}')
    a(f'v_cmp_gt_u32 vcc, 8, v{L}')
    a(f'v_cndmask_b32 v31, v{T1}, v{T0}, vcc')
    a('s_lshl_b32 s51, s63, 7')
    a(f's_add_u32 s51, s51, {GOFF}')
    a('s_cmp_eq_u32 s46, 0')
    a(f's_cselect_b32 s51, s51, {OOB:#x}')
    a(f'v_mov_b32 v{T0}, s51')
    a(f'v_cmp_eq_u32 vcc, 8, v{L}')
    a(f'v_cndmask_b32 v{T2}, v31, v{T0}, vcc')
    a(f'v_mov_b32 v7, 0')
    a('s_waitcnt lgkmcnt(0)')
    srd(a, 4, 40, 41, WS_BYTES)
    a(f'buffer_store_dword v7, v{T2}, s[4:7], 0 offen{CO}')
    cpf = o.get('cpf')
    if cpf == 's':
        a('s_getpc_b64 s[16:17]')
        a.label('PCREF')
        a('s_sub_u32 s16, s16, PCREF - KSTART'); a('s_subb_u32 s17, s17, 0')
        if cpf == 's':
            a('s_lshr_b32 s18, s2, 3')
            a('s_lshl_b32 s18, s18, 2')
            a('s_add_u32 s18, s18, s46')
            a('s_mul_i32 s18, s18, 256')
            a('s_min_u32 s18, s18, CODE_END - KSTART - 196')
            a('s_add_u32 s16, s16, s18'); a('s_addc_u32 s17, s17, 0')
            for i in range(4): a(f's_load_dword s{96+i}, s[16:17], {i*64}')
        else:
            pass
    srd(a, 8, 52, 53, OUT_BYTES)
    a('s_lshl_b32 s50, s50, 3')
    a('s_add_u32 s50, s50, s56')
    a(f's_mul_i32 s58, s50, {PSTR}')
    a('s_mul_i32 s50, s46, 1536')
    a('s_add_u32 s58, s58, s50')
    a(f'v_mul_u32_u24 v{T0}, {12 if X3 else 8}, v{L}')
    a(f'v_add_u32 v29, s58, v{T0}')
    a(f'v_lshlrev_b32 v{T0}, 4, v{L}')
    a(f'v_add_u32 v30, s58, v{T0}')
    a('s_mul_i32 s50, s49, 12288')
    if o.get('loc'):
        a('s_lshl_b32 s51, s42, 4')
        a('s_add_u32 s51, s51, s62')
        a('s_xor_b32 s51, s51, 1')
        a('s_lshl_b32 s51, s51, 3')
        a('s_add_u32 s51, s51, s56')
        a(f's_mul_i32 s51, s51, {NBLK*1024}')
    else:
        a('s_mul_i32 s51, s63, 24576')
        a(f's_add_u32 s51, s51, {OSOFF}')
    a('s_add_u32 s51, s51, s50')
    a('s_cmp_eq_u32 s57, 1')
    a(f's_cselect_b32 s51, s51, {OOB - 4096:#x}')
    a(f'v_add_u32 v{OXW}, s50, v{T0}')
    a(f'v_add_u32 v32, s51, v{T0}')
    a(f'v_mov_b32 v33, v{T0}')
    a('s_lshl_b32 s50, s49, 13')
    a(f's_add_u32 s50, s50, {QS}')
    a(f'v_lshlrev_b32 v{T0}, 11, v{G}')
    a(f'v_add_u32 v{T0}, s50, v{T0}')
    a(f'v_lshrrev_b32 v{T2}, 2, v{I}')
    a(f'v_lshl_add_u32 v{T0}, v{T2}, 8, v{T0}')
    a(f'v_and_b32 v{T1}, 1, v{G}')
    a(f'v_lshl_add_u32 v{T1}, v{T1}, 2, v{T2}')
    a(f'v_and_b32 v{T2}, 3, v{I}')
    a(f'v_lshl_add_u32 v{T0}, v{T2}, 3, v{T0}')
    for t in range(8):
        a(f'v_xor_b32 v{T2}, {t}, v{T1}')
        a(f'v_lshl_add_u32 v{WQ+t}, v{T2}, 5, v{T0}')
    a('s_mul_i32 s50, s48, 6144')
    a(f's_add_u32 s50, s50, {XREG}')
    a(f'v_lshrrev_b32 v{T0}, 1, v{I}')
    a(f'v_xor_b32 v{T0}, v{T0}, v{G}')
    a(f'v_lshlrev_b32 v{T0}, 4, v{T0}')
    a(f'v_lshlrev_b32 v{T1}, 7, v{I}')
    a(f'v_add_u32 v{T1}, s50, v{T1}')
    a(f'v_add_u32 v{XR}, v{T1}, v{T0}')
    a(f'v_xor_b32 v{T0}, 64, v{T0}')
    a(f'v_add_u32 v{XR+1}, v{T1}, v{T0}')
    a('s_lshl_b32 s50, s46, 12')
    a(f'v_lshrrev_b32 v{T0}, 1, v{G}')
    a(f'v_xor_b32 v{T0}, v{T0}, v{I}')
    a(f'v_lshlrev_b32 v{T0}, 4, v{T0}')
    a(f'v_lshl_add_u32 v{T0}, v{I}, 8, v{T0}')
    a(f'v_and_b32 v{T1}, 1, v{G}')
    a(f'v_lshl_add_u32 v{T0}, v{T1}, 3, v{T0}')
    a(f'v_add_u32 v{KR}, s50, v{T0}')
    for j in range(8): a(f'v_xor_b32 v{WQ+8+j}, {j*32}, v{KR}')
    a(f's_add_u32 s50, s50, {VB}')
    a(f'v_lshrrev_b32 v{T0}, 2, v{L}')
    a(f'v_and_b32 v{T1}, 7, v{T0}')
    a(f'v_lshlrev_b32 v{T1}, 5, v{T1}')
    a(f'v_lshl_add_u32 v{T0}, v{T0}, 8, v{T1}')
    a(f'v_and_b32 v{T1}, 3, v{I}')
    a(f'v_lshl_add_u32 v{T0}, v{T1}, 3, v{T0}')
    a(f'v_add_u32 v{VRD}, s50, v{T0}')
    AR, PO, FL, ONE, OX0, GF = 4, 5, 6, 7, 2, 3
    a(f'v_lshrrev_b32 v{T0}, 2, v{L}')
    a(f'v_lshlrev_b32 v{T1}, 7, v{T0}')
    a(f'v_and_b32 v{T2}, 3, v{I}')
    a(f'v_lshl_add_u32 v{T1}, v{T2}, 3, v{T1}')
    a(f'v_lshrrev_b32 v{T0}, 1, v{T0}')
    a(f'v_and_b32 v{T0}, 3, v{T0}')
    a(f'v_xor_b32 v{T0}, s46, v{T0}')
    a(f'v_lshl_add_u32 v{T0}, v{T0}, 5, v{T1}')
    a(f'v_add_u32 v{AR}, {SL2[0]}, v{T0}')
    a(f'v_mov_b32 v{PO}, v30'); a(f'v_mov_b32 v{FL}, v31'); a(f'v_mov_b32 v{GF}, v32'); a(f'v_mov_b32 v{OX0}, v33'); a(f'v_mov_b32 v{ONE}, 1'); a('v_mov_b32 v1, v29')
    if o.get('tlb'):
        a('s_cmp_eq_u32 s42, 0')
        a('s_cselect_b64 s[26:27], s[26:27], s[34:35]')
        a('s_cselect_b64 s[28:29], s[28:29], s[36:37]')
        a('s_cselect_b64 s[32:33], s[20:21], s[22:23]')
        a(f's_mov_b32 s59, {KV_B}')
        a(f's_cselect_b32 s59, {KV_A}, s59')
        a('s_cselect_b32 s58, 4, 5')
        a('s_lshl_b32 s50, s43, 1')
        a('s_add_u32 s50, s50, s49')
        a('s_cmp_eq_u32 s42, 0')
        a('s_cselect_b32 s50, s43, s50')
        a('s_lshl_b32 s51, s44, 1')
        a('s_add_u32 s51, s51, s48')
        a('s_lshl_b32 s51, s51, s58')
        a('s_add_u32 s51, s51, s50')
        a('s_mul_i32 s51, s51, 12288')
        a('v_mov_b32 v34, 0')
        srd(a, 12, 26, 27, 's59')
        a('buffer_load_dword v35, v34, s[12:15], s51 offen')
        srd(a, 16, 28, 29, 's59')
        a('buffer_load_dword v36, v34, s[16:19], s51 offen')
        srd(a, 20, 32, 33, W_BYTES)
        a('s_and_b32 s50, s43, 14')
        a('s_lshl_b32 s50, s50, 1')
        a('s_add_u32 s50, s50, s46')
        a(f's_mul_i32 s50, s50, {128*1152}')
        a('buffer_load_dword v37, v34, s[20:23], s50 offen')
        a('v_readfirstlane_b32 s50, v30')
        a(f's_mul_i32 s51, s46, {14*8192}')
        a('s_add_u32 s50, s50, s51')
        a('buffer_load_dword v38, v34, s[4:7], s50 offen')
        a('s_mul_i32 s50, s63, 24576')
        a(f's_add_u32 s50, s50, {OSOFF}')
        a('buffer_load_dword v39, v34, s[4:7], s50 offen')
        a('s_mul_i32 s50, s62, 110592')
        a('buffer_load_dword v29, v34, s[8:11], s50 offen')
    a(f's_mul_i32 s24, s46, {3*1024}')
    a(f's_lshl_b32 s25, s46, 11')
    a(f's_add_u32 s25, s25, {48*1024}')
    a('s_movk_i32 s27, 4096'); a('s_movk_i32 s28, 8192')
    cscale = math.log2(math.e) / math.sqrt(128.0)
    a(f's_mov_b32 s60, {f32bits(cscale):#x}')

    def FA(s, t): return F0 + s*44 + 12 + t*4
    def FB(s, mt): return F0 + s*44 + mt*4
    def frag_reads(n):
        s = n % 2
        it = []
        for mt in range(3):
            it.append(f'ds_read_b128 {vr(FB(s,mt),4)}, v{XR+(n&1)} offset:{XS[(n>>1)%3]+mt*2048}')
        for t in range(8):
            for half in range(2):
                it.append(f'ds_read_b64_tr_b16 {vr(FA(s,t)+2*half,2)}, v{WQ+t} offset:{(n%NS)*16384+half*1024}')
        return it
    def mfmas(n):
        s = n % 2; it = []
        for t in range(8):
            for mt in range(3):
                d = vr(QA+(t*3+mt)*4, 4)
                c = '0' if n == 0 else d
                it.append(f'v_mfma_f32_16x16x32_bf16 {d}, {vr(FA(s,t),4)}, {vr(FB(s,mt),4)}, {c}')
        return it
    set0 = [F0 + 4*i for i in range(11)]
    set1 = [F0 + 44 + 4*i for i in range(11)]
    def tile(t, mt): return QA + (t*3+mt)*4
    KFt = set0 + [SP]
    PB = SP + 8; TM = SP + 26
    odd = [tile(t, mt) for t in (1, 3, 5, 7) for mt in range(3)]
    VF32t = odd[:8]; VF16t = [odd[8 + (t >> 1)] + 2*(t & 1) for t in range(8)]
    SA = F0 + 44
    QX = [F0 + 80]
    def kf(kt, s): return KFt[kt*4+s]
    def v_addrs(): return [f'v_xor_b32 v{WQ+t}, {t*32}, v{VRD}' for t in range(8)]
    def k_reads():
        it = []
        for s in range(4):
            for kt in range(3):
                r = kf(kt, s)
                it.append(f'ds_read_b64 {vr(r,2)}, v{WQ+8+2*s} offset:{kt*16384}')
                it.append(f'ds_read_b64 {vr(r+2,2)}, v{WQ+8+2*s+1} offset:{kt*16384}')
        return it
    def v_reads():
        it = []
        for t in range(8):
            it.append(f'ds_read_b64_tr_b16 {vr(VF32t[t],2)}, v{WQ+t} offset:{VT[0]-VB}')
            it.append(f'ds_read_b64_tr_b16 {vr(VF32t[t]+2,2)}, v{WQ+t} offset:{VT[1]-VB}')
        for t in range(8):
            it.append(f'ds_read_b64_tr_b16 {vr(VF16t[t],2)}, v{WQ+t} offset:{VT[2]-VB}')
        return it
    a(f's_setprio {o.get("cprio", 2)}')
    a('s_barrier')
    st_()
    em(a, frag_reads(0))
    for n in range(17):
        a.comment(f'--- kstep {n}')
        a('s_waitcnt lgkmcnt(0)' if n != 3 else 's_waitcnt vmcnt(0) lgkmcnt(0)')
        if n == 3: a.vm = []
        a('s_barrier')
        if n in (3, 8, 13): st_()
        interleave(a, mfmas(n), frag_reads(n+1), ratio=1.0)
    def qb(s, qt): return tile(2*s, qt)
    def cvt_q(qt):
        it = []
        for s in range(4):
            for hh in range(2):
                d = QA + ((2*s+hh)*3+qt)*4
                it.append(f'v_cvt_pk_bf16_f32 v{qb(s,qt)+2*hh}, v{d}, v{d+1}')
                it.append(f'v_cvt_pk_bf16_f32 v{qb(s,qt)+2*hh+1}, v{d+2}, v{d+3}')
        return it
    def sa(kt, qt): return SA + (qt*3+kt)*4
    def s_mfma(qt):
        it = []
        for s in range(4):
            for kt in range(3):
                d = vr(sa(kt,qt), 4)
                c = '0' if s == 0 else d
                it.append(f'v_mfma_f32_16x16x32_bf16 {d}, {vr(kf(kt,s),4)}, {vr(qb(s,qt),4)}, {c}')
        return it
    def softmax(qt):
        b = sa(0, qt); m = TM + 2*qt; t = m + 1
        it = []
        it.append(f'v_max3_f32 v{m}, v{b}, v{b+1}, v{b+2}')
        it.append(f'v_max3_f32 v{t}, v{b+3}, v{b+4}, v{b+5}')
        it.append(f'v_max3_f32 v{m}, v{m}, v{b+6}, v{b+7}')
        it.append(f'v_max3_f32 v{t}, v{t}, v{b+8}, v{b+9}')
        it.append(f'v_max3_f32 v{m}, v{m}, v{b+10}, v{b+11}')
        it.append(f'v_max_f32 v{m}, v{m}, v{t}')
        for sw in ('v_permlane32_swap_b32', 'v_permlane16_swap_b32'):
            it.append(f'v_mov_b32 v{t}, v{m}')
            it.append(f'{sw} v{m}, v{t}')
            it.append(f'v_max_f32 v{m}, v{m}, v{t}')
        it.append(f'v_mul_f32 v{m}, s60, v{m}')
        pk = o.get('pk')
        if pk:
            for j in range(0, 12, 2): it.append(f'v_pk_fma_f32 {vr(b+j,2)}, {vr(b+j,2)}, s[60:61], {vr(m,2)} op_sel_hi:[1,0,0] neg_lo:[0,0,1] neg_hi:[0,0,1]')
        else:
            for j in range(12): it.append(f'v_fma_f32 v{b+j}, v{b+j}, s60, -v{m}')
        for j in range(12): it.append(f'v_exp_f32 v{b+j}, v{b+j}')
        if pk:
            it.append(f'v_pk_add_f32 {vr(m,2)}, {vr(b,2)}, {vr(b+2,2)}')
            for j in range(4, 12, 2): it.append(f'v_pk_add_f32 {vr(m,2)}, {vr(m,2)}, {vr(b+j,2)}')
        else:
            it.append(f'v_add_f32 v{m}, v{b}, v{b+1}')
            it.append(f'v_add_f32 v{t}, v{b+2}, v{b+3}')
            for j in range(4, 12, 2):
                it.append(f'v_add_f32 v{m}, v{m}, v{b+j}')
                it.append(f'v_add_f32 v{t}, v{t}, v{b+j+1}')
        it.append(f'v_add_f32 v{m}, v{m}, v{t}')
        for sw in ('v_permlane32_swap_b32', 'v_permlane16_swap_b32'):
            it.append(f'v_mov_b32 v{t}, v{m}')
            it.append(f'{sw} v{m}, v{t}')
            it.append(f'v_add_f32 v{m}, v{m}, v{t}')
        it.append(f'v_rcp_f32 v{m}, v{m}')
        if pk:
            for j in range(0, 12, 2): it.append(f'v_pk_mul_f32 {vr(b+j,2)}, {vr(b+j,2)}, {vr(m,2)} op_sel_hi:[1,0]')
        else:
            for j in range(12): it.append(f'v_mul_f32 v{b+j}, v{b+j}, v{m}')
        for j in range(6): it.append(f'v_cvt_pk_bf16_f32 v{PB+qt*6+j}, v{b+2*j}, v{b+2*j+1}')
        return it
    X0 = KFt[:8]
    X1 = KFt[8:12] + [sa(0,0), sa(1,0), sa(2,0)] + QX[:1]
    def oa(t, qt): return (X0, X1, X0)[qt][t]
    def pv_mfma(qt):
        it = []; pp = PB + qt*6
        for t in range(8):
            d = vr(oa(t,qt), 4)
            it.append(f'v_mfma_f32_16x16x32_bf16 {d}, {vr(VF32t[t],4)}, {vr(pp,4)}, 0')
        for t in range(8):
            d = vr(oa(t,qt), 4)
            it.append(f'v_mfma_f32_16x16x16_bf16 {d}, {vr(VF16t[t],2)}, {vr(pp+4,2)}, {d}')
        return it
    def o_pack(qt, giver):
        it = []
        for s in range(4):
            r = qb(s, qt)
            for hh in range(2):
                d = oa(2*s+hh, qt)
                it.append(f'v_cvt_pk_bf16_f32 v{r+2*hh}, v{d}, v{d+1}')
                it.append(f'v_cvt_pk_bf16_f32 v{r+2*hh+1}, v{d+2}, v{d+3}')
            if not giver: it.append(f'ds_write_b128 v{OXW}, {vr(r,4)} offset:{(qt*4+s)*1024}')
        return it
    def o_give():
        return [(f'buffer_store_dwordx4 {vr(qb(s,qt),4)}, v{GF}, s[4:7], {["0","s27","s28"][qt]} offen offset:{s*1024}{"" if o.get("loc") == "2" else CO}', ('G', 0)) for qt in range(3) for s in range(4)]
    def zipl(*ls):
        out = []; n = max(len(x) for x in ls)
        for i in range(n):
            for x in ls:
                if i < len(x): out.append(x[i])
        return out
    a('s_waitcnt lgkmcnt(0)')
    a('s_barrier')
    st_()
    m17 = mfmas(17)
    m17 = [m17[t*3+mt] for mt in range(3) for t in range(8)]
    kr = k_reads()
    interleave(a, m17[:12], zipl(kr[:12], v_addrs()), ratio=2)
    interleave(a, m17[12:24], zipl(kr[12:], cvt_q(0)[:12]), ratio=2)
    em(a, cvt_q(0)[12:])
    sm0, sm1, sm2 = softmax(0), softmax(1), softmax(2)
    a('s_waitcnt lgkmcnt(6)')
    s0 = s_mfma(0)
    interleave(a, s0[:9], cvt_q(1), ratio=2)
    a('s_waitcnt lgkmcnt(0)')
    interleave(a, s0[9:] + s_mfma(1)[:5], cvt_q(2), ratio=2)
    NB = int(o.get('smb', 40))
    SL = len(sm0); C1 = int(o.get('c1', 40 if SL > 60 else 38)); C2 = SL - C1
    seq = sm0[:C1] + zipl(sm0[C1:], sm1[:C2]) + zipl(sm1[C2:], sm2[:C1])
    interleave(a, s_mfma(1)[5:] + s_mfma(2), seq[:NB], ratio=2)
    st_()
    a('s_barrier')
    st_()
    rest = seq[NB:]
    n1 = max(C1 + 2*C2 - NB, min(48, len(rest) - 32), 0)
    interleave(a, v_reads(), rest[:min(48, n1)], ratio=2)
    a('s_waitcnt lgkmcnt(0)')
    a('s_barrier')
    em(a, rest[min(48, n1):n1])
    interleave(a, pv_mfma(0), rest[n1:], ratio=2)
    a('s_cmp_eq_u32 s57, 1')
    a('s_cbranch_scc1 GIVER')
    hist = list(a.hist)
    for giver in (0, 1):
        if giver:
            a.label('GIVER'); a.hist = list(hist)
        z = zipl(sm2[C1:], o_pack(0, giver))
        interleave(a, pv_mfma(1), z, ratio=2)
        GS = int(o.get('gs', 0))
        og = o_give()
        interleave(a, pv_mfma(2), (og[:min(GS,4)] if giver else []) + o_pack(1, giver), ratio=1.25)
        if giver: em(a, og[4:GS])
        em(a, o_pack(2, giver))
        if not giver:
            a('s_waitcnt lgkmcnt(0)')
            a('s_branch ATT_END')
    a.label('ATT_END')
    st_()
    a('s_barrier')
    if fine: st_.on = True
    st_()
    AFR = 8; AD = 5; LA = 4
    ACCG = [28, 52, 76, 100, 124, 136, 148, 40, 64]
    BF = 160
    def bf(k, mt): return BF + (k*3+mt)*4
    def acc(r, mt): return ACCG[r] + mt*4
    NK = 144
    def a_reads(n):
        k = n % 8
        d = AFR + (n % AD)*4
        return [f'ds_read_b64_tr_b16 {vr(d+2*half,2)}, v{AR} offset:{k*4096+half*2048}' for half in range(2)]
    def b_reads(k, base=0):
        return [f'ds_read_b128 {vr(bf(k,mt),4)}, v{OX0} offset:{base+(k>>2)*12288+(mt*4+(k&3))*1024}' for mt in range(3)]
    def o_mfmas(n):
        u, k = n // 8, n % 8
        it = []
        for mt in range(3):
            d = vr(acc(blk_of(u), mt), 4)
            c = '0' if (k == 0 and (u < 8 or u == 16)) else d
            it.append(f'v_mfma_f32_16x16x32_bf16 {d}, {vr(AFR+(n%AD)*4,4)}, {vr(bf(k,mt),4)}, {c}')
        return it
    def p_pack(r):
        it = []
        for mt in range(3):
            d = acc(r, mt); q = acc(r, 0) + 2*mt
            q0, q1 = (q, q+1) if not X3 else [(acc(r,0), acc(r,0)+1), (acc(r,0)+2, acc(r,0)+4), (acc(r,0)+5, acc(r,0)+6)][mt]
            it.append(f'v_cvt_pk_bf16_f32 v{q0}, v{d}, v{d+1}')
            it.append(f'v_cvt_pk_bf16_f32 v{q1}, v{d+2}, v{d+3}')
        return it
    def b_store(t):
        if X3:
            return [f's_mov_b32 s26, {t*6144}',
                (f'buffer_store_dwordx3 {vr(acc(t,0),3)}, v1, s[4:7], s26 offen{CO}', ('P', t)),
                (f'buffer_store_dwordx3 {vr(acc(t,0)+4,3)}, v1, s[4:7], s26 offen offset:768{CO}', ('P', t))]
        return [f's_mov_b32 s26, {t*6144}',
                (f'buffer_store_dwordx4 {vr(acc(t,0),4)}, v{PO}, s[4:7], s26 offen{CO}', ('P', t)),
                (f'buffer_store_dwordx2 {vr(acc(t,0)+4,2)}, v1, s[4:7], s26 offen offset:1024{CO}', ('P', t))]
    def flag(mask, upto):
        def f():
            a.wait_vm(lambda t: t[0] == 'P' and t[1] <= upto)
            a(f's_mov_b64 exec, {mask:#x}')
            a(f'buffer_store_dword v{ONE}, v{FL}, s[4:7], 0 offen{CO}', ('F', upto))
            a('s_mov_b64 exec, -1')
        return f
    def gflag():
        a('s_waitcnt vmcnt(0)'); a.vm = []
        a(f'buffer_store_dword v{ONE}, v{GF}, s[4:7], 0 offen{CO}', ('F', 9))
    lq = []
    def ds(x, tag):
        a(x); lq.append(tag)
    def need(tags):
        idx = max((i for i, t in enumerate(lq) if t in tags), default=-1)
        if idx < 0: return
        n = len(lq) - 1 - idx
        a(f's_waitcnt lgkmcnt({min(n, 15)})')
        del lq[:idx+1]
    for n in range(LA):
        for x in a_reads(n): ds(x, ('A', n))
        for x in b_reads(n): ds(x, ('B', n))
    LASTB = int(o.get('lastb', 15))
    ER = 1
    assert LASTB >= 14
    GU = int(o.get('gu', 1))
    SA_, SB_ = int(o.get('sa', 13)), int(o.get('sb', 15))
    FA_, FB_ = int(o.get('fa', 14)), int(o.get('fb', 16))
    STU = [int(x) for x in str(o.get('stu', '13,13,13,13,15,15,16,17')).split(',')]
    assert all(su >= t + 9 for t, su in enumerate(STU)) and FA_ <= LASTB
    for u in range(18):
        a.comment(f'--- half-round {u}')
        oth = {g: [] for g in range(24)}
        g = 3
        if 9 <= u <= 16:
            for x in p_pack(u-9):
                oth[g].append(x); g += 1
        if u == FB_: oth[1].append(flag(0x30, 5))
        if u == 17 and o.get('f6'): oth[int(o['f6'])].append(flag(0x40, 6))
        if u == 0:
            for j, x in enumerate(o_give()[GS:]): oth[j].append(x)
        st = []
        for t, su in enumerate(STU):
            if su == u: st += b_store(t)
        g = max(g, int(o.get('sg', 0)))
        for x in st:
            oth[g].append(x)
            if not isinstance(x, str): g += 1
        for k in range(8):
            n = u*8 + k
            need({('A', n), ('B', n)} | ({('A', n+3)} if (k == 4 and u <= LASTB and ER) else set()))
            if k == 4 and u < 17:
                if u <= LASTB:
                    if u == GU: a('s_waitcnt vmcnt(0)'); a.vm = []
                    if u == FA_: a.wait_vm(lambda t: t[0] == 'P' and t[1] <= 3)
                    a('s_barrier')
                    if (u in (3, 9) and not fine) or (fine and u >= 2): st_()
                dlt = SL2[u+1] - SL2[u]
                a(f'v_add_u32 v{AR}, {dlt & 0xffffffff:#x}, v{AR}')
            rd = []
            if n + LA < NK: rd += [(x, ('A', n+LA)) for x in a_reads(n+LA)]
            if n + LA < 8: rd += [(x, ('B', n+LA)) for x in b_reads(n+LA)]
            if 57 <= n <= 64: rd += [(x, ('B', n+7)) for x in b_reads(n-57, B_)]
            if 129 <= n <= 136: rd += [(x, ('B', n+7)) for x in b_reads(n-129)]
            for i, m in enumerate(o_mfmas(n)):
                a(m)
                take = rd[:2] if len(rd) > 3 - i else rd[:1]
                rd = rd[len(take):]
                for x, tg in take: ds(x, tg)
                em(a, oth[k*3+i])
            assert not rd
    a('s_mul_i32 s50, s46, 3072')
    a(f's_add_u32 s50, s50, {B_ if o.get("is3") else SL2[14]}')
    a(f'v_add_u32 v{AR}, s50, v{OX0}')
    a('s_lshl_b32 s50, s46, 2')
    a(f's_add_u32 s50, s50, {LFLAG}')
    a(f'v_mov_b32 v{GF}, s50')
    for mt in range(3): a(f'ds_write_b128 v{AR}, {vr(acc(8,mt),4)} offset:{mt*1024}')
    a(f'ds_write_b32 v{GF}, v{ONE}')
    st_()
    a('s_lshr_b32 s47, s43, 1')
    a('s_lshl_b32 s48, s46, 1')
    a('s_cmp_eq_u32 s47, s48')
    a('s_cbranch_scc1 C_DUTY')
    vm_ = list(a.vm)
    flag(0x80 if o.get('f6') else 0xc0, 7)()
    a('s_branch C_DONE')
    a.label('C_DUTY')
    a.vm = vm_
    a('s_add_u32 s57, s61, 4096')
    a('s_load_dwordx8 s[32:39], s[40:41], s57 glc')
    a(f'v_mov_b32 v8, v{ONE}')
    ONE = 8
    lane_ids(a)
    a('s_mov_b32 s47, 8')
    red_setup(a, 47)
    flag(0x80 if o.get('f6') else 0xc0, 7)()
    def t_all():
        a('s_and_b64 s[16:17], s[32:33], s[34:35]')
        a('s_and_b64 s[18:19], s[36:37], s[38:39]')
        a('s_and_b64 s[16:17], s[16:17], s[18:19]')
        a('s_and_b32 s16, s16, s17')
    spoll(a, 'CS', t_all)
    for pq in range(8):
        if pq: a(f's_add_u32 s56, s56, {PSTR}')
        ld6(a, 32 + 6*pq, 's56', ('R', pq))
    for pq in range(8):
        a.wait_vm(lambda t: t == ('R', pq))
        sum6(a, 16, 32 + 6*pq, pq == 0)
    red_out(a, 16, o)
    a.label('C_DONE')
    st_.dump(40, 41, 0, 3)
    a('s_endpgm')

    h = Asm()
    sh = Stamps(h, ts, tsmode); sh.n = 1; sh.on = False
    h.label('HELPER')
    if o.get('hprio'): h(f's_setprio {o["hprio"]}')
    WO = 8; XO = 12; KO = 16; VO = 20; OW = 24; AT = 30; PV_ = 32; CV = 33; PA = 34; PD = 35; ZA = 36
    h('s_lshl_b32 s47, s3, 1')
    h('s_add_u32 s47, s47, s44')
    modn(h, 47, 48, 9)
    h('s_mov_b32 s60, s47')
    h('s_and_b32 s48, s46, 1')
    h('s_lshl_b32 s48, s48, 17')
    h('s_lshl_b32 s49, s43, 1')
    h('s_lshr_b32 s50, s46, 1')
    h('s_add_u32 s49, s49, s50')
    h('s_lshl_b32 s49, s49, 8')
    h('s_add_u32 s48, s48, s49')
    h(f'v_lshlrev_b32 v{T0}, 13, v{G}')
    h(f'v_add_u32 v{T0}, s48, v{T0}')
    h(f'v_lshlrev_b32 v{T1}, 1, v{G}')
    h(f'v_xor_b32 v{T1}, v{T1}, v{I}')
    h(f'v_lshlrev_b32 v{T1}, 4, v{T1}')
    h(f'v_xor_b32 v{T2}, 128, v{T1}')
    h(f'v_add_u32 v{T1}, v{T0}, v{T1}')
    h(f'v_add_u32 v{T2}, v{T0}, v{T2}')
    for q in range(4):
        h(f'v_add_u32 v{WO+q}, {4*q*8192 - q*1024}, v{T1 if (q >> 1) == 0 else T2}')
    h('s_mul_i32 s48, s44, 96')
    h('s_mul_i32 s49, s46, 24')
    h('s_add_u32 s48, s48, s49')
    h('s_mul_i32 s48, s48, 1152')
    h(f'v_lshrrev_b32 v{T0}, 3, v{L}')
    h(f'v_mul_u32_u24 v{T0}, 1152, v{T0}')
    h(f'v_add_u32 v7, s48, v{T0}')
    h(f'v_and_b32 v{T1}, 7, v{L}')
    h(f'v_xor_b32 v{T1}, v{T1}, v{G}')
    h('s_and_b32 s49, s46, 1')
    h('s_lshl_b32 s49, s49, 2')
    h(f'v_xor_b32 v{T1}, s49, v{T1}')
    h(f'v_lshlrev_b32 v{T1}, 4, v{T1}')
    h(f'v_xor_b32 v{T2}, 64, v{T1}')
    h(f'v_add_u32 v{T1}, v7, v{T1}')
    h(f'v_add_u32 v{T2}, v7, v{T2}')
    for pp in range(3):
        h(f'v_add_u32 v{XO+pp}, {pp*9216 - pp*1024}, v{T1 if pp % 2 == 0 else T2}')
    h('s_lshl_b32 s56, s46, 12')
    h('s_lshl_b32 s57, s46, 13')
    h('s_mul_i32 s58, s46, 3072')
    h('s_waitcnt lgkmcnt(0)')
    h('s_cmp_eq_u32 s42, 0')
    h('s_cselect_b64 s[24:25], s[24:25], s[32:33]')
    h('s_cselect_b64 s[26:27], s[26:27], s[34:35]')
    h('s_cselect_b64 s[28:29], s[28:29], s[36:37]')
    h('s_cselect_b64 s[30:31], s[30:31], s[38:39]')
    h('s_cselect_b64 s[32:33], s[20:21], s[22:23]')
    h(f's_mov_b32 s59, {KV_B}')
    h(f's_cselect_b32 s59, {KV_A}, s59')
    srd(h, 4, 24, 25, X_BYTES)
    srd(h, 8, 30, 31, W_BYTES)
    sh()
    def x_chunk(c, pieces=(0, 1, 2)):
        it = []
        it.append('s_lshl_b32 s48, s60, 7')
        it.append(f's_add_u32 m0, s58, {XREG + XS[c % 3]}')
        for pp in pieces:
            it.append((f'buffer_load_dwordx4 v{XO+pp}, s[4:7], s48 offen offset:{pp*1024}{M("x")} lds', ('X', c)))
        if 2 in pieces:
            it.append('s_add_u32 s60, s60, 1')
            it.append('s_cmp_eq_u32 s60, 9')
            it.append('s_cselect_b32 s60, 0, s60')
        return it
    def dma_stage(n):
        it = []
        it.append('s_lshl_b32 s49, s47, 19')
        if n & 1: it.append(f's_add_u32 s49, s49, {32*8192}')
        it.append(f's_add_u32 m0, s56, {QS + (n % NS)*16384}')
        for q in range(4):
            it.append((f'buffer_load_dwordx4 v{WO+q}, s[8:11], s49 offen offset:{q*1024}{M("wq")} lds', ('S', n)))
        if n & 1:
            it.append('s_add_u32 s47, s47, 1')
            it.append('s_cmp_eq_u32 s47, 9')
            it.append('s_cselect_b32 s47, 0, s47')
        return it
    em(h, x_chunk(0)); em(h, dma_stage(0)); em(h, dma_stage(1))
    srd(h, 12, 26, 27, 's59')
    srd(h, 16, 28, 29, 's59')
    srd(h, 20, 32, 33, W_BYTES)
    srd(h, 36, 54, 55, 256)
    srd(h, 28, 40, 41, WS_BYTES)
    h('s_lshl_b32 s51, s44, 1')
    h('s_lshr_b32 s50, s46, 1')
    h('s_add_u32 s51, s51, s50')
    h('s_lshl_b32 s50, s43, 1')
    h('s_and_b32 s59, s46, 1')
    h('s_add_u32 s50, s50, s59')
    h('s_cmp_eq_u32 s42, 0')
    h('s_cselect_b32 s59, 4, 5')
    h('s_cselect_b32 s50, s43, s50')
    h('s_lshl_b32 s51, s51, s59')
    h('s_add_u32 s51, s51, s50')
    h('s_mul_i32 s51, s51, 12288')
    h(f'v_lshlrev_b32 v7, 8, v{G}')
    h(f'v_add_u32 v7, s51, v7')
    h(f'v_xor_b32 v{T1}, v{I}, v{G}')
    h(f'v_lshlrev_b32 v{T1}, 4, v{T1}')
    for q in range(4):
        h(f'v_xor_b32 v{T2}, {q*64}, v{T1}')
        h(f'v_add_u32 v{KO+q}, v7, v{T2}')
    h(f'v_lshlrev_b32 v{T1}, 1, v{G}')
    h(f'v_xor_b32 v{T1}, v{I}, v{T1}')
    h(f'v_lshlrev_b32 v{T1}, 4, v{T1}')
    h(f'v_add_u32 v{VO}, v7, v{T1}')
    h(f'v_xor_b32 v{T1}, 128, v{T1}')
    h(f'v_add_u32 v{VO+1}, v7, v{T1}')
    h(f'v_cmp_eq_u32 vcc, 256, v0')
    h('s_lshr_b32 s50, s63, 4')
    h('s_lshl_b32 s50, s50, 4')
    h(f'v_mov_b32 v{ZA}, s50')
    h(f'v_mov_b32 v{T2}, {OOB:#x}')
    h(f'v_cndmask_b32 v{AT}, v{T2}, v{ZA}, vcc')
    h(f'v_mov_b32 v{AT+1}, 1')
    h('s_xor_b32 s50, s63, 1')
    h('s_lshl_b32 s51, s50, 7')
    h(f's_add_u32 s51, s51, {GOFF}')
    h(f'v_and_b32 v{T1}, 1, v{L}')
    h(f'v_lshlrev_b32 v{T1}, 2, v{T1}')
    h(f'v_add_u32 v{PA}, s51, v{T1}')
    if o.get('loc'):
        h('s_lshl_b32 s50, s42, 4')
        h('s_add_u32 s50, s50, s62')
        h('s_lshl_b32 s50, s50, 3')
        h('s_lshr_b32 s51, s43, 1')
        h('s_add_u32 s50, s50, s51')
        h(f's_mul_i32 s50, s50, {NBLK*1024}')
        h('s_mul_i32 s51, s46, 6144')
        h('s_add_u32 s50, s50, s51')
    else:
        h('s_mul_i32 s50, s50, 24576')
        h('s_mul_i32 s51, s46, 6144')
        h('s_add_u32 s50, s50, s51')
        h(f's_add_u32 s50, s50, {OSOFF}')
    h(f'v_lshlrev_b32 v{T1}, 4, v{L}')
    h(f'v_add_u32 v{PD}, s50, v{T1}')
    h('s_movk_i32 s34, 4096')
    h('s_movk_i32 s35, 8192')
    def kv_tile(which, tile):
        it = []
        base = KREG + tile*16384 if which == 0 else VT[tile]
        sr = 12 if which == 0 else 16
        so = ['0', 's34', 's35'][tile]
        it.append(f's_add_u32 m0, s56, {base}')
        for q in range(4):
            vo = KO + q if which == 0 else VO + (q & 1)
            it.append((f'buffer_load_dwordx4 v{vo}, s[{sr}:{sr+3}], {so} offen offset:{q*1024}{M("kv")} lds', ('K' if which == 0 else 'V', tile)))
        return it
    h('s_lshl_b32 s51, s46, 6')
    h('s_mul_i32 s51, s51, 1152')
    h(f'v_add_u32 v{T0}, s51, v{T0}')
    h(f'v_and_b32 v{T1}, 7, v{L}')
    h(f'v_lshlrev_b32 v{T2}, 1, v{G}')
    h(f'v_xor_b32 v{T1}, v{T1}, v{T2}')
    h(f'v_lshl_add_u32 v{T0}, v{T1}, 4, v{T0}')
    for q in range(4):
        h(f'v_add_u32 v{OW+q}, {q*8192}, v{T0}')
    h('s_lshr_b32 s61, s43, 1')
    for t in range(9):
        if t == 0: h('s_add_u32 s50, s44, 8')
        else:
            h(f's_add_u32 s50, s61, {t}')
            h('s_and_b32 s50, s50, 7')
            h('s_add_u32 s50, s50, s44')
        modn(h, 50, 51, 9)
        h(f's_lshl_b32 s{CB0+t}, s50, 7')
    h(f's_mul_i32 s32, s43, {256*1152}')
    h('s_xor_b32 s33, s43, 1')
    h(f's_mul_i32 s33, s33, {256*1152}')
    def wo_half(u):
        slot = SL2[u]
        it = []
        it.append(f's_add_u32 s48, s{CB0 + blk_of(u)}, s{32 if (u < 8 or u == 17) else 33}')
        it.append(f's_add_u32 s49, s48, {32*1152}')
        it.append(f's_add_u32 m0, s57, {slot}')
        for q in range(4):
            it.append((f'buffer_load_dwordx4 v{OW+q}, s[20:23], s48 offen offset:{q*1024}{M("wo")} lds', ('W', u)))
        it.append(f's_add_u32 m0, s57, {slot+4096}')
        for q in range(4):
            it.append((f'buffer_load_dwordx4 v{OW+q}, s[20:23], s49 offen offset:{q*1024}{M("wo")} lds', ('W', u)))
        return it
    spf = str(o.get('spf', ''))
    pf = []
    if 'w' in spf:
        h('s_lshl_b32 s50, s46, 6')
        h('s_mul_i32 s50, s50, 1152')
        h('s_add_u32 s50, s50, s32')
        h(f's_add_u32 s50, s50, s{CB0}')
        h('s_add_u32 s24, s20, s50'); h('s_addc_u32 s25, s21, 0')
        h('s_lshl_b32 s50, s44, 2')
        h('s_add_u32 s50, s50, s46')
        h(f's_mul_i32 s50, s50, {8*1152}')
        h('s_add_u32 s50, s50, s32')
        h('s_add_u32 s26, s20, s50'); h('s_addc_u32 s27, s21, 0')
        pf += [f's_load_dword s{96 + (i % 4)}, s[26:27], {(i >> 1)*1152 + 896 + (i & 1)*64}' for i in range(16)]
        pf += [f's_load_dword s{96 + (i % 4)}, s[24:25], {(i >> 1)*1152 + (i & 1)*64}' for i in range(128)]
    npf = int(o.get('npf', 5)); pf0 = int(o.get('pf0', 0))
    em(h, x_chunk(1)); em(h, dma_stage(2))
    n9 = []
    if o.get('c9'):
        h('s_lshl_b32 s50, s3, 1')
        h('s_add_u32 s50, s50, 8')
        modn(h, 50, 51, 9)
        h('s_lshl_b32 s50, s50, 6')
        h('s_lshl_b32 s51, s44, 3')
        h('s_add_u32 s50, s50, s51')
        h('s_lshl_b32 s51, s46, 1')
        h('s_add_u32 s50, s50, s51')
        h('s_lshl_b32 s50, s50, 13')
        h('s_lshl_b32 s51, s43, 9')
        h('s_add_u32 s50, s50, s51')
        h('s_add_u32 s92, s8, s50'); h('s_addc_u32 s93, s9, 0')
        for i in range(14): h(f's_load_dword s{96 + (i % 4)}, s[92:93], {(i >> 3)*8192 + (i & 7)*64}')
        n9 += [f's_load_dword s{96 + (i % 4)}, s[92:93], {(i >> 3)*8192 + (i & 7)*64}' for i in range(14, 16)]
        h('s_add_u32 s50, s44, 8')
        modn(h, 50, 51, 9)
        h('s_lshl_b32 s50, s50, 7')
        h('s_mul_i32 s51, s44, 96')
        h('s_mul_i32 s59, s3, 24')
        h('s_add_u32 s51, s51, s59')
        h('s_mul_i32 s59, s46, 6')
        h('s_add_u32 s51, s51, s59')
        h('s_mul_i32 s51, s51, 1152')
        h('s_add_u32 s50, s50, s51')
        h('s_add_u32 s94, s4, s50'); h('s_addc_u32 s95, s5, 0')
        n9 += [f's_load_dword s{96 + (i % 4)}, s[94:95], {(i >> 1)*1152 + (i & 1)*64}' for i in range(12)]
    sh()
    if o.get('pfl'): em(h, pf[:int(o['pfl'][0], 16)])
    h.wait_vm(lambda t: t == ('S', 0))
    h('s_barrier')
    if o.get('pfl'): em(h, pf[int(o['pfl'][0], 16):int(o['pfl'][0], 16)+int(o['pfl'][1], 16)])
    em(h, n9)
    if NS > 3: em(h, dma_stage(3))
    em(h, x_chunk(2))
    kats = [int(x) for x in str(o.get('kat', '8')).split(',')]
    vm0 = list(h.vm)
    if len(kats) > 1:
        if o.get('vsel') == 'h':
            h('s_lshr_b32 s59, s43, 1'); h('s_add_u32 s59, s59, s44'); h(f's_and_b32 s59, s59, {len(kats)-1}')
        else: h(f's_and_b32 s59, s44, {len(kats)-1}')
        for vi in range(1, len(kats)):
            h(f's_cmp_eq_u32 s59, {vi}')
            h(f's_cbranch_scc1 HQ{vi}')
    n0 = sh.n
    for vi, kat in enumerate(kats):
        h.vm = list(vm0); sh.n = n0
        if vi: h.label(f'HQ{vi}')
        for n in range(17):
            h.wait_vm(lambda t: t == ('S', n+1) or t == ('X', (n+1) >> 1))
            h('s_barrier')
            if n in (3, 8, 13): sh()
            if n == 3:
                h('s_cmp_lg_u32 s46, 0')
                h(f's_cbranch_scc1 H_NOCNT{vi}')
                h('s_lshr_b32 s50, s63, 4')
                h('s_lshl_b32 s50, s50, 4')
                h('s_mov_b32 s100, 1')
                h('s_atomic_add s100, s[54:55], s50')
                h.label(f'H_NOCNT{vi}')
            if n + NS <= 17: em(h, dma_stage(n+NS))
            if o.get('xs'):
                XA = (0,) if o['xs'] == '1' else (0, 1)
                XB = tuple(p for p in (0, 1, 2) if p not in XA)
                if (n & 1) and (n >> 1) + 3 <= 8: em(h, x_chunk((n >> 1) + 3, XA))
                if n >= 2 and not (n & 1) and (n >> 1) + 2 <= 8: em(h, x_chunk((n >> 1) + 2, XB))
            elif (n & 1) and (n >> 1) + 3 <= 8: em(h, x_chunk((n >> 1) + 3))
            if o.get('kall'):
                if n == kat:
                    for tile in range(3): em(h, kv_tile(0, tile))
            elif kat <= n < kat + 3: em(h, kv_tile(0, n - kat))
            if o.get('ve'):
                vat = [int(x) for x in o['ve'].split(',')][vi]
                if n == vat: em(h, kv_tile(1, 0))
                if n == int(o.get('v1', 14)): em(h, kv_tile(1, 1))
                if n == 15: em(h, kv_tile(1, 2))
            elif n >= 14: em(h, kv_tile(1, n - 14))
            if o.get('pfl'):
                cnts = [int(c, 16) for c in o['pfl']]
                st0 = sum(cnts[:n+2]); em(h, pf[st0:st0+cnts[n+2]])
            elif pf0 <= n <= int(o.get('pf1', 16)): em(h, pf[(n-pf0)*npf:(n-pf0+1)*npf])
        h.wait_vm(lambda t: t[0] == 'K')
        assert all(t[0] == 'V' for t in h.vm), h.vm
        h.vm = [('V', 0)]*12
        if vi + 1 < len(kats): h('s_branch HQ_END')
    h.label('HQ_END')
    sh()
    h('s_barrier')
    cload = f'buffer_load_dword v{CV}, v{ZA}, s[36:39], 0 offen{CO}'
    h(cload, ('C', 0))
    em(h, wo_half(0))
    h.wait_vm(lambda t: t[0] == 'V')
    sh()
    h('s_barrier')
    h('s_barrier')
    em(h, wo_half(1)); em(h, wo_half(2))
    h.wait_vm(lambda t: t == ('W', 0))
    if int(o.get('w3early', 0)): em(h, wo_half(3))
    sh()
    h('s_barrier')
    check_or_poll(h, 'HC', cload, CV, 16)
    if not int(o.get('w3early', 0)): em(h, wo_half(3))
    PI, PC = int(o.get('pi', 3)), int(o.get('pc', 4))
    h('s_lshl_b32 s24, s63, 7')
    h(f's_add_u32 s24, s24, {GOFF}')
    h('s_xor_b32 s25, s24, 128')
    h('s_lshl_b32 s26, s42, 4')
    h('s_add_u32 s26, s26, s62')
    h(f's_mul_i32 s26, s26, {36*128}')
    h('s_lshl_b32 s27, s46, 7')
    h('s_add_u32 s26, s26, s27')
    h(f's_add_u32 s26, s26, {FOFF}')
    h('s_lshl_b32 s27, s46, 2')
    h(f's_add_u32 s27, s27, {LFLAG}')
    h(f'v_mov_b32 v37, s27'); h('v_mov_b32 v38, 0')
    h('ds_write_b32 v37, v38')
    h('s_mov_b32 s100, 1')
    assert GOFF % 256 == 0
    def tail_setup():
        if o.get('rprio'): h(f's_setprio {o["rprio"]}')
        srd(h, 4, 40, 41, WS_BYTES)
        srd(h, 8, 52, 53, OUT_BYTES)
        h('s_lshl_b32 s57, s61, 9')
        h('s_add_u32 s57, s57, s26')
        h('s_load_dwordx8 s[32:39], s[40:41], s57 glc')
        red_setup(h, 61)
        for t in range(1, 8):
            h(f's_sub_u32 s58, s61, {t}')
            h('s_and_b32 s58, s58, 7')
            h(f's_mul_i32 s58, s58, {PSTR}')
            h('s_add_u32 s58, s58, s56')
            h(f's_add_u32 s{CB0+t}, s58, {t*6144}')
        h('s_mul_i32 s58, s46, 3072')
        h(f's_add_u32 s58, s58, {B_ if o.get("is3") else SL2[14]}')
        h('v_add_u32 v11, s58, v12')
    nxt = 4
    wq_pos = 8
    for u in range(LASTB+1):
        if u < LASTB:
            assert nxt > u+1
            h.wait_vm(lambda t: t == ('W', u+1) or (u == 6 and t[0] == 'O'))
        else:
            assert nxt == 18
            tail_setup()
            h.wait_vm(lambda t: t[0] == 'W')
        h('s_barrier')
        if u == GU:
            h('s_cmp_lg_u32 s46, 0')
            h('s_cbranch_scc1 H_NOG')
            h('s_atomic_add s100, s[40:41], s24')
            h.label('H_NOG')
        if u == FA_:
            h('s_lshl_b32 s27, s61, 2')
            h('s_add_u32 s27, s27, s26')
            h('s_add_u32 s27, s27, 4096')
            h('s_atomic_add s100, s[40:41], s27')
            for t in (1, 2, 3):
                h(f's_add_u32 s27, s61, {t}')
                h('s_and_b32 s27, s27, 7')
                h('s_lshl_b32 s27, s27, 9')
                h('s_add_u32 s27, s27, s26')
                h(f's_add_u32 s27, s27, {t*4}')
                h('s_atomic_add s100, s[40:41], s27')
        if u == PC:
            h('s_mov_b32 s59, 0')
            h.label('HP_POLL')
            h('s_waitcnt lgkmcnt(0)')
            h('s_cmp_ge_u32 s101, 1')
            h('s_cbranch_scc1 HP_GO')
            h('s_load_dword s101, s[40:41], s25 glc')
            h('s_add_u32 s59, s59, 1')
            h('s_cmp_lt_u32 s59, 0x40000')
            h('s_cbranch_scc1 HP_POLL')
            h.label('HP_GO')
            h('s_mul_i32 s48, s46, 6144')
            h(f's_add_u32 s48, s48, {B_}')
            h('s_mov_b32 m0, s48')
            for q in range(4): h(f'buffer_load_dwordx4 v{PD}, s[28:31], 0 offen offset:{q*1024}{CO} lds', ('O', q))
            h('s_add_u32 m0, s48, 4096')
            for q in range(2): h(f'buffer_load_dwordx4 v{PD}, s[28:31], s34 offen offset:{q*1024}{CO} lds', ('O', q))
        if u == PI: h('s_load_dword s101, s[40:41], s25 glc')
        for hh in IS2.get(u, []):
            assert hh == nxt
            em(h, wo_half(hh)); nxt += 1
    assert nxt == 18, nxt
    sh.on = ts
    sh()
    def t_a():
        h('s_and_b32 s16, s33, s34')
        h('s_and_b32 s16, s16, s35')
    spoll(h, 'HA', t_a)
    sh()
    h.vm = []
    for t in (1, 2, 3): ld6(h, 40 + 6*(t-1), f's{CB0+t}', ('R', t))
    def t_b(): h('s_and_b32 s16, s36, s37')
    def t_c(): h('s_and_b32 s16, s38, s39')
    spoll(h, 'HB', t_b)
    ld6(h, 60, f's{CB0+4}', ('R', 4)); ld6(h, 66, f's{CB0+5}', ('R', 5))
    t_c()
    h('s_cselect_b32 s98, 1, 0')
    h('s_cbranch_scc0 HNOC')
    ld6(h, 72, f's{CB0+6}', ('R', 6)); ld6(h, 78, f's{CB0+7}', ('R', 7))
    h.vm = h.vm[:-4]
    h.label('HNOC')
    h('s_load_dwordx8 s[32:39], s[40:41], s57 glc')
    for t in (1, 2, 3, 4, 5):
        h.wait_vm(lambda x: x == ('R', t))
        sum6(h, 16, [0, 40, 46, 52, 60, 66][t], t == 1)
    sh()
    h('s_cmp_lg_u32 s98, 0')
    h('s_cbranch_scc1 HOWN')
    h('s_waitcnt lgkmcnt(0)')
    t_c()
    h('s_cbranch_scc0 HOWN')
    ld6(h, 72, f's{CB0+6}', ('R', 6)); ld6(h, 78, f's{CB0+7}', ('R', 7))
    h('s_mov_b32 s98, 1')
    h.label('HOWN')
    h('s_mov_b32 s59, 0')
    h.label('HL_P')
    h('ds_read_b32 v38, v37')
    h('s_waitcnt lgkmcnt(0)')
    h('v_readfirstlane_b32 s58, v38')
    h('s_add_u32 s59, s59, 1')
    h('s_cmp_lg_u32 s58, 0')
    h('s_cbranch_scc1 HL_G')
    h('s_sleep 1')
    h('s_cmp_lt_u32 s59, 0x400000')
    h('s_cbranch_scc1 HL_P')
    h.label('HL_G')
    for mt in range(3): h(f'ds_read_b128 {vr(40+4*mt,4)}, v11 offset:{mt*1024}')
    h('s_waitcnt lgkmcnt(0)')
    for j in range(12): h(f'v_add_f32 v{16+j}, v{16+j}, v{40+j}')
    sh()
    h('s_cmp_lg_u32 s98, 0')
    h('s_cbranch_scc1 HSUMC')
    spoll(h, 'HC2', t_c)
    ld6(h, 72, f's{CB0+6}', ('R', 6)); ld6(h, 78, f's{CB0+7}', ('R', 7))
    h.label('HSUMC')
    sh()
    h('s_waitcnt vmcnt(2)')
    sum6(h, 16, 72)
    h('s_waitcnt vmcnt(0)'); h.vm = []
    sum6(h, 16, 78)
    sh()
    red_out(h, 16, o)
    sh.dump(40, 41, 0, 3)
    h.label('M_END')
    h('s_endpgm')
    a.label('CODE_END')
    print('main: compute inst', a.ninst, 'nops', a.nops_inserted, 'helper', h.ninst, 'stamps', st_.n, sh.n)
    return p.text() + h.text() + a.text()

DOC = """; ---------------------------------------------------------------------------------------------
;     each of the 8 workgroups of a batch owns one 64-column block of the output (computed last, kept
;     in fp32); bf16 partials of the other blocks go through d_ws to their owners, which sum in fp32.
; ---------------------------------------------------------------------------------------------
"""

if __name__ == '__main__':
    out = sys.argv[1]
    o = dict(x.split('=') if '=' in x else (x, 1) for x in sys.argv[2:])
    SLEEP = int(o.get('sleep', 1))
    X3 = int(o.get('x3', 0))
    if o.get('ve'):
        NS = 3; QS = 114688; VB = 81920; XS = [24576, 0, 12288]; VT = [98304, 81920, 114688]
        A_, C_, D_ = 131072, 65536, 98304
    if o.get('is3'):
        SL2 = [A_, B_, C_, D_] + [(A_, C_, D_)[i % 3] for i in range(14)]
        IS2 = {0: [4]}; IS2.update({u: [u+3] for u in range(2, 15)})
    if o.get('is4'):
        SL2 = [A_, B_, C_, D_, A_, C_, D_, A_, C_, D_, A_, C_, D_, B_, A_, C_, D_, B_]
        IS2 = {0: [4], 2: [5], 3: [6], 4: [7], 5: [8], 6: [9], 7: [10], 8: [11], 9: [12, 13], 10: [14], 11: [15], 12: [16], 13: [17]}
    SP0 = 32
    txt = build_file([dict(name=NAME + '_kernel', grid=256, block=512, lds=163840, body=gen_main(o), vgpr=256, sgpr=102, accum=256)])
    txt = txt.replace('.amdgcn_target', DOC + '.amdgcn_target', 1)
    open(out, 'w').write(txt)
```
